```python
import torch

def _softmax(x, axis=-1):
    return torch.softmax(x, dim=axis)
def _gelu(x):
    return torch.nn.functional.gelu(x, approximate="tanh")
def _silu(x):
    return torch.nn.functional.silu(x)
def _sigmoid(x):
    return torch.sigmoid(x)
def _layernorm(x, axis=-1, eps=1e-5):
    m = x.mean(dim=axis, keepdim=True)
    v = x.var(dim=axis, keepdim=True, unbiased=False)
    return (x - m) / torch.sqrt(v + eps)
def _scatter_add(tgt, idx, src, axis=0):
    return tgt.clone().index_add_(axis, idx, src)
def _segment_sum(src, seg, n):
    out = torch.zeros((n,) + src.shape[1:], dtype=src.dtype)
    return out.index_add_(0, seg, src)
def _pad(x, pw):
    flat = tuple(v for pair in reversed(pw) for v in pair)
    return torch.nn.functional.pad(x, flat)

kernel_name = 'standalone__sliding_block_cached__sampling'

def setup_inputs():

    _w = (lambda a: (lambda t: t.to(torch.bfloat16) if t.is_floating_point() else t)(torch.as_tensor(a)))
    B, Sq, D = 8, 16, 576
    Hq, Hkv, Sk, Dh = 32, 16, 8192, 128
    assert Hq % Hkv == 0, (Hq, Hkv)
    return {
        "x": _w((lambda *s: torch.randn(*s, dtype=torch.bfloat16) * 0.8)(B, Sq, D)),
        "k_cache": _w((lambda *s: torch.randn(*s, dtype=torch.bfloat16) * 0.8)(B, Hkv, Sk, Dh)),
        "v_cache": _w((lambda *s: torch.randn(*s, dtype=torch.bfloat16) * 0.05)(B, Hkv, Sk, Dh)),
        "wq": _w((lambda *s: torch.randn(*s, dtype=torch.bfloat16) * 0.8)(D, Hq * Dh) * (D ** -0.5)),
        "wo": _w((lambda *s: torch.randn(*s, dtype=torch.bfloat16) * 0.05)(Hq * Dh, D) * ((Hq * Dh) ** -0.5)),
    }

def reference(x, k_cache, v_cache, wq, wo):
    B, Sq, D = x.shape
    Hq, Dh = 32, 128
    Hkv, Sk = k_cache.shape[1], k_cache.shape[2]
    W = min(4096, max(256, Sk // 4))
    rep = Hq // Hkv
    q = (lambda x, *d: x.permute(*d))((x @ wq).reshape(B, Sq, Hq, Dh), 0, 2, 1, 3)
    k = (lambda x, n, axis: torch.repeat_interleave(x, n, dim=axis))(k_cache[:, :, Sk - W:, :], rep, axis=1)
    v = (lambda x, n, axis: torch.repeat_interleave(x, n, dim=axis))(v_cache[:, :, Sk - W:, :], rep, axis=1)
    scores = torch.einsum("bhqd,bhkd->bhqk", q, k) * (Dh ** -0.5)
    p = _softmax(scores, axis=-1)
    o = torch.einsum("bhqk,bhkd->bhqd", p, v)
    return (lambda x, *d: x.permute(*d))(o, 0, 2, 1, 3).reshape(B, Sq, Hq * Dh) @ wo
```

```python
import re

def expand(op):
    op = op.strip()
    neg = op.lstrip('-')
    if neg.startswith('abs(') or neg.startswith('|'):
        neg = neg.replace('abs(', '').replace(')', '').replace('|', '')
    op = neg
    m = re.fullmatch(r'([vas])\[(\d+):(\d+)\]', op)
    if m:
        return [f"{m.group(1)}{i}" for i in range(int(m.group(2)), int(m.group(3)) + 1)]
    if re.fullmatch(r'[vas]\d+', op):
        return [op]
    if op == 'vcc': return ['vcc']
    if op in ('vcc_lo', 'vcc_hi'): return ['vcc']
    if op == 'exec': return ['exec']
    if op == 'm0': return ['m0']
    return []

TRANS = ('v_exp_f32', 'v_log_f32', 'v_rcp_f32', 'v_rsq_f32', 'v_sqrt_f32', 'v_sin_f32', 'v_cos_f32')

class Inst:
    def __init__(self, text):
        self.text = text
        t = text.split(';')[0].strip()
        parts = t.split(None, 1)
        self.mn = parts[0]
        rest = parts[1] if len(parts) > 1 else ''
        ops = []
        depth = 0; cur = ''
        for ch in rest:
            if ch == '[': depth += 1
            if ch == ']': depth -= 1
            if ch == ',' and depth == 0:
                ops.append(cur.strip()); cur = ''
            else:
                cur += ch
        if cur.strip(): ops.append(cur.strip())
        mods = ''
        if ops:
            sp = ops[-1].split(None, 1)
            ops[-1] = sp[0]
            if len(sp) > 1: mods = sp[1]
        self.ops = ops; self.mods = mods
        mn = self.mn
        self.kind = 'other'; W = []; R = []
        self.dpp = 'dpp' in mn or 'row_' in mods or 'quad_perm' in mods
        self.states = 1
        if mn.startswith('v_mfma'):
            self.kind = 'mfma'
            W = expand(ops[0]); self.A = expand(ops[1]); self.B = expand(ops[2]); self.C = expand(ops[3])
            R = self.A + self.B + self.C
            self.passes = 4 if '16x16x32' in mn else 8
        elif mn.startswith('v_cmp'):
            self.kind = 'valu'; W = expand(ops[0]); R = sum((expand(o) for o in ops[1:]), [])
        elif mn.startswith('v_readfirstlane') or mn.startswith('v_readlane'):
            self.kind = 'valu'; W = expand(ops[0]); R = sum((expand(o) for o in ops[1:]), [])
        elif mn.startswith('v_permlane'):
            self.kind = 'valu'; W = expand(ops[0]) + expand(ops[1]); R = list(W)
        elif mn.startswith('v_'):
            self.kind = 'valu'
            W = expand(ops[0]); R = sum((expand(o) for o in ops[1:]), [])
            if mn.startswith('v_fmac') or self.dpp: R += W
            if mn.startswith('v_add_co') or mn.startswith('v_addc_co') or mn.startswith('v_sub_co'):
                W += expand(ops[1]); R = sum((expand(o) for o in ops[2:]), [])
            if mn.startswith('v_cndmask') and len(ops) == 3: R += ['vcc']
        elif mn.startswith('buffer_') or mn.startswith('global_'):
            self.kind = 'vmem'
            if 'lds' in mods.split():
                R = sum((expand(o) for o in ops), []) + ['m0']
            elif '_load' in mn:
                W = expand(ops[0]); R = sum((expand(o) for o in ops[1:]), [])
            else:
                R = sum((expand(o) for o in ops), [])
                if mn.startswith('buffer_store'): self.sdata = expand(ops[0])
                else: self.sdata = expand(ops[1])
                if 'atomic' in mn and 'sc0' in mods: W = expand(ops[0])
        elif mn.startswith('ds_'):
            self.kind = 'ds'
            if mn.startswith('ds_read') or mn.startswith('ds_bpermute') or mn.startswith('ds_swizzle'):
                W = expand(ops[0]); R = sum((expand(o) for o in ops[1:]), [])
            else:
                R = sum((expand(o) for o in ops), [])
        elif mn == 's_nop':
            self.kind = 'nop'; self.states = int(ops[0], 0) + 1
        elif mn.startswith('s_'):
            self.kind = 'salu'
            if mn.startswith('s_cmp') or mn.startswith('s_cbranch') or mn in ('s_waitcnt', 's_barrier', 's_branch', 's_endpgm', 's_sleep', 's_setprio', 's_bitcmp1_b32', 's_bitcmp0_b32'):
                R = sum((expand(o) for o in ops), [])
            elif ops:
                W = expand(ops[0]); R = sum((expand(o) for o in ops[1:]), [])
                if 'saveexec' in mn: W += ['exec']
        self.W = W; self.R = R
        self.trans = any(mn.startswith(x) for x in TRANS)

def required(prod, cons):
    need = 0
    pw = set(prod.W)
    if prod.kind == 'valu':
        vw = {r for r in pw if r[0] in 'va' and r != 'vcc'}
        sw = {r for r in pw if r[0] == 's' or r == 'vcc'}
        if cons.kind == 'mfma' and vw & set(cons.R): need = max(need, 2)
        if cons.kind == 'valu':
            if cons.mn.startswith('v_permlane') and vw & set(cons.R): need = max(need, 2)
            if cons.dpp and vw & set(cons.R): need = max(need, 2)
            if (cons.mn.startswith('v_readfirstlane') or cons.mn.startswith('v_readlane')) and vw & set(cons.R): need = max(need, 1)
            if prod.trans and not cons.trans and vw & set(cons.R): need = max(need, 1)
            if sw & set(cons.R): need = max(need, 2)
            if 'exec' in pw: need = max(need, 5)
        if cons.kind == 'vmem' and sw & set(cons.R): need = max(need, 5)
        if cons.kind == 'salu' and sw & set(cons.R): need = max(need, 1)
        if prod.trans and cons.kind in ('vmem', 'ds') and vw & set(cons.R): need = max(need, 1)
    if prod.kind == 'mfma':
        P = prod.passes
        big = {4: 8, 8: 12}[P]; part = {4: 6, 8: 10}[P]; war = {4: 3, 8: 7}[P]
        if cons.kind == 'mfma':
            if pw & (set(cons.A) | set(cons.B)): need = max(need, big)
            if pw & set(cons.C):
                if not (prod.W == cons.C and prod.passes == cons.passes): need = max(need, part)
            elif pw & set(cons.W): need = max(need, big)
        elif cons.kind in ('valu', 'vmem', 'ds'):
            if pw & (set(cons.R) | set(cons.W)): need = max(need, big)
            if cons.kind == 'valu' and set(prod.C) & set(cons.W): need = max(need, war)
    if prod.kind == 'salu' and 'm0' in pw and cons.kind == 'vmem' and 'm0' in cons.R: need = max(need, 1)
    if prod.kind == 'salu' and 'exec' in pw and cons.kind == 'valu' and cons.dpp: need = max(need, 1)
    if prod.kind == 'vmem' and hasattr(prod, 'sdata') and len(prod.sdata) >= 3:
        if cons.kind == 'valu' and set(prod.sdata) & set(cons.W): need = max(need, 2)
        elif set(prod.sdata) & set(cons.W): need = max(need, 1)
    return need

class Asm:
    def __init__(self):
        self.lines = []
        self.hist = []
        self.vm = 0
        self.vm_done = -1
        self.lg = 0
        self.lg_done = -1
        self.nops = 0
    def raw(self, text):
        self.lines.append(text)
    def comment(self, t):
        self.lines.append('    ; ' + t)
    def flush(self):
        dist = 0; need = 0
        for p in reversed(self.hist):
            mx = 0
            if p.kind == 'mfma': mx = {4: 8, 8: 12}[p.passes]
            elif p.kind == 'valu': mx = 5 if any(r[0] == 's' or r in ('vcc', 'exec') for r in p.W) else 2
            elif p.kind == 'salu' and 'm0' in p.W: mx = 1
            elif p.kind == 'vmem' and hasattr(p, 'sdata'): mx = 2
            need = max(need, mx - dist)
            dist += p.states
            if dist > 16: break
        if need > 0: self._nop(need)
        self.hist = []
    def _nop(self, n):
        while n > 0:
            k = min(n, 16)
            i = Inst(f"s_nop {k-1}")
            self.lines.append('    ' + i.text); self.hist.append(i); self.nops += 1
            n -= k
    def label(self, name):
        self.flush()
        self.lines.append(name + ':')
    def __call__(self, text):
        i = Inst(text)
        if i.mn.startswith('s_cbranch') or i.mn in ('s_branch', 's_setpc_b64', 's_swappc_b64'):
            self.flush()
        dist = 0; need = 0
        for p in reversed(self.hist):
            need = max(need, required(p, i) - dist)
            dist += p.states
            if dist > 20: break
        if need > 0: self._nop(need)
        self.lines.append('    ' + text)
        self.hist.append(i)
        if len(self.hist) > 40: self.hist = self.hist[-30:]
        if i.kind == 'vmem':
            self.vm += 1
            return self.vm - 1
        if i.kind == 'ds':
            self.lg += 1
            return self.lg - 1
        return None
    def wait_vm(self, seq):
        if seq <= self.vm_done: return
        n = self.vm - 1 - seq
        assert n >= 0
        n = min(n, 63)
        self(f"s_waitcnt vmcnt({n})")
        self.vm_done = self.vm - 1 - n
    def wait_vm_n(self, n):
        if self.vm - 1 - n <= self.vm_done: return
        self(f"s_waitcnt vmcnt({n})")
        self.vm_done = self.vm - 1 - n
    def wait_lg(self, seq):
        if seq <= self.lg_done: return
        n = min(self.lg - 1 - seq, 15)
        self(f"s_waitcnt lgkmcnt({n})")
        self.lg_done = self.lg - 1 - n
    def wait_lg_all(self):
        self("s_waitcnt lgkmcnt(0)")
        self.lg_done = self.lg - 1
    def wait_vm_all(self):
        self("s_waitcnt vmcnt(0)")
        self.vm_done = self.vm - 1
    def text(self):
        return '\n'.join(self.lines) + '\n'
```

```python
import sys, math, struct
from asmlib import Asm

KNAME = "standalone__sliding_block_cached__sampling_kernel"
HDR = open('standalone__sliding_block_cached__sampling.s.ref').read().split('; Override')[0]

EP_OFF = 0
XS_OFF = 0x10000
XO_OFF = 0x100000
PY_OFF = 0x800000
WS_USED = 0x1000000
STAMP_OFF = 512 << 20
DBG_OFF = 0x4000000
L_BX = 0
L_OC = 8192
L_KW = 24576
L_QR = 98304
L_MX = 131072
L_LX = L_MX + 2560
LDS_BYTES = 135168

def f32(x): return struct.unpack('<I', struct.pack('<f', x))[0]
SCALE = f32(1.4426950408889634 / math.sqrt(128.0))

sK, sV, sWQ, sWO, sX, sWS, sOUT, sWP, sPUB = 20, 24, 28, 32, 36, 40, 44, 68, 72
sSELL, sSELH, sSC, sTAG, sTAB, sSO, sLK, sKVH, sSPL, sB = 48, 49, 50, 51, 52, 61, 62, 63, 64, 65
sE1, sMASK = 66, 67
sPID, sXOo, sXOp, sG0, sG1, sG2, sCNT, sT0, sT1 = 76, 77, 78, 79, 80, 81, 82, 83, 84
sSTAMP = 86
def srd(n): return f"s[{n}:{n+3}]"
vKA, vKR, vLIN, vWQ, vX, vWO, vMX = 2, 6, 10, 11, 12, 13, 14
vQ = 16
vS = 48
vT = 176
RING = [192, 224, 16]
vXO_ = 48
vQA = 84
WQR = [192, 224, 116]
WOS = [112, 144]
aACC = 192

def vr(b, n=4): return f"v[{b}:{b+n-1}]"
def ar(b, n=4): return f"a[{b}:{b+n-1}]"
MF = "v_mfma_f32_16x16x32_bf16"

def cost(it):
    if callable(it): return 1
    if it.startswith('v_mfma'): return 12
    if it.startswith('v_exp') or it.startswith('v_rcp'): return 8
    return 4

def mix(A, comp, loads):
    tot = sum(cost(c) for c in comp)
    n = len(loads); k = 0; acc = 0
    for c in comp:
        while k < n and acc >= tot * k / max(n, 1):
            loads[k](); k += 1
        if callable(c): c()
        else: A(c)
        acc += cost(c)
    while k < n:
        loads[k](); k += 1

def gen(DK=8, DV=6, DQ=16, stamps=False, dbg=None, kf="nt", vf="nt", w1f="nt", w2f="", siteQ=(0, 3), siteO=(2, 5), pubf="sc1", ldf="sc1", codepf=True):
    A = Asm()
    nst = [0]
    def stamp(B):
        if not stamps: return
        i = nst[0]; nst[0] += 1
        B(f"s_memrealtime s[{sSTAMP+2*i}:{sSTAMP+2*i+1}]")
        B.wait_lg_all()
    def stamp_at(B, i):
        if not stamps: return
        B(f"s_memrealtime s[{sSTAMP+2*i}:{sSTAMP+2*i+1}]")
        B.wait_lg_all()

    A.raw(HDR.rstrip())
    A.raw(f"; @launch grid=(256,1,1) block=(256,1,1) lds={LDS_BYTES}")
    A.raw('.amdgcn_target "amdgcn-amd-amdhsa--gfx950"')
    A.raw(".text"); A.raw(f".globl {KNAME}"); A.raw(".p2align 8"); A.raw(f".type {KNAME},@function"); A.raw(f"{KNAME}:")
    A("s_cmp_ge_u32 s2, 256"); A("s_cbranch_scc1 L_end")
    A("s_load_dwordx8 s[4:11], s[0:1], 0")
    A("s_load_dwordx8 s[12:19], s[0:1], 32")
    if stamps: A(f"s_memrealtime s[{sSTAMP}:{sSTAMP+1}]")
    A("s_getpc_b64 s[100:101]")
    A.raw("L_pc:")
    A("v_lshrrev_b32 v1, 6, v0")
    A("v_lshlrev_b32 v16, 7, v0")
    A("v_readfirstlane_b32 s3, v1")
    if codepf:
        A("v_min_u32 v16, L_codeend-L_pc-4, v16")
        A("global_load_dword a255, v16, s[100:101]")
    A("v_mov_b32 v18, v0")
    A("v_and_b32 v0, 63, v0")
    A("s_and_b32 s61, s2, 7"); A("s_lshr_b32 s85, s2, 3")
    A(f"s_and_b32 s{sT0}, s85, 1"); A(f"s_lshl_b32 s61, s61, 1"); A(f"s_add_u32 s{sKVH}, s61, s{sT0}")
    A(f"s_lshr_b32 s{sSPL}, s85, 1"); A(f"s_and_b32 s{sSPL}, s{sSPL}, 1")
    A(f"s_lshr_b32 s{sB}, s85, 2")
    A("v_lshrrev_b32 v20, 4, v0")
    A("v_and_b32 v21, 15, v0")
    A(f"v_lshlrev_b32 v{vLIN}, 4, v0")
    A("v_xor_b32 v22, v21, v20"); A("v_lshlrev_b32 v22, 4, v22"); A(f"v_lshl_add_u32 v{vKA}, v20, 8, v22")
    for i in range(1, 4): A(f"v_xor_b32 v{vKA+i}, {i<<6}, v{vKA}")
    A("v_lshlrev_b32 v22, 4, v21"); A(f"v_lshl_add_u32 v{vWQ}, v20, 16, v22")
    A("v_mul_u32_u24 v22, 1152, v21"); A(f"v_lshl_add_u32 v{vX}, v20, 4, v22")
    A("v_mul_u32_u24 v22, 36864, v20"); A("v_mul_u32_u24 v23, 12, v21"); A(f"v_add_u32 v{vWO}, v22, v23")
    A("v_and_b32 v22, 3, v21"); A("v_lshlrev_b32 v22, 2, v22"); A("v_lshrrev_b32 v23, 2, v21"); A("v_add_u32 v22, v22, v23")
    A("v_lshlrev_b32 v23, 2, v20"); A("v_xor_b32 v23, v23, v22"); A("v_lshlrev_b32 v23, 4, v23"); A("v_lshl_add_u32 v23, v22, 8, v23")
    A(f"s_mul_i32 s{sLK}, s3, {L_KW}")
    A(f"v_add_u32 v{vKR}, s{sLK}, v23")
    for s in range(1, 4): A(f"v_xor_b32 v{vKR+s}, {s<<4}, v{vKR}")
    A("v_lshrrev_b32 v22, 3, v18"); A(f"s_lshl_b32 s{sT0}, s{sB}, 5"); A(f"v_add_u32 v22, s{sT0}, v22"); A("v_mul_u32_u24 v22, 1152, v22")
    A("v_and_b32 v23, 7, v18"); A(f"s_lshl_b32 s{sT0}, s{sSPL}, 9"); A("v_lshl_add_u32 v22, v23, 7, v22"); A(f"v_add_u32 v22, s{sT0}, v22")
    A("v_cmp_gt_u32 vcc, 5, v23"); A("v_mov_b32 v23, 0x7ffffff0"); A("v_cndmask_b32 v19, v23, v22, vcc")
    A(f"s_lshr_b32 s{sT0}, s85, 1"); A(f"s_cmp_ge_u32 s{sT0}, 9"); A(f"s_cselect_b32 s{sT1}, 9, 0"); A(f"s_sub_u32 s{sT0}, s{sT0}, s{sT1}")
    for u in range(9):
        A(f"s_lshl_b32 s{sTAB+u}, s{sT0}, 18")
        if u < 8:
            A(f"s_add_u32 s{sT0}, s{sT0}, 1"); A(f"s_cmp_ge_u32 s{sT0}, 9"); A(f"s_cselect_b32 s{sT0}, 0, s{sT0}")
    A(f"s_mov_b32 s{sSELL}, 0x05040100"); A(f"s_mov_b32 s{sSELH}, 0x07060302"); A(f"s_mov_b32 s{sSC}, {SCALE:#x}")
    A(f"s_mov_b32 s{sMASK}, 0xfffff000")
    A(f"s_lshl_b32 s{sPID}, s{sB}, 4"); A(f"s_add_u32 s{sPID}, s{sPID}, s{sKVH}")
    A(f"s_lshl_b32 s{sT0}, s{sPID}, 21"); A(f"s_add_u32 s{sT0}, s{sT0}, {6144*256}")
    A(f"s_lshl_b32 s{sT1}, s{sSPL}, 18"); A(f"s_add_u32 s{sT0}, s{sT0}, s{sT1}")
    A(f"s_lshl_b32 s{sT1}, s3, 16"); A(f"s_add_u32 s{sT0}, s{sT0}, s{sT1}")
    A(f"s_lshl_b32 s{sPID}, s{sPID}, 1"); A(f"s_add_u32 s{sPID}, s{sPID}, s{sSPL}")
    A("s_waitcnt lgkmcnt(0)")
    def mksrd(n, p, off, size):
        if off is None:
            A(f"s_mov_b32 s{n}, s{p}"); A(f"s_mov_b32 s{n+1}, s{p+1}")
        else:
            A(f"s_add_u32 s{n}, s{p}, {off}"); A(f"s_addc_u32 s{n+1}, s{p+1}, 0")
        A(f"s_mov_b32 s{n+2}, {size}"); A(f"s_mov_b32 s{n+3}, 0x20000")
    mksrd(sK, 6, f"s{sT0}", 65536); mksrd(sV, 8, f"s{sT0}", 65536)
    A(f"s_and_b32 s{sT0}, s3, 1"); A(f"s_lshl_b32 s{sT1}, s{sKVH}, 1"); A(f"s_add_u32 s{sT0}, s{sT0}, s{sT1}"); A(f"s_lshl_b32 s{sT0}, s{sT0}, 8")
    A(f"s_lshr_b32 s{sT1}, s3, 1"); A(f"s_mul_i32 s61, s{sT1}, {288*8192}"); A(f"s_add_u32 s{sT0}, s{sT0}, s61")
    mksrd(sWQ, 10, f"s{sT0}", 287*8192+256)
    A(f"s_mul_i32 s{sT0}, s{sB}, 18432"); A(f"s_mul_i32 s{sT1}, s{sT1}, 576"); A(f"s_add_u32 s{sT0}, s{sT0}, s{sT1}")
    mksrd(sX, 4, f"s{sT0}", 15*1152+576)
    def wq_load(B, u, i, fl):
        B(f"s_add_u32 s{sSO}, s{sTAB+u}, {i*8192}")
        return B(f"buffer_load_dwordx4 {vr(WQR[u%3]+4*i)}, v{vWQ}, {srd(sWQ)}, s{sSO} offen {fl}")
    for i in range(8): wq_load(A, 0, i, w1f)
    A(f"s_mul_i32 s{sT0}, s{sKVH}, {256*1152}")
    mksrd(sWP, 12, f"s{sT0}", 256*1152)
    A(f"buffer_load_dword a255, v19, {srd(sWP)}, 0 offen {w1f}")
    A("v_accvgpr_write_b32 a254, v19")
    for u in range(9):
        A(f"s_lshr_b32 s{sSO}, s{sTAB+u}, 12")
        A(f"buffer_load_dwordx4 {vr(vXO_+4*u)}, v{vX}, {srd(sX)}, s{sSO} offen")
    kseq = {}
    def k_load(blk, i):
        def f():
            A.wait_vm_n(DK - 1)
            if i % 4 == 0:
                A(f"s_mov_b32 s{sSO}, {blk*8192 + (i//4)*4096}")
                A(f"s_add_u32 m0, s{sLK}, {(blk%3)*8192 + (i//4)*4096}")
            kseq[blk, i] = A(f"buffer_load_dwordx4 v{vKA+(i&3)}, {srd(sK)}, s{sSO} offen offset:{(i&3)*1024} {kf} lds")
        return f
    def k_loads(blk): return [k_load(blk, i) for i in range(8)]
    DKs = DK; DK = 63
    for f in k_loads(0): f()
    DK = DKs
    A(f"s_mul_i32 s{sT1}, s{sSPL}, 576"); A(f"s_add_u32 s{sT0}, s{sT0}, s{sT1}")
    A(f"s_mul_i32 s{sT1}, s3, 192"); A(f"s_add_u32 s{sT0}, s{sT0}, s{sT1}")
    mksrd(sWO, 12, f"s{sT0}", 255*1152+192)
    mksrd(sWS, 18, None, WS_USED); mksrd(sPUB, 18, None, WS_USED); mksrd(sOUT, 14, None, 8*16*576*2)
    A("s_cmp_eq_u32 s3, 3"); A(f"s_cselect_b32 s{sWO+2}, 0, s{sWO+2}"); A(f"s_cselect_b32 s{sPUB+2}, 0, s{sPUB+2}")
    A(f"s_lshl_b32 s{sT0}, s{sB}, 8"); A(f"s_load_dword s{sE1}, s[18:19], s{sT0}")
    A("s_waitcnt lgkmcnt(0)")
    A(f"s_add_u32 s{sE1}, s{sE1}, 1"); A(f"s_and_b32 s{sTAG}, s{sE1}, 0xfff")
    A(f"v_mov_b32 v{vMX}, 0xff800000"); A(f"v_mov_b32 v{vMX+1}, 0xff800000")

    mvseq = {}
    def k_move(blk):
        it = [lambda: A.wait_vm(kseq[blk, 7])]
        for t in range(2):
            for s in range(4):
                def f(t=t, s=s):
                    mvseq[blk] = A(f"ds_read_b128 {ar(blk*32+t*16+s*4)}, v{vKR+s} offset:{(blk%3)*8192+t*4096}")
                it.append(f)
        return it
    def slot_free(blk):
        return [lambda: A.wait_lg(mvseq[blk-3])] if blk >= 3 else []
    def qk(blk):
        it = [lambda: A.wait_lg(mvseq[blk])]
        for s in range(4):
            for t in range(2):
                for h in range(2):
                    d = vr(vS + blk*16 + h*8 + t*4)
                    it.append(f"{MF} {d}, {ar(blk*32+t*16+s*4)}, {vr(vQ+h*16+s*4)}, {d if s else 0}")
        return it
    def rmax(blk):
        it = []
        for k in range(4):
            for h in range(2):
                b = vS + blk*16 + h*8 + 2*k
                it.append(f"v_max3_f32 v{vMX+h}, v{vMX+h}, v{b}, v{b+1}")
        return it
    def site(name, which):
        A.wait_lg_all()
        A(f"s_cmp_eq_u32 s{sSPL}, {which}")
        A(f"s_cbranch_scc1 L_{name}")
        A.label(f"L_{name}_ret{which}")

    def kstage(blk, comp):
        for f in slot_free(blk): f()
        mix(A, comp, k_loads(blk))
    if siteQ[0] == 0: site("QB", 0)
    done_mv = 0
    for blk in range(1, siteQ[1] + 1):
        comp = []
        if blk >= 2: comp += k_move(blk - 2); done_mv = blk - 1
        kstage(blk, comp)
        if blk == 1:
            A("v_accvgpr_read_b32 v1, a254")
            A(f"buffer_load_dword a255, v1, {srd(sWP)}, 0 offen {w2f}")
        if blk == siteQ[0]: site("QB", 0)
    site("QB", 1)
    stamp_at(A, 1)
    nq = 0
    nm = 0
    for blk in range(siteQ[1] + 1, 8):
        comp = k_move(blk - 2); done_mv = blk - 1
        todo = []
        while nq < done_mv and len(todo) < 2: todo.append(nq); nq += 1
        for j in todo:
            comp += qk(j)
            if nm < j: comp += rmax(nm); nm += 1
        kstage(blk, comp)
    vseq = {}
    def v_load(blk, i):
        def f():
            A.wait_vm_n(DV - 1)
            if i % 4 == 0: A(f"s_mov_b32 s{sSO}, {blk*8192 + (i//4)*4096}")
            vseq[blk, i] = A(f"buffer_load_dwordx4 {vr(RING[blk%3]+4*i)}, v{vLIN}, {srd(sV)}, s{sSO} offen offset:{(i&3)*1024} {vf}")
        return f
    def v_loads(blk): return [v_load(blk, i) for i in range(8)]
    comp = k_move(6)
    while nq < 7:
        comp += qk(nq)
        while nm < nq: comp += rmax(nm); nm += 1
        nq += 1
    vl = v_loads(0)
    cut = min(max(DV, 1), 8)
    mix(A, comp, vl[:cut])
    comp = k_move(7) + rmax(6) + qk(7)
    mix(A, comp, vl[cut:])
    stamp_at(A, 2)
    comp = ["v_and_b32 v176, 15, v0", "v_lshrrev_b32 v177, 4, v0",
            "v_mul_u32_u24 v178, 80, v176",
            f"s_lshl_b32 s{sT0}, s3, 4",
            f"v_lshl_add_u32 v179, v177, 2, s{sT0}",
            f"v_add_u32 v178, {L_MX}, v178",
            "v_add_u32 v179, v178, v179"]
    comp += rmax(7)
    comp += [f"ds_write_b32 v179, v{vMX}", f"ds_write_b32 v179, v{vMX+1} offset:1280",
             lambda: A.wait_lg_all(), "s_barrier"]
    for h in range(2):
        for k in range(4):
            comp.append(f"ds_read_b128 {vr(224+h*16+k*4)}, v178 offset:{h*1280+k*16}")
    comp.append(lambda: A.wait_lg_all())
    for k in range(8):
        for h in range(2):
            b = 224 + h*16 + 2*k
            comp.append(f"v_max3_f32 v{vMX+h}, v{vMX+h}, v{b}, v{b+1}")
    for h in range(2): comp.append(f"v_mul_f32 v{vMX+h}, s{sSC}, v{vMX+h}")
    for c in comp:
        if callable(c): c()
        else: A(c)
    def softmax(blk):
        it = []
        for h in range(2):
            b = vS + blk*16 + h*8
            for k in range(8): it.append(f"v_fma_f32 v{b+k}, v{b+k}, s{sSC}, -v{vMX+h}")
            for k in range(8): it.append(f"v_exp_f32 v{b+k}, v{b+k}")
        for h in range(2):
            b = vS + blk*16 + h*8
            for k in range(4): it.append(f"v_cvt_pk_bf16_f32 v{vS+blk*8+h*4+k}, v{b+2*k}, v{b+2*k+1}")
        return it
    ones = [f"v_mov_b32 v{vT+k}, 0x3f803f80" for k in range(4)]
    def lsum(blk):
        return [f"{MF} {vr(vT+8+4*h)}, {vr(vT)}, {vr(vS+blk*8+h*4)}, {vr(vT+8+4*h) if blk else 0}" for h in range(2)]
    comp = list(ones)
    for blk in range(4):
        comp += softmax(blk)
        if blk: comp += lsum(blk-1)
    mix(A, comp, v_loads(1))
    comp = []
    for blk in range(4, 8): comp += softmax(blk) + lsum(blk-1)
    comp += lsum(7)
    mix(A, comp, v_loads(2))
    A("v_and_b32 v1, 15, v0"); A(f"s_lshl_b32 s{sT0}, s3, 2"); A(f"v_lshl_add_u32 v1, v1, 4, s{sT0}"); A(f"v_add_u32 v1, {L_LX}, v1")
    A(f"ds_write_b32 v1, v{vT+8}"); A(f"ds_write_b32 v1, v{vT+12} offset:256")
    stamp_at(A, 3)

    def pv(blk, waitfirst=True):
        it = [lambda: A.wait_vm(vseq[blk, 7])] if waitfirst else []
        R = RING[blk % 3]
        for q in range(4):
            tb = vT + (q & 1) * 8
            for p in range(4):
                it.append(f"v_perm_b32 v{tb+p}, v{R+(2*p+1)*4+q}, v{R+(2*p)*4+q}, s{sSELL}")
            for p in range(4):
                it.append(f"v_perm_b32 v{tb+4+p}, v{R+(2*p+1)*4+q}, v{R+(2*p)*4+q}, s{sSELH}")
            for jo in range(2):
                for h in range(2):
                    d = ar(aACC + h*32 + (2*q+jo)*4)
                    it.append(f"{MF} {d}, {vr(tb+4*jo)}, {vr(vS+blk*8+h*4)}, {d if blk else 0}")
        return it
    def run(comp):
        for c in comp:
            if callable(c): c()
            else: A(c)
    if siteO[0] == 2: site("OB", 0)
    run(pv(0))
    def stats_publish():
        it = [lambda: A.wait_lg_all(), "s_barrier",
              "v_and_b32 v1, 15, v0", "v_lshlrev_b32 v1, 4, v1", f"v_add_u32 v1, {L_LX}, v1",
              f"ds_read_b128 {vr(48)}, v1", f"ds_read_b128 {vr(52)}, v1 offset:256",
              lambda: A.wait_lg_all(),
              "v_add_f32 v48, v48, v49", "v_add_f32 v52, v52, v53", "v_add_f32 v50, v50, v51", "v_add_f32 v54, v54, v55",
              f"v_add_f32 v{vWQ}, v48, v50", f"v_add_f32 v{vX}, v52, v54",
              "v_and_b32 v1, 16, v0", "v_cmp_eq_u32 vcc, 0, v1",
              f"v_mov_b32 v50, s{sE1}", f"v_mov_b32 v51, s{sE1}",
              f"v_cndmask_b32 v48, v{vMX+1}, v{vMX}, vcc", f"v_cndmask_b32 v49, v{vX}, v{vWQ}, vcc",
              "v_and_b32 v1, 31, v0", "v_lshlrev_b32 v1, 4, v1",
              f"s_lshl_b32 s{sT0}, s{sPID}, 9", f"s_add_u32 s{sT0}, s{sT0}, {XS_OFF}"]
        return it
    statseq = {}
    for blk in range(3, 8):
        comp = pv(blk - 2)
        if blk == 3:
            comp = stats_publish() + comp
            def st():
                A("s_cmp_lg_u32 s3, 0"); A("s_cbranch_scc1 L_nostat")
                A.raw(f"    buffer_store_dwordx4 {vr(48)}, v1, {srd(sWS)}, s{sT0} offen {pubf}")
                A.raw("    s_nop 1")
                A.label("L_nostat")
            idx = len(stats_publish())
            comp.insert(idx, st)
        if blk == 6:
            comp = comp + tail_addr(A)
        vl = v_loads(blk)
        if blk == 7:
            def ldstat(h):
                def f():
                    if h == 0:
                        A("v_and_b32 v1, 15, v0"); A("v_lshlrev_b32 v1, 4, v1")
                        A(f"s_xor_b32 s{sT0}, s{sPID}, 1"); A(f"s_lshl_b32 s{sT0}, s{sT0}, 9"); A(f"s_add_u32 s{sT0}, s{sT0}, {XS_OFF}")
                    statseq[h] = A(f"buffer_load_dwordx4 {vr(72+4*h)}, v1, {srd(sWS)}, s{sT0} offen offset:{h*256} {ldf}")
                return f
            cut = min(max(DV, 1), 8)
            mix(A, comp, [ldstat(0), ldstat(1)] + vl[:cut])
            comp = [lambda: A.wait_vm(statseq[1])] + stat_scales(A) + pv(6)
            mix(A, comp, vl[cut:])
        else:
            mix(A, comp, vl)
        if blk in siteO:
            site("OB", siteO.index(blk))
    stamp_at(A, 4)
    run(pv(7))
    tail(A, pubf, ldf, stamp_at)
    if stamps:
        A(f"s_lshl_b32 s{sT0}, s2, 2"); A(f"s_add_u32 s{sT0}, s{sT0}, s3"); A(f"s_lshl_b32 s{sT0}, s{sT0}, 6")
        A(f"s_add_u32 s{sT0}, s{sT0}, {STAMP_OFF}")
        A(f"s_add_u32 s18, s18, s{sT0}"); A("s_addc_u32 s19, s19, 0")
        A("v_mov_b32 v1, 0")
        for j in range(4):
            for k in range(4): A(f"v_mov_b32 v{4+k}, s{sSTAMP+4*j+k}")
            A(f"global_store_dwordx4 v1, v[4:7], s[18:19] offset:{16*j}")
    A.label("L_end")
    A("s_endpgm")

    B = Asm()
    B.label("L_QB")
    qs = {}
    def q_load(u, i):
        def f():
            B.wait_vm_n(DQ - 1)
            qs[u, i] = wq_load(B, u, i, w2f)
        return f
    def q_cons(u):
        it = [lambda: B.wait_vm(qs[u, 7] if u else qs[1, 0])]
        R = WQR[u % 3]
        for q in range(4):
            tb = vT + (q & 1) * 8
            for p in range(4): it.append(f"v_perm_b32 v{tb+p}, v{R+(2*p+1)*4+q}, v{R+(2*p)*4+q}, s{sSELL}")
            for p in range(4): it.append(f"v_perm_b32 v{tb+4+p}, v{R+(2*p+1)*4+q}, v{R+(2*p)*4+q}, s{sSELH}")
            for jo in range(2):
                d = vr(vQA + (2*q+jo)*4)
                it.append(f"{MF} {d}, {vr(tb+4*jo)}, {vr(vXO_+4*u)}, {d if u else 0}")
        return it
    for u in (1, 2):
        for i in range(8): q_load(u, i)()
    mix(B, q_cons(0), [])
    for u in range(1, 9):
        mix(B, q_cons(u), [q_load(u+2, i) for i in range(8)] if u + 2 <= 8 else [])
    B(f"s_lshl_b32 s{sT0}, s3, 13"); B(f"s_add_u32 s{sT0}, s{sT0}, {L_QR}"); B(f"v_add_u32 v1, s{sT0}, v{vLIN}")
    for j in range(8): B(f"ds_write_b128 v1, {vr(vQA+4*j)} offset:{j*1024}")
    B(f"v_add_u32 v1, {L_QR}, v{vLIN}")
    B.wait_lg_all(); B("s_barrier")
    rs = {}
    for h in range(2):
        for j in range(8):
            for k in range(2):
                rs[h, j, k] = B(f"ds_read_b128 {vr(vS+h*64+j*8+k*4)}, v1 offset:{(h+2*k)*8192+j*1024}")
    for h in range(2):
        for p in range(4):
            B.wait_lg(rs[h, 2*p+1, 1])
            for jo in range(2):
                b = vS + h*64 + (2*p+jo)*8
                for r in range(4): B(f"v_add_f32 v{b+r}, v{b+r}, v{b+4+r}")
            for r in range(4):
                B(f"v_cvt_pk_bf16_f32 v{vQ+h*16+r*4+p}, v{vS+h*64+(2*p)*8+r}, v{vS+h*64+(2*p+1)*8+r}")
    B(f"s_cmp_eq_u32 s{sSPL}, 0"); B("s_cbranch_scc1 L_QB_ret0"); B("s_branch L_QB_ret1")

    C = Asm()
    C.label("L_OB")
    os_ = {}
    def o_load(s, i):
        def f():
            C.wait_vm_n(DQ - 1)
            h, r = s >> 2, s & 3
            off = (h*128 + r*8 + i) * 1152
            so = off // 4096 * 4096
            C(f"s_mov_b32 s{sSO}, {so}")
            os_[s, i] = C(f"buffer_load_dwordx3 {vr(WOS[s%2]+4*i, 3)}, v{vWO}, {srd(sWO)}, s{sSO} offen offset:{off-so} {w2f}")
        return f
    def o_cons(s):
        it = [lambda: C.wait_vm(os_[s, 7])]
        R = WOS[s % 2]
        for q in range(3):
            tb = vT + (q & 1) * 8
            for p in range(4): it.append(f"v_perm_b32 v{tb+p}, v{R+(2*p+1)*4+q}, v{R+(2*p)*4+q}, s{sSELL}")
            for p in range(4): it.append(f"v_perm_b32 v{tb+4+p}, v{R+(2*p+1)*4+q}, v{R+(2*p)*4+q}, s{sSELH}")
            for k in range(8): it.append(f"v_accvgpr_write_b32 a{s*24+q*8+k}, v{tb+k}")
        return it
    for s in (0, 1):
        for i in range(8): o_load(s, i)()
    for s in range(8):
        mix(C, o_cons(s), [])
        if s + 2 <= 7:
            for i in range(8): o_load(s+2, i)()
    C(f"s_cmp_eq_u32 s{sSPL}, 0"); C("s_cbranch_scc1 L_OB_ret0"); C("s_branch L_OB_ret1")

    D = Asm()
    D.label("L_statpoll")
    D(f"s_mov_b32 s{sCNT}, {POLL_MAX}")
    D.label("L_statloop")
    for h in range(2): D(f"buffer_load_dwordx4 {vr(72+4*h)}, v1, {srd(sWS)}, s{sT0} offen offset:{h*256} {ldf}")
    D("s_waitcnt vmcnt(0)")
    for c in stat_check(): D(c)
    D("s_cbranch_scc1 L_statok")
    D(f"s_sub_u32 s{sCNT}, s{sCNT}, 1"); D(f"s_cmp_lg_u32 s{sCNT}, 0"); D("s_cbranch_scc1 L_statloop")
    D("s_endpgm")

    out = A.text() + B.text() + C.text() + D.text() + "L_codeend:\n" + "    s_nop 0\n" * 64
    out += f""".section .rodata,"a"
.p2align 6
.amdhsa_kernel {KNAME}
  .amdhsa_next_free_vgpr 512
  .amdhsa_next_free_sgpr 102
  .amdhsa_accum_offset 256
  .amdhsa_group_segment_fixed_size 0
  .amdhsa_kernarg_size 64
  .amdhsa_user_sgpr_count 2
  .amdhsa_user_sgpr_kernarg_segment_ptr 1
  .amdhsa_system_sgpr_workgroup_id_x 1
.end_amdhsa_kernel
"""
    return out

POLL_MAX = 200000
vPUB, vOUT, vGAT, vOCW, vOCR, vBXW, vTAG = 56, 62, 65, 66, 67, 68, 69
sPB, sGA = 4, 6

def tail_addr(A):
    it = []
    a = it.append
    a(f"s_mul_i32 s{sT0}, s3, 384")
    a(f"v_add_u32 v80, s{sT0}, v0")
    a(f"s_movk_i32 s{sT1}, 17280")
    for gm in range(6):
        a(f"v_add_u32 v81, {gm*64}, v80")
        a("v_mul_u32_u24 v82, 911, v81"); a("v_lshrrev_b32 v82, 16, v82")
        a(f"v_mul_u32_u24 v82, s{sT1}, v82"); a(f"v_lshl_add_u32 v{vPUB+gm}, v81, 4, v82")
    a(f"s_lshl_b32 s{sT0}, s{sB}, 1"); a(f"s_add_u32 s{sT0}, s{sT0}, s{sSPL}")
    a(f"s_mul_i32 s{sPB}, s{sT0}, {256*1152}"); a(f"s_add_u32 s{sPB}, s{sPB}, {PY_OFF}")
    a(f"s_mul_i32 s{sT1}, s{sKVH}, {16*1152}"); a(f"s_add_u32 s12, s{sPB}, s{sT1}")
    a(f"s_mul_i32 s{sT1}, s{sKVH}, 1152"); a(f"s_add_u32 s{sPB}, s{sPB}, s{sT1}")
    a("s_mov_b32 s13, s3"); a("s_add_u32 s14, s3, 4"); a("s_cmp_eq_u32 s3, 0"); a("s_cselect_b32 s15, 8, s3")
    for k in range(3):
        a(f"s_lshl_b32 s{sT1}, s{13+k}, 7"); a(f"s_add_u32 s{sGA+2*k}, s12, s{sT1}"); a(f"s_add_u32 s{sGA+2*k+1}, s{sGA+2*k}, 9216")
    a("v_lshrrev_b32 v80, 3, v0"); a("v_mul_u32_u24 v80, 1152, v80"); a("v_and_b32 v81, 7, v0"); a(f"v_lshl_add_u32 v{vGAT}, v81, 4, v80")
    a("v_lshrrev_b32 v87, 4, v0")
    a(f"s_mul_i32 s{sT0}, s{sSPL}, 288"); a(f"v_add_u32 v87, s{sT0}, v87")
    a(f"s_mul_i32 s12, s{sKVH}, 72")
    for k in range(3):
        a(f"s_lshl_b32 s{sT0}, s{13+k}, 3"); a(f"s_add_u32 s{sT0}, s{sT0}, s12")
        a(f"v_add_u32 v80, s{sT0}, v81")
        a("v_lshrrev_b32 v82, 6, v80")
        a("v_mul_u32_u24 v83, 43, v82"); a("v_lshrrev_b32 v83, 8, v83")
        a("v_mul_u32_u24 v84, 72, v83")
        a("v_lshl_add_u32 v84, v82, 2, v84")
        a("v_bfe_u32 v85, v80, 4, 2"); a("v_mul_u32_u24 v85, 24, v85")
        a("v_add3_u32 v84, v84, v85, v87")
        a("v_and_b32 v85, 15, v80"); a("v_mul_u32_u24 v85, 1152, v85")
        a(f"v_lshl_add_u32 v{vOUT+k}, v84, 1, v85")
    a(f"s_mul_i32 s16, s{sB}, 18432")
    a(f"s_lshl_b32 s{sT0}, s3, 14"); a(f"s_add_u32 s{sT0}, s{sT0}, {L_OC}"); a(f"v_add_u32 v{vOCW}, s{sT0}, v{vLIN}")
    a(f"s_lshl_b32 s{sT0}, s3, 11"); a(f"s_add_u32 s{sT0}, s{sT0}, {L_OC}"); a(f"v_add_u32 v{vOCR}, s{sT0}, v{vLIN}")
    a(f"s_lshl_b32 s{sT0}, s3, 2"); a(f"v_add_u32 v{vBXW}, s{sT0}, v{vLIN}")
    a(f"v_mov_b32 v{vTAG}, s{sTAG}")
    a(f"s_lshl_b32 s{sXOo}, s{sPID}, 14"); a(f"s_lshl_b32 s{sT0}, s3, 12"); a(f"s_add_u32 s{sXOo}, s{sXOo}, s{sT0}")
    a(f"s_xor_b32 s{sXOp}, s{sXOo}, {1<<14}")
    a(f"s_add_u32 s{sXOo}, s{sXOo}, {XO_OFF}"); a(f"s_add_u32 s{sXOp}, s{sXOp}, {XO_OFF}")
    return it

def stat_check():
    return [f"v_xor_b32 v80, s{sE1}, v74", f"v_xor_b32 v81, s{sE1}, v75", f"v_xor_b32 v82, s{sE1}, v78", f"v_xor_b32 v83, s{sE1}, v79",
            "v_or3_b32 v80, v80, v81, v82", "v_or_b32 v80, v80, v83", "v_cmp_eq_u32 vcc, 0, v80", "s_cmp_eq_u64 vcc, -1"]

def stat_scales(A):
    it = stat_check()
    def br():
        A("s_cbranch_scc0 L_statpoll")
        A.label("L_statok")
    it.append(br)
    for h in range(2):
        it += [f"v_max_f32 v{80+h}, v{vMX+h}, v{72+4*h}"]
    for h in range(2):
        it += [f"v_sub_f32 v{82+h}, v{vMX+h}, v{80+h}", f"v_sub_f32 v{84+h}, v{72+4*h}, v{80+h}"]
    for h in range(2):
        it += [f"v_exp_f32 v{82+h}, v{82+h}", f"v_exp_f32 v{84+h}, v{84+h}"]
    for h in range(2):
        it += [f"v_mul_f32 v{84+h}, v{84+h}, v{73+4*h}"]
    for h in range(2):
        it += [f"v_fma_f32 v{84+h}, v{82+h}, v{vWQ+h}, v{84+h}"]
    for h in range(2):
        it += [f"v_rcp_f32 v{84+h}, v{84+h}"]
    for h in range(2):
        it += [f"v_mul_f32 v{vWQ+h}, v{82+h}, v{84+h}"]
    return it

def poll(A, name, loads, base, n):
    A(f"s_mov_b32 s{sCNT}, {POLL_MAX}")
    A.label(name)
    for l in loads: A(l)
    A("s_waitcnt vmcnt(0)")
    A.vm_done = A.vm - 1
    for k in range(n): A(f"v_xor_b32 v{base+k}, s{sTAG}, v{base+k}")
    A(f"v_or3_b32 v1, v{base}, v{base+1}, v{base+2}")
    A(f"v_or3_b32 v70, v{base+3}, v{base+4}, v{base+5}")
    k = 6; t = 0
    while k < n:
        r = ("v1", "v70")[t]; t ^= 1
        if k + 1 < n: A(f"v_or3_b32 {r}, {r}, v{base+k}, v{base+k+1}"); k += 2
        else: A(f"v_or_b32 {r}, {r}, v{base+k}"); k += 1
    A("v_or_b32 v1, v1, v70"); A("v_and_b32 v1, 0xfff, v1")
    A("v_cmp_eq_u32 vcc, 0, v1"); A("s_cmp_eq_u64 vcc, -1")
    A(f"s_cbranch_scc1 {name}_ok")
    A(f"s_sub_u32 s{sCNT}, s{sCNT}, 1"); A(f"s_cmp_lg_u32 s{sCNT}, 0"); A(f"s_cbranch_scc1 {name}")
    A("s_endpgm")
    A.label(f"{name}_ok")

def tail(A, pubf, ldf, stamp_at):
    for k in range(16): A(f"ds_write_b128 v{vOCW}, {ar(aACC+4*k)} offset:{k*1024}")
    A.wait_lg_all(); A("s_barrier")
    rs = {}
    for x in range(4):
        for src in range(4):
            rs[x, src] = A(f"ds_read_b128 {vr(192+src*16+x*4)}, v{vOCR} offset:{src*16384+(x>>1)*8192+(x&1)*1024}")
    for x in range(4):
        A.wait_lg(rs[x, 3])
        b = 192 + x*4
        for r in range(4): A(f"v_add_f32 v{b+r}, v{b+r}, v{b+16+r}")
        for r in range(4): A(f"v_add_f32 v{b+32+r}, v{b+32+r}, v{b+48+r}")
        for r in range(4): A(f"v_add_f32 v{b+r}, v{b+r}, v{b+32+r}")
        for r in range(4): A(f"v_mul_f32 v{b+r}, v{b+r}, v{vWQ+(x>>1)}")
        for r in range(4): A(f"v_and_or_b32 v{32+x*4+r}, v{b+r}, s{sMASK}, v{vTAG}")
        A(f"buffer_store_dwordx4 {vr(32+x*4)}, v{vLIN}, {srd(sWS)}, s{sXOo} offen offset:{x*1024} {pubf}")
    for k in range(16): A(f"v_and_b32 v{16+k}, s{sMASK}, v{192+k}")
    stamp_at(A, 5)
    poll(A, "L_xp", [f"buffer_load_dwordx4 {vr(112+4*x)}, v{vLIN}, {srd(sWS)}, s{sXOp} offen offset:{x*1024} {ldf}" for x in range(4)], 112, 16)
    for h in range(2):
        for r in range(4):
            A(f"v_add_f32 v{16+h*8+r}, v{16+h*8+r}, v{112+h*8+r}")
            A(f"v_add_f32 v{20+h*8+r}, v{20+h*8+r}, v{116+h*8+r}")
            A(f"v_cvt_pk_bf16_f32 v{128+h*4+r}, v{16+h*8+r}, v{20+h*8+r}")
            A(f"ds_write_b32 v{vBXW}, v{128+h*4+r} offset:{L_BX+(h*4+r)*1024}")
    A.wait_lg_all(); A("s_barrier")
    bs = [A(f"ds_read_b128 {vr(136+4*s)}, v{vLIN} offset:{L_BX+s*1024}") for s in range(8)]
    for s in range(8):
        A.wait_lg(bs[s])
        for j in range(6):
            d = vr(168 + 4*j)
            A(f"{MF} {d}, {ar(s*24+j*4)}, {vr(136+4*s)}, {d if s else 0}")
    for gm in range(6):
        for x in range(4):
            e = gm*4 + x
            A(f"v_and_or_b32 v{192+e}, v{168+(e%6)*4+e//6}, s{sMASK}, v{vTAG}")
        A(f"buffer_store_dwordx4 {vr(192+gm*4)}, v{vPUB+gm}, {srd(sPUB)}, s{sPB} offen {pubf}")
    stamp_at(A, 6)
    poll(A, "L_gp", [f"buffer_load_dwordx4 {vr(216+4*k)}, v{vGAT}, {srd(sWS)}, s{sGA+k} offen {ldf}" for k in range(6)], 216, 24)
    for k in range(3):
        b = 216 + 8*k
        for x in range(4): A(f"v_add_f32 v{b+x}, v{b+x}, v{b+4+x}")
    for k in range(3):
        b = 216 + 8*k
        A(f"v_permlane32_swap_b32 v{b}, v{b+2}"); A(f"v_permlane32_swap_b32 v{b+1}, v{b+3}")
    for k in range(3):
        b = 216 + 8*k
        A(f"v_add_f32 v{b}, v{b}, v{b+2}"); A(f"v_add_f32 v{b+1}, v{b+1}, v{b+3}")
    for k in range(3):
        b = 216 + 8*k
        A(f"v_permlane16_swap_b32 v{b}, v{b+1}")
    for k in range(3):
        b = 216 + 8*k
        A(f"v_add_f32 v{b}, v{b}, v{b+1}")
    for k in range(3):
        b = 216 + 8*k
        A(f"v_add_f32_dpp v{b+1}, v{b}, v{b} row_ror:8 row_mask:0xf bank_mask:0xf")
    for k in range(3):
        b = 216 + 8*k
        A(f"v_cvt_pk_bf16_f32 v{b}, v{b+1}, v{b+1}")
        A(f"buffer_store_short v{b}, v{vOUT+k}, {srd(sOUT)}, s16 offen")
    A(f"s_or_b32 s{sT0}, s{sKVH}, s{sSPL}"); A(f"s_or_b32 s{sT0}, s{sT0}, s3"); A(f"s_cmp_lg_u32 s{sT0}, 0"); A("s_cbranch_scc1 L_noep")
    A(f"v_mov_b32 v1, s{sE1}"); A(f"s_lshl_b32 s{sT0}, s{sB}, 8"); A("v_mov_b32 v2, 0")
    A(f"buffer_store_dword v1, v2, {srd(sWS)}, s{sT0} offen")
    A.label("L_noep")
    stamp_at(A, 7)

if __name__ == "__main__":
    import json
    kw = json.loads(sys.argv[2]) if len(sys.argv) > 2 else {}
    open(sys.argv[1], "w").write(gen(**kw))
```

```python
import sys, math, struct
from asmlib import Asm

KNAME = "standalone__sliding_block_cached__sampling_kernel"
HDR = open('standalone__sliding_block_cached__sampling.s.ref').read().split('; Override')[0]

EP_OFF = 0
XS_OFF = 0x10000
XO_OFF = 0x100000
PY_OFF = 0x800000
WS_USED = 0x1000000
STAMP_OFF = 512 << 20
DBG_OFF = 0x4000000
L_BX = 0
L_OC = 8192
L_KW = 24576
L_QR = 98304
L_MX = 131072
L_LX = L_MX + 2560
LDS_BYTES = 135168

def f32(x): return struct.unpack('<I', struct.pack('<f', x))[0]
SCALE = f32(1.4426950408889634 / math.sqrt(128.0))

sK, sV, sWQ, sWO, sX, sWS, sOUT, sWP, sPUB = 20, 24, 28, 32, 36, 40, 44, 68, 72
sSELL, sSELH, sSC, sTAG, sTAB, sSO, sLK, sKVH, sSPL, sB = 48, 49, 50, 51, 52, 61, 62, 63, 64, 65
sE1, sMASK = 66, 67
sPID, sXOo, sXOp, sG0, sG1, sG2, sCNT, sT0, sT1 = 76, 77, 78, 79, 80, 81, 82, 83, 84
sSTAMP = 86
def srd(n): return f"s[{n}:{n+3}]"
vKA, vKR, vLIN, vWQ, vX, vWO, vMX = 2, 6, 10, 11, 12, 13, 14
vQ = 16
vS = 48
vT = 176
RING = [192, 224, 16]
vXO_ = 48
vQA = 84
WQR = [192, 224, 116]
WOS = [112, 144]
aACC = 192

def vr(b, n=4): return f"v[{b}:{b+n-1}]"
def ar(b, n=4): return f"a[{b}:{b+n-1}]"
MF = "v_mfma_f32_16x16x32_bf16"

def cost(it):
    if callable(it): return 1
    if it.startswith('v_mfma'): return 12
    if it.startswith('v_exp') or it.startswith('v_rcp'): return 8
    return 4

def mix(A, comp, loads):
    tot = sum(cost(c) for c in comp)
    n = len(loads); k = 0; acc = 0
    for c in comp:
        while k < n and acc >= tot * k / max(n, 1):
            loads[k](); k += 1
        if callable(c): c()
        else: A(c)
        acc += cost(c)
    while k < n:
        loads[k](); k += 1

def gen(DK=8, DV=6, DQ=16, stamps=False, dbg=None, kf="nt", vf="nt", w1f="nt", w2f="", siteQ=(0, 3), siteO=(2, 5), pubf="sc1", ldf="sc1", xf=None, xlf=None, codepf=True, wsbase=0):
    if xf is None: xf = pubf
    if xlf is None: xlf = ldf
    A = Asm()
    nst = [0]
    def stamp(B):
        if not stamps: return
        i = nst[0]; nst[0] += 1
        B(f"s_memrealtime s[{sSTAMP+2*i}:{sSTAMP+2*i+1}]")
        B.wait_lg_all()
    def stamp_at(B, name):
        if not stamps or name not in stamps: return
        i = stamps.index(name) + 1
        if name.startswith("cnt"):
            B(f"s_sub_u32 s{sSTAMP+2*i}, {POLL_MAX}, s{sCNT}"); B(f"s_mov_b32 s{sSTAMP+2*i+1}, 0")
            return
        B.wait_lg_all()
        B(f"s_memrealtime s[{sSTAMP+2*i}:{sSTAMP+2*i+1}]")
        B.wait_lg_all()

    A.raw(HDR.rstrip())
    A.raw(f"; @launch grid=(256,1,1) block=(256,1,1) lds={LDS_BYTES}")
    A.raw('.amdgcn_target "amdgcn-amd-amdhsa--gfx950"')
    A.raw(".text"); A.raw(f".globl {KNAME}"); A.raw(".p2align 8"); A.raw(f".type {KNAME},@function"); A.raw(f"{KNAME}:")
    A("s_cmp_ge_u32 s2, 256"); A("s_cbranch_scc1 L_end")
    A("s_load_dwordx8 s[4:11], s[0:1], 0")
    A("s_load_dwordx8 s[12:19], s[0:1], 32")
    if stamps: A(f"s_memrealtime s[{sSTAMP}:{sSTAMP+1}]")
    A("s_getpc_b64 s[100:101]")
    A.raw("L_pc:")
    A("v_lshrrev_b32 v1, 6, v0")
    A("v_lshlrev_b32 v16, 7, v0")
    A("v_readfirstlane_b32 s3, v1")
    if codepf:
        A("v_min_u32 v16, L_codeend-L_pc-4, v16")
        A("global_load_dword a255, v16, s[100:101]")
    A("v_mov_b32 v18, v0")
    A("v_and_b32 v0, 63, v0")
    A("s_and_b32 s61, s2, 7"); A("s_lshr_b32 s85, s2, 3")
    A(f"s_and_b32 s{sT0}, s85, 1"); A(f"s_lshl_b32 s61, s61, 1"); A(f"s_add_u32 s{sKVH}, s61, s{sT0}")
    A(f"s_lshr_b32 s{sSPL}, s85, 1"); A(f"s_and_b32 s{sSPL}, s{sSPL}, 1")
    A(f"s_lshr_b32 s{sB}, s85, 2")
    A("v_lshrrev_b32 v20, 4, v0")
    A("v_and_b32 v21, 15, v0")
    A(f"v_lshlrev_b32 v{vLIN}, 4, v0")
    A("v_xor_b32 v22, v21, v20"); A("v_lshlrev_b32 v22, 4, v22"); A(f"v_lshl_add_u32 v{vKA}, v20, 8, v22")
    for i in range(1, 4): A(f"v_xor_b32 v{vKA+i}, {i<<6}, v{vKA}")
    A("v_lshlrev_b32 v22, 4, v21"); A(f"v_lshl_add_u32 v{vWQ}, v20, 16, v22")
    A("v_mul_u32_u24 v22, 1152, v21"); A(f"v_lshl_add_u32 v{vX}, v20, 4, v22")
    A("v_mul_u32_u24 v22, 36864, v20"); A("v_mul_u32_u24 v23, 12, v21"); A(f"v_add_u32 v{vWO}, v22, v23")
    A("v_and_b32 v22, 3, v21"); A("v_lshlrev_b32 v22, 2, v22"); A("v_lshrrev_b32 v23, 2, v21"); A("v_add_u32 v22, v22, v23")
    A("v_lshlrev_b32 v23, 2, v20"); A("v_xor_b32 v23, v23, v22"); A("v_lshlrev_b32 v23, 4, v23"); A("v_lshl_add_u32 v23, v22, 8, v23")
    A(f"s_mul_i32 s{sLK}, s3, {L_KW}")
    A(f"v_add_u32 v{vKR}, s{sLK}, v23")
    for s in range(1, 4): A(f"v_xor_b32 v{vKR+s}, {s<<4}, v{vKR}")
    A("v_lshrrev_b32 v22, 3, v18"); A(f"s_lshl_b32 s{sT0}, s{sB}, 5"); A(f"v_add_u32 v22, s{sT0}, v22"); A("v_mul_u32_u24 v22, 1152, v22")
    A("v_and_b32 v23, 7, v18"); A(f"s_lshl_b32 s{sT0}, s{sSPL}, 9"); A("v_lshl_add_u32 v22, v23, 7, v22"); A(f"v_add_u32 v22, s{sT0}, v22")
    A("v_cmp_gt_u32 vcc, 5, v23"); A("v_mov_b32 v23, 0x7ffffff0"); A("v_cndmask_b32 v19, v23, v22, vcc")
    A(f"s_lshr_b32 s{sT0}, s85, 1"); A(f"s_cmp_ge_u32 s{sT0}, 9"); A(f"s_cselect_b32 s{sT1}, 9, 0"); A(f"s_sub_u32 s{sT0}, s{sT0}, s{sT1}")
    for u in range(9):
        A(f"s_lshl_b32 s{sTAB+u}, s{sT0}, 18")
        if u < 8:
            A(f"s_add_u32 s{sT0}, s{sT0}, 1"); A(f"s_cmp_ge_u32 s{sT0}, 9"); A(f"s_cselect_b32 s{sT0}, 0, s{sT0}")
    A(f"s_mov_b32 s{sSELL}, 0x05040100"); A(f"s_mov_b32 s{sSELH}, 0x07060302"); A(f"s_mov_b32 s{sSC}, {SCALE:#x}")
    A(f"s_mov_b32 s{sMASK}, 0xfffff000")
    A(f"s_lshl_b32 s{sPID}, s{sB}, 4"); A(f"s_add_u32 s{sPID}, s{sPID}, s{sKVH}")
    A(f"s_lshl_b32 s{sT0}, s{sPID}, 21"); A(f"s_add_u32 s{sT0}, s{sT0}, {6144*256}")
    A(f"s_lshl_b32 s{sT1}, s{sSPL}, 18"); A(f"s_add_u32 s{sT0}, s{sT0}, s{sT1}")
    A(f"s_lshl_b32 s{sT1}, s3, 16"); A(f"s_add_u32 s{sT0}, s{sT0}, s{sT1}")
    A(f"s_lshl_b32 s{sPID}, s{sPID}, 1"); A(f"s_add_u32 s{sPID}, s{sPID}, s{sSPL}")
    A("s_waitcnt lgkmcnt(0)")
    def mksrd(n, p, off, size):
        if off is None:
            A(f"s_mov_b32 s{n}, s{p}"); A(f"s_mov_b32 s{n+1}, s{p+1}")
        else:
            A(f"s_add_u32 s{n}, s{p}, {off}"); A(f"s_addc_u32 s{n+1}, s{p+1}, 0")
        A(f"s_mov_b32 s{n+2}, {size}"); A(f"s_mov_b32 s{n+3}, 0x20000")
    mksrd(sK, 6, f"s{sT0}", 65536); mksrd(sV, 8, f"s{sT0}", 65536)
    A(f"s_and_b32 s{sT0}, s3, 1"); A(f"s_lshl_b32 s{sT1}, s{sKVH}, 1"); A(f"s_add_u32 s{sT0}, s{sT0}, s{sT1}"); A(f"s_lshl_b32 s{sT0}, s{sT0}, 8")
    A(f"s_lshr_b32 s{sT1}, s3, 1"); A(f"s_mul_i32 s61, s{sT1}, {288*8192}"); A(f"s_add_u32 s{sT0}, s{sT0}, s61")
    mksrd(sWQ, 10, f"s{sT0}", 287*8192+256)
    A(f"s_mul_i32 s{sT0}, s{sB}, 18432"); A(f"s_mul_i32 s{sT1}, s{sT1}, 576"); A(f"s_add_u32 s{sT0}, s{sT0}, s{sT1}")
    mksrd(sX, 4, f"s{sT0}", 15*1152+576)
    def wq_load(B, u, i, fl):
        B(f"s_add_u32 s{sSO}, s{sTAB+u}, {i*8192}")
        return B(f"buffer_load_dwordx4 {vr(WQR[u%3]+4*i)}, v{vWQ}, {srd(sWQ)}, s{sSO} offen {fl}")
    for i in range(8): wq_load(A, 0, i, w1f)
    A(f"s_mul_i32 s{sT0}, s{sKVH}, {256*1152}")
    mksrd(sWP, 12, f"s{sT0}", 256*1152)
    A(f"buffer_load_dword a255, v19, {srd(sWP)}, 0 offen {w1f}")
    A("v_accvgpr_write_b32 a254, v19")
    for u in range(9):
        A(f"s_lshr_b32 s{sSO}, s{sTAB+u}, 12")
        A(f"buffer_load_dwordx4 {vr(vXO_+4*u)}, v{vX}, {srd(sX)}, s{sSO} offen")
    kseq = {}
    def k_load(blk, i):
        def f():
            A.wait_vm_n(DK - 1)
            if i % 4 == 0:
                A(f"s_mov_b32 s{sSO}, {blk*8192 + (i//4)*4096}")
                A(f"s_add_u32 m0, s{sLK}, {(blk%3)*8192 + (i//4)*4096}")
            kseq[blk, i] = A(f"buffer_load_dwordx4 v{vKA+(i&3)}, {srd(sK)}, s{sSO} offen offset:{(i&3)*1024} {kf} lds")
        return f
    def k_loads(blk): return [k_load(blk, i) for i in range(8)]
    DKs = DK; DK = 63
    for f in k_loads(0): f()
    DK = DKs
    A(f"s_mul_i32 s{sT1}, s{sSPL}, 576"); A(f"s_add_u32 s{sT0}, s{sT0}, s{sT1}")
    A(f"s_mul_i32 s{sT1}, s3, 192"); A(f"s_add_u32 s{sT0}, s{sT0}, s{sT1}")
    mksrd(sWO, 12, f"s{sT0}", 255*1152+192)
    mksrd(sWS, 18, wsbase, WS_USED); mksrd(sPUB, 18, wsbase, WS_USED); mksrd(sOUT, 14, None, 8*16*576*2)
    A("s_cmp_eq_u32 s3, 3"); A(f"s_cselect_b32 s{sWO+2}, 0, s{sWO+2}"); A(f"s_cselect_b32 s{sPUB+2}, 0, s{sPUB+2}")
    A(f"s_lshl_b32 s{sT0}, s{sB}, 8"); A(f"s_load_dword s{sE1}, s[{sWS}:{sWS+1}], s{sT0}")
    A("s_waitcnt lgkmcnt(0)")
    A(f"s_add_u32 s{sE1}, s{sE1}, 1"); A(f"s_and_b32 s{sTAG}, s{sE1}, 0xfff")
    A(f"v_mov_b32 v{vMX}, 0xff800000"); A(f"v_mov_b32 v{vMX+1}, 0xff800000")

    mvseq = {}
    def k_move(blk):
        it = [lambda: A.wait_vm(kseq[blk, 7])]
        for t in range(2):
            for s in range(4):
                def f(t=t, s=s):
                    mvseq[blk] = A(f"ds_read_b128 {ar(blk*32+t*16+s*4)}, v{vKR+s} offset:{(blk%3)*8192+t*4096}")
                it.append(f)
        return it
    def slot_free(blk):
        return [lambda: A.wait_lg(mvseq[blk-3])] if blk >= 3 else []
    def qk(blk):
        it = [lambda: A.wait_lg(mvseq[blk])]
        for s in range(4):
            for t in range(2):
                for h in range(2):
                    d = vr(vS + blk*16 + h*8 + t*4)
                    it.append(f"{MF} {d}, {ar(blk*32+t*16+s*4)}, {vr(vQ+h*16+s*4)}, {d if s else 0}")
        return it
    def rmax(blk):
        it = []
        for k in range(4):
            for h in range(2):
                b = vS + blk*16 + h*8 + 2*k
                it.append(f"v_max3_f32 v{vMX+h}, v{vMX+h}, v{b}, v{b+1}")
        return it
    def site(name, which):
        A.wait_lg_all()
        A(f"s_cmp_eq_u32 s{sSPL}, {which}")
        A(f"s_cbranch_scc1 L_{name}")
        A.label(f"L_{name}_ret{which}")

    def kstage(blk, comp):
        for f in slot_free(blk): f()
        mix(A, comp, k_loads(blk))
    if siteQ[0] == 0: site("QB", 0)
    done_mv = 0
    for blk in range(1, siteQ[1] + 1):
        comp = []
        if blk >= 2: comp += k_move(blk - 2); done_mv = blk - 1
        kstage(blk, comp)
        if blk == 1:
            A("v_accvgpr_read_b32 v1, a254")
            A(f"buffer_load_dword a255, v1, {srd(sWP)}, 0 offen {w2f}")
        if blk == siteQ[0]: site("QB", 0)
    site("QB", 1)
    stamp_at(A, "qb1")
    nq = 0
    nm = 0
    for blk in range(siteQ[1] + 1, 8):
        comp = k_move(blk - 2); done_mv = blk - 1
        todo = []
        while nq < done_mv and len(todo) < 2: todo.append(nq); nq += 1
        for j in todo:
            comp += qk(j)
            if nm < j: comp += rmax(nm); nm += 1
        kstage(blk, comp)
    vseq = {}
    def v_load(blk, i):
        def f():
            A.wait_vm_n(DV - 1)
            if i % 4 == 0: A(f"s_mov_b32 s{sSO}, {blk*8192 + (i//4)*4096}")
            vseq[blk, i] = A(f"buffer_load_dwordx4 {vr(RING[blk%3]+4*i)}, v{vLIN}, {srd(sV)}, s{sSO} offen offset:{(i&3)*1024} {vf}")
        return f
    def v_loads(blk): return [v_load(blk, i) for i in range(8)]
    comp = k_move(6)
    while nq < 7:
        comp += qk(nq)
        while nm < nq: comp += rmax(nm); nm += 1
        nq += 1
    vl = v_loads(0)
    cut = min(max(DV, 1), 8)
    mix(A, comp, vl[:cut])
    comp = k_move(7) + rmax(6) + qk(7)
    mix(A, comp, vl[cut:])
    stamp_at(A, "kdone")
    comp = ["v_and_b32 v176, 15, v0", "v_lshrrev_b32 v177, 4, v0",
            "v_mul_u32_u24 v178, 80, v176",
            f"s_lshl_b32 s{sT0}, s3, 4",
            f"v_lshl_add_u32 v179, v177, 2, s{sT0}",
            f"v_add_u32 v178, {L_MX}, v178",
            "v_add_u32 v179, v178, v179"]
    comp += rmax(7)
    comp += [f"ds_write_b32 v179, v{vMX}", f"ds_write_b32 v179, v{vMX+1} offset:1280",
             lambda: A.wait_lg_all(), "s_barrier"]
    for h in range(2):
        for k in range(4):
            comp.append(f"ds_read_b128 {vr(224+h*16+k*4)}, v178 offset:{h*1280+k*16}")
    comp.append(lambda: A.wait_lg_all())
    for k in range(8):
        for h in range(2):
            b = 224 + h*16 + 2*k
            comp.append(f"v_max3_f32 v{vMX+h}, v{vMX+h}, v{b}, v{b+1}")
    for h in range(2): comp.append(f"v_mul_f32 v{vMX+h}, s{sSC}, v{vMX+h}")
    for c in comp:
        if callable(c): c()
        else: A(c)
    def softmax(blk):
        it = []
        for h in range(2):
            b = vS + blk*16 + h*8
            for k in range(8): it.append(f"v_fma_f32 v{b+k}, v{b+k}, s{sSC}, -v{vMX+h}")
            for k in range(8): it.append(f"v_exp_f32 v{b+k}, v{b+k}")
        for h in range(2):
            b = vS + blk*16 + h*8
            for k in range(4): it.append(f"v_cvt_pk_bf16_f32 v{vS+blk*8+h*4+k}, v{b+2*k}, v{b+2*k+1}")
        return it
    ones = [f"v_mov_b32 v{vT+k}, 0x3f803f80" for k in range(4)]
    def lsum(blk):
        return [f"{MF} {vr(vT+8+4*h)}, {vr(vT)}, {vr(vS+blk*8+h*4)}, {vr(vT+8+4*h) if blk else 0}" for h in range(2)]
    comp = list(ones)
    for blk in range(4):
        comp += softmax(blk)
        if blk: comp += lsum(blk-1)
    mix(A, comp, v_loads(1))
    comp = []
    for blk in range(4, 8): comp += softmax(blk) + lsum(blk-1)
    comp += lsum(7)
    mix(A, comp, v_loads(2))
    A("v_and_b32 v1, 15, v0"); A(f"s_lshl_b32 s{sT0}, s3, 2"); A(f"v_lshl_add_u32 v1, v1, 4, s{sT0}"); A(f"v_add_u32 v1, {L_LX}, v1")
    A(f"ds_write_b32 v1, v{vT+8}"); A(f"ds_write_b32 v1, v{vT+12} offset:256")
    stamp_at(A, "smdone")

    def pv(blk, waitfirst=True):
        it = [lambda: A.wait_vm(vseq[blk, 7])] if waitfirst else []
        R = RING[blk % 3]
        for q in range(4):
            tb = vT + (q & 1) * 8
            for p in range(4):
                it.append(f"v_perm_b32 v{tb+p}, v{R+(2*p+1)*4+q}, v{R+(2*p)*4+q}, s{sSELL}")
            for p in range(4):
                it.append(f"v_perm_b32 v{tb+4+p}, v{R+(2*p+1)*4+q}, v{R+(2*p)*4+q}, s{sSELH}")
            for jo in range(2):
                for h in range(2):
                    d = ar(aACC + h*32 + (2*q+jo)*4)
                    it.append(f"{MF} {d}, {vr(tb+4*jo)}, {vr(vS+blk*8+h*4)}, {d if blk else 0}")
        return it
    def run(comp):
        for c in comp:
            if callable(c): c()
            else: A(c)
    if siteO[0] == 2: site("OB", 0)
    run(pv(0))
    def stats_publish():
        it = [lambda: A.wait_lg_all(), "s_barrier",
              "v_and_b32 v1, 15, v0", "v_lshlrev_b32 v1, 4, v1", f"v_add_u32 v1, {L_LX}, v1",
              f"ds_read_b128 {vr(48)}, v1", f"ds_read_b128 {vr(52)}, v1 offset:256",
              lambda: A.wait_lg_all(),
              "v_add_f32 v48, v48, v49", "v_add_f32 v52, v52, v53", "v_add_f32 v50, v50, v51", "v_add_f32 v54, v54, v55",
              f"v_add_f32 v{vWQ}, v48, v50", f"v_add_f32 v{vX}, v52, v54",
              "v_and_b32 v1, 16, v0", "v_cmp_eq_u32 vcc, 0, v1",
              f"v_mov_b32 v50, s{sE1}", f"v_mov_b32 v51, s{sE1}",
              f"v_cndmask_b32 v48, v{vMX+1}, v{vMX}, vcc", f"v_cndmask_b32 v49, v{vX}, v{vWQ}, vcc",
              "v_and_b32 v1, 31, v0", "v_lshlrev_b32 v1, 4, v1",
              f"s_lshl_b32 s{sT0}, s{sPID}, 9", f"s_add_u32 s{sT0}, s{sT0}, {XS_OFF}"]
        return it
    statseq = {}
    for blk in range(3, 8):
        comp = pv(blk - 2)
        if blk == 3:
            comp = stats_publish() + comp
            def st():
                A("s_cmp_lg_u32 s3, 0"); A("s_cbranch_scc1 L_nostat")
                A.raw(f"    buffer_store_dwordx4 {vr(48)}, v1, {srd(sWS)}, s{sT0} offen {pubf}")
                A.raw("    s_nop 1")
                A.label("L_nostat")
            idx = len(stats_publish())
            comp.insert(idx, st)
        if blk == 6:
            comp = comp + tail_addr(A)
        vl = v_loads(blk)
        if blk == 7:
            def ldstat(h):
                def f():
                    if h == 0:
                        A("v_and_b32 v1, 15, v0"); A("v_lshlrev_b32 v1, 4, v1")
                        A(f"s_xor_b32 s{sT0}, s{sPID}, 1"); A(f"s_lshl_b32 s{sT0}, s{sT0}, 9"); A(f"s_add_u32 s{sT0}, s{sT0}, {XS_OFF}")
                    statseq[h] = A(f"buffer_load_dwordx4 {vr(72+4*h)}, v1, {srd(sWS)}, s{sT0} offen offset:{h*256} {ldf}")
                return f
            cut = min(max(DV, 1), 8)
            mix(A, comp, [ldstat(0), ldstat(1)] + vl[:cut])
            comp = [lambda: A.wait_vm(statseq[1])] + stat_scales(A) + pv(6)
            mix(A, comp, vl[cut:])
        else:
            mix(A, comp, vl)
        if blk in siteO:
            site("OB", siteO.index(blk))
    stamp_at(A, "prepv7")
    p7 = pv(7)
    run(p7[:1]); stamp_at(A, "v7land"); run(p7[1:])
    tail(A, pubf, ldf, xf, xlf, stamp_at)
    if stamps:
        A(f"s_lshl_b32 s{sT0}, s2, 2"); A(f"s_add_u32 s{sT0}, s{sT0}, s3"); A(f"s_lshl_b32 s{sT0}, s{sT0}, 6")
        A(f"s_add_u32 s{sT0}, s{sT0}, {STAMP_OFF}")
        A(f"s_add_u32 s18, s18, s{sT0}"); A("s_addc_u32 s19, s19, 0")
        A("v_mov_b32 v1, 0")
        for j in range(4):
            for k in range(4): A(f"v_mov_b32 v{4+k}, s{sSTAMP+4*j+k}")
            A(f"global_store_dwordx4 v1, v[4:7], s[18:19] offset:{16*j}")
    A.label("L_end")
    A("s_endpgm")

    B = Asm()
    B.label("L_QB")
    stamp_at(B, "qbs")
    qs = {}
    def q_load(u, i):
        def f():
            B.wait_vm_n(DQ - 1)
            qs[u, i] = wq_load(B, u, i, w2f)
        return f
    def q_cons(u):
        it = [lambda: B.wait_vm(qs[u, 7] if u else qs[1, 0])]
        R = WQR[u % 3]
        for q in range(4):
            tb = vT + (q & 1) * 8
            for p in range(4): it.append(f"v_perm_b32 v{tb+p}, v{R+(2*p+1)*4+q}, v{R+(2*p)*4+q}, s{sSELL}")
            for p in range(4): it.append(f"v_perm_b32 v{tb+4+p}, v{R+(2*p+1)*4+q}, v{R+(2*p)*4+q}, s{sSELH}")
            for jo in range(2):
                d = vr(vQA + (2*q+jo)*4)
                it.append(f"{MF} {d}, {vr(tb+4*jo)}, {vr(vXO_+4*u)}, {d if u else 0}")
        return it
    for u in (1, 2):
        for i in range(8): q_load(u, i)()
    mix(B, q_cons(0), [])
    for u in range(1, 9):
        mix(B, q_cons(u), [q_load(u+2, i) for i in range(8)] if u + 2 <= 8 else [])
    stamp_at(B, "qbl")
    B(f"s_lshl_b32 s{sT0}, s3, 13"); B(f"s_add_u32 s{sT0}, s{sT0}, {L_QR}"); B(f"v_add_u32 v1, s{sT0}, v{vLIN}")
    for j in range(8): B(f"ds_write_b128 v1, {vr(vQA+4*j)} offset:{j*1024}")
    B(f"v_add_u32 v1, {L_QR}, v{vLIN}")
    B.wait_lg_all(); B("s_barrier")
    rs = {}
    for h in range(2):
        for j in range(8):
            for k in range(2):
                rs[h, j, k] = B(f"ds_read_b128 {vr(vS+h*64+j*8+k*4)}, v1 offset:{(h+2*k)*8192+j*1024}")
    for h in range(2):
        for p in range(4):
            B.wait_lg(rs[h, 2*p+1, 1])
            for jo in range(2):
                b = vS + h*64 + (2*p+jo)*8
                for r in range(4): B(f"v_add_f32 v{b+r}, v{b+r}, v{b+4+r}")
            for r in range(4):
                B(f"v_cvt_pk_bf16_f32 v{vQ+h*16+r*4+p}, v{vS+h*64+(2*p)*8+r}, v{vS+h*64+(2*p+1)*8+r}")
    stamp_at(B, "qbe")
    B(f"s_cmp_eq_u32 s{sSPL}, 0"); B("s_cbranch_scc1 L_QB_ret0"); B("s_branch L_QB_ret1")

    C = Asm()
    C.label("L_OB")
    stamp_at(C, "obs")
    os_ = {}
    def o_load(s, i):
        def f():
            C.wait_vm_n(DQ - 1)
            h, r = s >> 2, s & 3
            off = (h*128 + r*8 + i) * 1152
            so = off // 4096 * 4096
            C(f"s_mov_b32 s{sSO}, {so}")
            os_[s, i] = C(f"buffer_load_dwordx3 {vr(WOS[s%2]+4*i, 3)}, v{vWO}, {srd(sWO)}, s{sSO} offen offset:{off-so} {w2f}")
        return f
    def o_cons(s):
        it = [lambda: C.wait_vm(os_[s, 7])]
        R = WOS[s % 2]
        for q in range(3):
            tb = vT + (q & 1) * 8
            for p in range(4): it.append(f"v_perm_b32 v{tb+p}, v{R+(2*p+1)*4+q}, v{R+(2*p)*4+q}, s{sSELL}")
            for p in range(4): it.append(f"v_perm_b32 v{tb+4+p}, v{R+(2*p+1)*4+q}, v{R+(2*p)*4+q}, s{sSELH}")
            for k in range(8): it.append(f"v_accvgpr_write_b32 a{s*24+q*8+k}, v{tb+k}")
        return it
    for s in (0, 1):
        for i in range(8): o_load(s, i)()
    for s in range(8):
        mix(C, o_cons(s), [])
        if s + 2 <= 7:
            for i in range(8): o_load(s+2, i)()
    stamp_at(C, "obe")
    C(f"s_cmp_eq_u32 s{sSPL}, 0"); C("s_cbranch_scc1 L_OB_ret0"); C("s_branch L_OB_ret1")

    D = Asm()
    D.label("L_statpoll")
    D(f"s_mov_b32 s{sCNT}, {POLL_MAX}")
    D.label("L_statloop")
    for h in range(2): D(f"buffer_load_dwordx4 {vr(72+4*h)}, v1, {srd(sWS)}, s{sT0} offen offset:{h*256} {ldf}")
    D("s_waitcnt vmcnt(0)")
    for c in stat_check(): D(c)
    D("s_cbranch_scc1 L_statok")
    D(f"s_sub_u32 s{sCNT}, s{sCNT}, 1"); D(f"s_cmp_lg_u32 s{sCNT}, 0"); D("s_cbranch_scc1 L_statloop")
    D("s_endpgm")

    out = A.text() + B.text() + C.text() + D.text() + "L_codeend:\n" + "    s_nop 0\n" * 64
    out += f""".section .rodata,"a"
.p2align 6
.amdhsa_kernel {KNAME}
  .amdhsa_next_free_vgpr 512
  .amdhsa_next_free_sgpr 102
  .amdhsa_accum_offset 256
  .amdhsa_group_segment_fixed_size 0
  .amdhsa_kernarg_size 64
  .amdhsa_user_sgpr_count 2
  .amdhsa_user_sgpr_kernarg_segment_ptr 1
  .amdhsa_system_sgpr_workgroup_id_x 1
.end_amdhsa_kernel
"""
    return out

POLL_MAX = 200000
vPUB, vOUT, vGAT, vOCW, vOCR, vBXW, vTAG = 56, 62, 65, 66, 67, 68, 69
sPB, sGA = 4, 6

def tail_addr(A):
    it = []
    a = it.append
    a(f"s_mul_i32 s{sT0}, s3, 384")
    a(f"v_add_u32 v80, s{sT0}, v0")
    a(f"s_movk_i32 s{sT1}, 17280")
    for gm in range(6):
        a(f"v_add_u32 v81, {gm*64}, v80")
        a("v_mul_u32_u24 v82, 911, v81"); a("v_lshrrev_b32 v82, 16, v82")
        a(f"v_mul_u32_u24 v82, s{sT1}, v82"); a(f"v_lshl_add_u32 v{vPUB+gm}, v81, 4, v82")
    a(f"s_lshl_b32 s{sT0}, s{sB}, 1"); a(f"s_add_u32 s{sT0}, s{sT0}, s{sSPL}")
    a(f"s_mul_i32 s{sPB}, s{sT0}, {256*1152}"); a(f"s_add_u32 s{sPB}, s{sPB}, {PY_OFF}")
    a(f"s_mul_i32 s{sT1}, s{sKVH}, {16*1152}"); a(f"s_add_u32 s12, s{sPB}, s{sT1}")
    a(f"s_mul_i32 s{sT1}, s{sKVH}, 1152"); a(f"s_add_u32 s{sPB}, s{sPB}, s{sT1}")
    a("s_mov_b32 s13, s3"); a("s_add_u32 s14, s3, 4"); a("s_cmp_eq_u32 s3, 0"); a("s_cselect_b32 s15, 8, s3")
    for k in range(3):
        a(f"s_lshl_b32 s{sT1}, s{13+k}, 7"); a(f"s_add_u32 s{sGA+2*k}, s12, s{sT1}"); a(f"s_add_u32 s{sGA+2*k+1}, s{sGA+2*k}, 9216")
    a("v_lshrrev_b32 v80, 3, v0"); a("v_mul_u32_u24 v80, 1152, v80"); a("v_and_b32 v81, 7, v0"); a(f"v_lshl_add_u32 v{vGAT}, v81, 4, v80")
    a("v_lshrrev_b32 v87, 4, v0")
    a(f"s_mul_i32 s{sT0}, s{sSPL}, 288"); a(f"v_add_u32 v87, s{sT0}, v87")
    a(f"s_mul_i32 s12, s{sKVH}, 72")
    for k in range(3):
        a(f"s_lshl_b32 s{sT0}, s{13+k}, 3"); a(f"s_add_u32 s{sT0}, s{sT0}, s12")
        a(f"v_add_u32 v80, s{sT0}, v81")
        a("v_lshrrev_b32 v82, 6, v80")
        a("v_mul_u32_u24 v83, 43, v82"); a("v_lshrrev_b32 v83, 8, v83")
        a("v_mul_u32_u24 v84, 72, v83")
        a("v_lshl_add_u32 v84, v82, 2, v84")
        a("v_bfe_u32 v85, v80, 4, 2"); a("v_mul_u32_u24 v85, 24, v85")
        a("v_add3_u32 v84, v84, v85, v87")
        a("v_and_b32 v85, 15, v80"); a("v_mul_u32_u24 v85, 1152, v85")
        a(f"v_lshl_add_u32 v{vOUT+k}, v84, 1, v85")
    a(f"s_mul_i32 s16, s{sB}, 18432")
    a(f"s_lshl_b32 s{sT0}, s3, 14"); a(f"s_add_u32 s{sT0}, s{sT0}, {L_OC}"); a(f"v_add_u32 v{vOCW}, s{sT0}, v{vLIN}")
    a(f"s_lshl_b32 s{sT0}, s3, 11"); a(f"s_add_u32 s{sT0}, s{sT0}, {L_OC}"); a(f"v_add_u32 v{vOCR}, s{sT0}, v{vLIN}")
    a(f"s_lshl_b32 s{sT0}, s3, 2"); a(f"v_add_u32 v{vBXW}, s{sT0}, v{vLIN}")
    a(f"v_mov_b32 v{vTAG}, s{sTAG}")
    a(f"s_lshl_b32 s{sXOo}, s{sPID}, 14"); a(f"s_lshl_b32 s{sT0}, s3, 12"); a(f"s_add_u32 s{sXOo}, s{sXOo}, s{sT0}")
    a(f"s_xor_b32 s{sXOp}, s{sXOo}, {1<<14}")
    a(f"s_add_u32 s{sXOo}, s{sXOo}, {XO_OFF}"); a(f"s_add_u32 s{sXOp}, s{sXOp}, {XO_OFF}")
    return it

def stat_check():
    return [f"v_xor_b32 v80, s{sE1}, v74", f"v_xor_b32 v81, s{sE1}, v75", f"v_xor_b32 v82, s{sE1}, v78", f"v_xor_b32 v83, s{sE1}, v79",
            "v_or3_b32 v80, v80, v81, v82", "v_or_b32 v80, v80, v83", "v_cmp_eq_u32 vcc, 0, v80", "s_cmp_eq_u64 vcc, -1"]

def stat_scales(A):
    it = stat_check()
    def br():
        A("s_cbranch_scc0 L_statpoll")
        A.label("L_statok")
    it.append(br)
    for h in range(2):
        it += [f"v_max_f32 v{80+h}, v{vMX+h}, v{72+4*h}"]
    for h in range(2):
        it += [f"v_sub_f32 v{82+h}, v{vMX+h}, v{80+h}", f"v_sub_f32 v{84+h}, v{72+4*h}, v{80+h}"]
    for h in range(2):
        it += [f"v_exp_f32 v{82+h}, v{82+h}", f"v_exp_f32 v{84+h}, v{84+h}"]
    for h in range(2):
        it += [f"v_mul_f32 v{84+h}, v{84+h}, v{73+4*h}"]
    for h in range(2):
        it += [f"v_fma_f32 v{84+h}, v{82+h}, v{vWQ+h}, v{84+h}"]
    for h in range(2):
        it += [f"v_rcp_f32 v{84+h}, v{84+h}"]
    for h in range(2):
        it += [f"v_mul_f32 v{vWQ+h}, v{82+h}, v{84+h}"]
    return it

def poll(A, name, loads, base, n):
    A(f"s_mov_b32 s{sCNT}, {POLL_MAX}")
    A.label(name)
    for l in loads: A(l)
    A("s_waitcnt vmcnt(0)")
    A.vm_done = A.vm - 1
    for k in range(n): A(f"v_xor_b32 v{base+k}, s{sTAG}, v{base+k}")
    A(f"v_or3_b32 v1, v{base}, v{base+1}, v{base+2}")
    A(f"v_or3_b32 v70, v{base+3}, v{base+4}, v{base+5}")
    k = 6; t = 0
    while k < n:
        r = ("v1", "v70")[t]; t ^= 1
        if k + 1 < n: A(f"v_or3_b32 {r}, {r}, v{base+k}, v{base+k+1}"); k += 2
        else: A(f"v_or_b32 {r}, {r}, v{base+k}"); k += 1
    A("v_or_b32 v1, v1, v70"); A("v_and_b32 v1, 0xfff, v1")
    A("v_cmp_eq_u32 vcc, 0, v1"); A("s_cmp_eq_u64 vcc, -1")
    A(f"s_cbranch_scc1 {name}_ok")
    A(f"s_sub_u32 s{sCNT}, s{sCNT}, 1"); A(f"s_cmp_lg_u32 s{sCNT}, 0"); A(f"s_cbranch_scc1 {name}")
    A("s_endpgm")
    A.label(f"{name}_ok")

def tail(A, pubf, ldf, xf, xlf, stamp_at):
    for k in range(16): A(f"ds_write_b128 v{vOCW}, {ar(aACC+4*k)} offset:{k*1024}")
    A.wait_lg_all(); stamp_at(A, "ocw"); A("s_barrier"); stamp_at(A, "ocb")
    rs = {}
    for x in range(4):
        for src in range(4):
            rs[x, src] = A(f"ds_read_b128 {vr(192+src*16+x*4)}, v{vOCR} offset:{src*16384+(x>>1)*8192+(x&1)*1024}")
    for x in range(4):
        A.wait_lg(rs[x, 3])
        b = 192 + x*4
        for r in range(4): A(f"v_add_f32 v{b+r}, v{b+r}, v{b+16+r}")
        for r in range(4): A(f"v_add_f32 v{b+32+r}, v{b+32+r}, v{b+48+r}")
        for r in range(4): A(f"v_add_f32 v{b+r}, v{b+r}, v{b+32+r}")
        for r in range(4): A(f"v_mul_f32 v{b+r}, v{b+r}, v{vWQ+(x>>1)}")
        for r in range(4): A(f"v_and_or_b32 v{32+x*4+r}, v{b+r}, s{sMASK}, v{vTAG}")
        A(f"buffer_store_dwordx4 {vr(32+x*4)}, v{vLIN}, {srd(sWS)}, s{sXOo} offen offset:{x*1024} {xf}")
    for k in range(16): A(f"v_and_b32 v{16+k}, s{sMASK}, v{192+k}")
    stamp_at(A, "xst")
    poll(A, "L_xp", [f"buffer_load_dwordx4 {vr(112+4*x)}, v{vLIN}, {srd(sWS)}, s{sXOp} offen offset:{x*1024} {xlf}" for x in range(4)], 112, 16)
    stamp_at(A, "cntx"); stamp_at(A, "xok")
    for h in range(2):
        for r in range(4):
            A(f"v_add_f32 v{16+h*8+r}, v{16+h*8+r}, v{112+h*8+r}")
            A(f"v_add_f32 v{20+h*8+r}, v{20+h*8+r}, v{116+h*8+r}")
            A(f"v_cvt_pk_bf16_f32 v{128+h*4+r}, v{16+h*8+r}, v{20+h*8+r}")
            A(f"ds_write_b32 v{vBXW}, v{128+h*4+r} offset:{L_BX+(h*4+r)*1024}")
    A.wait_lg_all(); A("s_barrier")
    stamp_at(A, "bxb")
    bs = [A(f"ds_read_b128 {vr(136+4*s)}, v{vLIN} offset:{L_BX+s*1024}") for s in range(8)]
    for s in range(8):
        A.wait_lg(bs[s])
        for j in range(6):
            d = vr(168 + 4*j)
            A(f"{MF} {d}, {ar(s*24+j*4)}, {vr(136+4*s)}, {d if s else 0}")
    for gm in range(6):
        for x in range(4):
            e = gm*4 + x
            A(f"v_and_or_b32 v{192+e}, v{168+(e%6)*4+e//6}, s{sMASK}, v{vTAG}")
        A(f"buffer_store_dwordx4 {vr(192+gm*4)}, v{vPUB+gm}, {srd(sPUB)}, s{sPB} offen {pubf}")
    stamp_at(A, "pub")
    poll(A, "L_gp", [f"buffer_load_dwordx4 {vr(216+4*k)}, v{vGAT}, {srd(sWS)}, s{sGA+k} offen {ldf}" for k in range(6)], 216, 24)
    stamp_at(A, "cntg"); stamp_at(A, "gok")
    for k in range(3):
        b = 216 + 8*k
        for x in range(4): A(f"v_add_f32 v{b+x}, v{b+x}, v{b+4+x}")
    for k in range(3):
        b = 216 + 8*k
        A(f"v_permlane32_swap_b32 v{b}, v{b+2}"); A(f"v_permlane32_swap_b32 v{b+1}, v{b+3}")
    for k in range(3):
        b = 216 + 8*k
        A(f"v_add_f32 v{b}, v{b}, v{b+2}"); A(f"v_add_f32 v{b+1}, v{b+1}, v{b+3}")
    for k in range(3):
        b = 216 + 8*k
        A(f"v_permlane16_swap_b32 v{b}, v{b+1}")
    for k in range(3):
        b = 216 + 8*k
        A(f"v_add_f32 v{b}, v{b}, v{b+1}")
    for k in range(3):
        b = 216 + 8*k
        A(f"v_add_f32_dpp v{b+1}, v{b}, v{b} row_ror:8 row_mask:0xf bank_mask:0xf")
    for k in range(3):
        b = 216 + 8*k
        A(f"v_cvt_pk_bf16_f32 v{b}, v{b+1}, v{b+1}")
        A(f"buffer_store_short v{b}, v{vOUT+k}, {srd(sOUT)}, s16 offen")
    A(f"s_or_b32 s{sT0}, s{sKVH}, s{sSPL}"); A(f"s_or_b32 s{sT0}, s{sT0}, s3"); A(f"s_cmp_lg_u32 s{sT0}, 0"); A("s_cbranch_scc1 L_noep")
    A(f"v_mov_b32 v1, s{sE1}"); A(f"s_lshl_b32 s{sT0}, s{sB}, 8"); A("v_mov_b32 v2, 0")
    A(f"buffer_store_dword v1, v2, {srd(sWS)}, s{sT0} offen")
    A.label("L_noep")
    stamp_at(A, "end")

if __name__ == "__main__":
    import json
    kw = json.loads(sys.argv[2]) if len(sys.argv) > 2 else {}
    open(sys.argv[1], "w").write(gen(**kw))
```

```python
import sys, math, struct
from asmlib import Asm

KNAME = "standalone__sliding_block_cached__sampling_kernel"
HDR = open('standalone__sliding_block_cached__sampling.s.ref').read().split('; Override')[0]

EP_OFF = 0
XS_OFF = 0x10000
XO_OFF = 0x100000
PY_OFF = 0x800000
WS_USED = 0x1000000
STAMP_OFF = 512 << 20
L_BX = 0
L_OC = 8192
L_KW = 24576
L_QR = 98304
L_MX = 131072
L_LX = L_MX + 512
LDS_BYTES = 132096
POLL_MAX = 200000

def f32(x): return struct.unpack('<I', struct.pack('<f', x))[0]
SCALE = f32(1.4426950408889634 / math.sqrt(128.0))

sK, sV, sWQ, sWO, sX, sWS, sOUT, sWP, sPUB = 20, 24, 28, 32, 36, 40, 44, 68, 72
sXL, sXG = 28, 36
sSELL, sSELH, sSC, sTAG, sTAB, sSO, sLK, sKVH, sSPL, sB = 48, 49, 50, 51, 52, 61, 62, 63, 64, 65
sE1, sMASK = 66, 67
sPID, sXOo, sXOp, sNX, sXCC, sCNT, sT0, sT1, sSLOT = 76, 77, 78, 79, 80, 82, 83, 84, 85
sSTAMP = 86
sPB, sGA = 4, 6
def srd(n): return f"s[{n}:{n+3}]"
vKA, vKR, vLIN, vWQ, vX, vWO, vMX = 2, 6, 10, 11, 12, 13, 14
vQ = 16
vS = 48
vT = 176
RING = [192, 224, 16]
vXO_ = 48
vQA = 84
WQR = [192, 224, 116]
WOS = [112, 144, 192]
aACC = 192
vPUB, vOUT, vGAT, vOCW, vOCR, vBXW, vTAG = 56, 62, 65, 66, 67, 68, 69

def vr(b, n=4): return f"v[{b}:{b+n-1}]"
def ar(b, n=4): return f"a[{b}:{b+n-1}]"
MF = "v_mfma_f32_16x16x32_bf16"

def cost(it):
    if callable(it): return 1
    if it.startswith('v_mfma'): return 12
    if it.startswith('v_exp') or it.startswith('v_rcp'): return 8
    return 4

def mix(A, comp, loads):
    tot = sum(cost(c) for c in comp)
    n = len(loads); k = 0; acc = 0
    for c in comp:
        while k < n and acc >= tot * k / max(n, 1):
            loads[k](); k += 1
        if callable(c): c()
        else: A(c)
        acc += cost(c)
    while k < n:
        loads[k](); k += 1

def perms(R, q, tb):
    it = []
    for p in range(4): it.append(f"v_perm_b32 v{tb+p}, v{R+(2*p+1)*4+q}, v{R+(2*p)*4+q}, s{sSELL}")
    for p in range(4): it.append(f"v_perm_b32 v{tb+4+p}, v{R+(2*p+1)*4+q}, v{R+(2*p)*4+q}, s{sSELH}")
    return it

def gen(DK=(16,)*8, DV=(8,)*8, DQ=16, stamps=False, kf="nt", vf="nt", w1f="", w2f="", pubf="sc1", ldf="sc1",
        codepf=True, wsbase=0, pretouch=1, ptf="", local=True, promote=False, sleepx=0, sleepg=0, tlbwarm=True, noOB=False, noQB=False, exp=""):
    if isinstance(DK, int): DK = (DK,) * 8
    if isinstance(DV, int): DV = (DV,) * 8
    A = Asm()
    def stamp_at(B, name):
        if not stamps or name not in stamps: return
        i = stamps.index(name) + 1
        if name.startswith("cnt") and not name.startswith("cnt_clk"):
            B(f"s_sub_u32 s{sSTAMP+2*i}, {POLL_MAX}, s{sCNT}"); B(f"s_mov_b32 s{sSTAMP+2*i+1}, 0")
            return
        B.wait_lg_all()
        B(f"{'s_memtime' if name.startswith('cnt_clk') else 's_memrealtime'} s[{sSTAMP+2*i}:{sSTAMP+2*i+1}]")
        B.wait_lg_all()
    def run(comp, B=A):
        for c in comp:
            if callable(c): c()
            else: B(c)

    A.raw(HDR.rstrip())
    A.raw(f"; @launch grid=(256,1,1) block=(256,1,1) lds={LDS_BYTES}")
    A.raw('.amdgcn_target "amdgcn-amd-amdhsa--gfx950"')
    A.raw(".text"); A.raw(f".globl {KNAME}"); A.raw(".p2align 8"); A.raw(f".type {KNAME},@function"); A.raw(f"{KNAME}:")
    A("s_cmp_ge_u32 s2, 256"); A("s_cbranch_scc1 L_end")
    A("s_load_dwordx8 s[4:11], s[0:1], 0")
    A("s_load_dwordx8 s[12:19], s[0:1], 32")
    if stamps: A(f"s_memrealtime s[{sSTAMP}:{sSTAMP+1}]")
    A("s_getpc_b64 s[100:101]")
    A.raw("L_pc:")
    A("v_lshrrev_b32 v1, 6, v0")
    A("v_lshlrev_b32 v16, 7, v0")
    A("v_readfirstlane_b32 s3, v1")
    if codepf:
        A("v_min_u32 v16, L_codeend-L_pc-4, v16")
        A("global_load_dword a255, v16, s[100:101]")
    A("v_mov_b32 v18, v0")
    A("v_and_b32 v0, 63, v0")
    A(f"s_and_b32 s61, s2, 7"); A(f"s_lshr_b32 s{sSLOT}, s2, 3")
    A(f"s_and_b32 s{sT0}, s{sSLOT}, 1"); A(f"s_lshl_b32 s61, s61, 1"); A(f"s_add_u32 s{sKVH}, s61, s{sT0}")
    A(f"s_lshr_b32 s{sSPL}, s{sSLOT}, 1"); A(f"s_and_b32 s{sSPL}, s{sSPL}, 1")
    A(f"s_lshr_b32 s{sB}, s{sSLOT}, 2")
    A("v_lshrrev_b32 v20, 4, v0")
    A("v_and_b32 v21, 15, v0")
    A(f"v_lshlrev_b32 v{vLIN}, 4, v0")
    A("v_xor_b32 v22, v21, v20"); A("v_lshlrev_b32 v22, 4, v22"); A(f"v_lshl_add_u32 v{vKA}, v20, 8, v22")
    for i in range(1, 4): A(f"v_xor_b32 v{vKA+i}, {i<<6}, v{vKA}")
    A("v_lshlrev_b32 v22, 4, v21"); A(f"v_lshl_add_u32 v{vWQ}, v20, 16, v22")
    A("v_mul_u32_u24 v22, 1152, v21"); A(f"v_lshl_add_u32 v{vX}, v20, 4, v22")
    A(f"s_mul_i32 s{sLK}, s3, {L_KW}")
    A("v_lshrrev_b32 v22, 3, v18"); A(f"s_lshl_b32 s{sT0}, s{sB}, 5"); A(f"v_add_u32 v22, s{sT0}, v22"); A("v_mul_u32_u24 v22, 1152, v22")
    A("v_and_b32 v23, 7, v18"); A(f"s_lshl_b32 s{sT0}, s{sSPL}, 9"); A("v_lshl_add_u32 v22, v23, 7, v22"); A(f"v_add_u32 v22, s{sT0}, v22")
    A("v_cmp_gt_u32 vcc, 5, v23"); A("v_mov_b32 v23, 0x7ffffff0"); A("v_cndmask_b32 v19, v23, v22, vcc")
    A(f"s_lshr_b32 s{sT0}, s{sSLOT}, 1"); A(f"s_cmp_ge_u32 s{sT0}, 9"); A(f"s_cselect_b32 s{sT1}, 9, 0"); A(f"s_sub_u32 s{sT0}, s{sT0}, s{sT1}")
    for u in range(9):
        A(f"s_lshl_b32 s{sTAB+u}, s{sT0}, 18")
        if u < 8:
            A(f"s_add_u32 s{sT0}, s{sT0}, 1"); A(f"s_cmp_ge_u32 s{sT0}, 9"); A(f"s_cselect_b32 s{sT0}, 0, s{sT0}")
    A(f"s_lshl_b32 s{sPID}, s{sB}, 4"); A(f"s_add_u32 s{sPID}, s{sPID}, s{sKVH}")
    A(f"s_lshl_b32 s{sT0}, s{sPID}, 21"); A(f"s_add_u32 s{sT0}, s{sT0}, {6144*256}")
    A(f"s_lshl_b32 s{sT1}, s{sSPL}, 18"); A(f"s_add_u32 s{sT0}, s{sT0}, s{sT1}")
    A(f"s_lshl_b32 s{sT1}, s3, 16"); A(f"s_add_u32 s{sT0}, s{sT0}, s{sT1}")
    A(f"s_lshl_b32 s{sPID}, s{sPID}, 1"); A(f"s_add_u32 s{sPID}, s{sPID}, s{sSPL}")
    A("s_waitcnt lgkmcnt(0)")
    def mksrd(n, p, off, size):
        if off is None or off == 0:
            A(f"s_mov_b32 s{n}, s{p}"); A(f"s_mov_b32 s{n+1}, s{p+1}")
        else:
            A(f"s_add_u32 s{n}, s{p}, {off}"); A(f"s_addc_u32 s{n+1}, s{p+1}, 0")
        A(f"s_mov_b32 s{n+2}, {size}"); A(f"s_mov_b32 s{n+3}, 0x20000")
    mksrd(sK, 6, f"s{sT0}", 65536); mksrd(sV, 8, f"s{sT0}", 65536)
    kseq = {}
    def k_load(B, blk, i, D, dyn=False):
        def f():
            B.wait_vm_n(D - 1)
            if i % 4 == 0:
                if dyn: B(f"s_add_u32 s{sSO}, s{sNX}, {(i//4)*4096}")
                else: B(f"s_mov_b32 s{sSO}, {blk*8192 + (i//4)*4096}")
                B(f"s_add_u32 m0, s{sLK}, {(blk%3)*8192 + (i//4)*4096}")
            q = B(f"buffer_load_dwordx4 v{vKA+(i&3)}, {srd(sK)}, s{sSO} offen offset:{(i&3)*1024} {kf} lds")
            if not dyn: kseq[blk, i] = q
        return f
    def k_loads(blk): return [k_load(A, blk, i, DK[blk]) for i in range(8)]
    A(f"s_and_b32 s{sT0}, s3, 1"); A(f"s_lshl_b32 s{sT1}, s{sKVH}, 1"); A(f"s_add_u32 s{sT0}, s{sT0}, s{sT1}"); A(f"s_lshl_b32 s{sT0}, s{sT0}, 8")
    A(f"s_lshr_b32 s{sT1}, s3, 1"); A(f"s_mul_i32 s61, s{sT1}, {288*8192}"); A(f"s_add_u32 s{sT0}, s{sT0}, s61")
    mksrd(sWQ, 10, f"s{sT0}", 287*8192+256)
    def wq_load(B, u, i, fl):
        B(f"s_add_u32 s{sSO}, s{sTAB+u}, {i*8192}")
        return B(f"buffer_load_dwordx4 {vr(WQR[u%3]+4*i)}, v{vWQ}, {srd(sWQ)}, s{sSO} offen {fl}")
    for i in range(8): wq_load(A, 0, i, w1f)
    A(f"s_mul_i32 s{sT0}, s{sB}, 18432"); A(f"s_mul_i32 s{sT1}, s{sT1}, 576"); A(f"s_add_u32 s{sT0}, s{sT0}, s{sT1}")
    mksrd(sX, 4, f"s{sT0}", 15*1152+576)
    A(f"s_mul_i32 s{sT0}, s{sKVH}, {256*1152}")
    mksrd(sWP, 12, f"s{sT0}", 256*1152)
    A(f"buffer_load_dword a255, v19, {srd(sWP)}, 0 offen {w1f}")
    if promote: A("v_accvgpr_write_b32 a254, v19")
    mksrd(sOUT, 14, None, 8*16*576*2)
    if tlbwarm:
        A("v_mov_b32 v17, 0")
        A(f"buffer_load_dword a255, v17, {srd(sV)}, 0 offen {vf}")
        A(f"buffer_load_dword a255, v17, {srd(sOUT)}, 0 offen")
    for u in range(9):
        A(f"s_lshr_b32 s{sSO}, s{sTAB+u}, 12")
        A(f"buffer_load_dwordx4 {vr(vXO_+4*u)}, v{vX}, {srd(sX)}, s{sSO} offen")
    for i in range(8): k_load(A, 0, i, 63)()
    A(f"s_mul_i32 s{sT1}, s{sSPL}, 576"); A(f"s_add_u32 s{sT0}, s{sT0}, s{sT1}")
    A(f"s_mul_i32 s{sT1}, s3, 192"); A(f"s_add_u32 s{sT0}, s{sT0}, s{sT1}")
    mksrd(sWO, 12, f"s{sT0}", 255*1152+192)
    mksrd(sWS, 18, wsbase, WS_USED); mksrd(sPUB, 18, wsbase, WS_USED)
    A("s_cmp_eq_u32 s3, 3"); A(f"s_cselect_b32 s{sWO+2}, 0, s{sWO+2}")
    if noOB: A(f"s_mov_b32 s{sWO+2}, 0")
    if noQB: A(f"s_mov_b32 s{sWQ+2}, 0")
    A(f"s_lshl_b32 s{sT0}, s{sB}, 8"); A(f"s_load_dword s{sE1}, s[{sWS}:{sWS+1}], s{sT0}")
    A(f"s_mov_b32 s{sSELL}, 0x05040100"); A(f"s_mov_b32 s{sSELH}, 0x07060302"); A(f"s_mov_b32 s{sSC}, {SCALE:#x}")
    A(f"s_mov_b32 s{sMASK}, 0xfffff000")
    A(f"s_getreg_b32 s{sXCC}, hwreg(HW_REG_XCC_ID, 0, 4)")
    A("v_mul_u32_u24 v22, 36864, v20"); A("v_mul_u32_u24 v23, 12, v21"); A(f"v_add_u32 v{vWO}, v22, v23")
    A("v_and_b32 v22, 3, v21"); A("v_lshlrev_b32 v22, 2, v22"); A("v_lshrrev_b32 v23, 2, v21"); A("v_add_u32 v22, v22, v23")
    A("v_lshlrev_b32 v23, 2, v20"); A("v_xor_b32 v23, v23, v22"); A("v_lshlrev_b32 v23, 4, v23"); A("v_lshl_add_u32 v23, v22, 8, v23")
    A(f"v_add_u32 v{vKR}, s{sLK}, v23")
    for s in range(1, 4): A(f"v_xor_b32 v{vKR+s}, {s<<4}, v{vKR}")
    A(f"v_mov_b32 v{vMX}, 0xff800000"); A(f"v_mov_b32 v{vMX+1}, 0xff800000")

    mvseq = {}
    def k_move(blk):
        it = [lambda: A.wait_vm(kseq[blk, 7])]
        for t in range(2):
            for s in range(4):
                def f(t=t, s=s):
                    mvseq[blk] = A(f"ds_read_b128 {ar(blk*32+t*16+s*4)}, v{vKR+s} offset:{(blk%3)*8192+t*4096}")
                it.append(f)
        return it
    def qk(blk):
        it = [lambda: A.wait_lg(mvseq[blk])]
        for s in range(4):
            for t in range(2):
                for h in range(2):
                    d = vr(vS + blk*16 + h*8 + t*4)
                    it.append(f"{MF} {d}, {ar(blk*32+t*16+s*4)}, {vr(vQ+h*16+s*4)}, {d if s else 0}")
        return it
    def rmax(blk):
        it = []
        for k in range(4):
            for h in range(2):
                b = vS + blk*16 + h*8 + 2*k
                it.append(f"v_max3_f32 v{vMX+h}, v{vMX+h}, v{b}, v{b+1}")
        return it
    def site(name, which, blk, loads):
        A.wait_lg_all()
        A(f"s_mov_b32 s{sNX}, {blk*8192}")
        A(f"s_cmp_eq_u32 s{sSPL}, {which}")
        A(f"s_cbranch_scc1 L_{name}")
        for f in loads: f()
        A.vm_done = min(A.vm_done, A.vm - 9)
        A.label(f"L_{name}_ret{which}")
    def do_pretouch():
        A(f"s_lshl_b32 s{sT0}, s3, 6"); A(f"v_add_u32 v{vT}, s{sT0}, v0")
        A(f"v_lshlrev_b32 v{vT+1}, 7, v{vT}")
        A(f"v_mov_b32 v{vT+2}, 0x7ffffff0")
        A(f"v_cmp_gt_u32 vcc, 128, v{vT}")
        A(f"s_lshl_b32 s{sT0}, s{sPID}, 14"); A(f"s_add_u32 s{sT0}, s{sT0}, {XO_OFF}")
        A(f"v_cndmask_b32 v{vT+1}, v{vT+2}, v{vT+1}, vcc")
        A(f"buffer_load_dword a255, v{vT+1}, {srd(sWS)}, s{sT0} offen {ptf}")
        A(f"v_mul_u32_u24 v{vT+3}, 7282, v{vT}"); A(f"v_lshrrev_b32 v{vT+3}, 16, v{vT+3}")
        A(f"v_mul_u32_u24 v{vT+3}, {18432-1152}, v{vT+3}"); A(f"v_lshl_add_u32 v{vT+3}, v{vT}, 7, v{vT+3}")
        A(f"v_cmp_gt_u32 vcc, 144, v{vT}")
        A(f"s_lshl_b32 s{sT0}, s{sB}, 1"); A(f"s_add_u32 s{sT0}, s{sT0}, s{sSPL}"); A(f"s_mul_i32 s{sT0}, s{sT0}, {256*1152}")
        A(f"s_mul_i32 s{sT1}, s{sKVH}, 1152"); A(f"s_add_u32 s{sT0}, s{sT0}, s{sT1}"); A(f"s_add_u32 s{sT0}, s{sT0}, {PY_OFF}")
        A(f"v_cndmask_b32 v{vT+3}, v{vT+2}, v{vT+3}, vcc")
        A(f"buffer_load_dword a255, v{vT+3}, {srd(sWS)}, s{sT0} offen {ptf}")
    def post_k(blk):
        stamp_at(A, f"k{blk}")
        if blk == 1 and promote:
            A("v_accvgpr_read_b32 v1, a254")
            A(f"buffer_load_dword a255, v1, {srd(sWP)}, 0 offen {w2f}")
        if blk == pretouch: do_pretouch()

    site("QB", 0, 1, k_loads(1))
    A(f"s_add_u32 s{sE1}, s{sE1}, 1"); A(f"s_and_b32 s{sTAG}, s{sE1}, 0xfff")
    post_k(1)
    mix(A, k_move(0), k_loads(2)); post_k(2)
    A.wait_lg(mvseq[0])
    mix(A, k_move(1), k_loads(3)); post_k(3)
    site("QB", 1, 4, k_loads(4)); post_k(4)
    stamp_at(A, "qb1")
    run(k_move(2)); A.wait_lg(mvseq[2])
    mix(A, k_move(3) + qk(0) + qk(1) + rmax(0) + qk(2) + rmax(1), k_loads(5)); post_k(5)
    A.wait_lg(mvseq[3])
    mix(A, k_move(4) + qk(3) + rmax(2) + qk(4) + rmax(3), k_loads(6)); post_k(6)
    mix(A, k_move(5) + qk(5) + rmax(4), k_loads(7)); post_k(7)
    vseq = {}
    def v_load(B, blk, i, D, dyn=False):
        def f():
            B.wait_vm_n(D - 1)
            if i % 4 == 0:
                if dyn: B(f"s_add_u32 s{sSO}, s{sNX}, {(i//4)*4096}")
                else: B(f"s_mov_b32 s{sSO}, {blk*8192 + (i//4)*4096}")
            q = B(f"buffer_load_dwordx4 {vr(RING[blk%3]+4*i)}, v{vLIN}, {srd(sV)}, s{sSO} offen offset:{(i&3)*1024} {vf}")
            if not dyn: vseq[blk, i] = q
        return f
    def v_loads(blk): return [v_load(A, blk, i, DV[blk]) for i in range(8)]
    vl = v_loads(0) + v_loads(1)
    cut = min(DV[0], 12)
    mix(A, k_move(6) + qk(6) + rmax(5), vl[:cut])
    comp = k_move(7) + rmax(6) + qk(7)
    comp += ["v_and_b32 v176, 15, v0", f"s_lshl_b32 s{sT0}, s3, 2",
             "v_lshlrev_b32 v176, 4, v176", f"v_add_u32 v176, {L_MX}, v176",
             f"v_add_u32 v177, s{sT0}, v176"]
    comp += rmax(7)
    for h in range(2): comp.append(f"v_mov_b32 v{178+h}, v{vMX+h}")
    for h in range(2): comp.append(f"v_permlane32_swap_b32 v{178+h}, v{vMX+h}")
    for h in range(2): comp.append(f"v_max_f32 v{vMX+h}, v{vMX+h}, v{178+h}")
    for h in range(2): comp.append(f"v_mov_b32 v{178+h}, v{vMX+h}")
    for h in range(2): comp.append(f"v_permlane16_swap_b32 v{178+h}, v{vMX+h}")
    for h in range(2): comp.append(f"v_max_f32 v{vMX+h}, v{vMX+h}, v{178+h}")
    comp += [f"ds_write_b32 v177, v{vMX}", f"ds_write_b32 v177, v{vMX+1} offset:256",
             lambda: A.wait_lg_all(), "s_barrier",
             f"ds_read_b128 {vr(180)}, v176", f"ds_read_b128 {vr(184)}, v176 offset:256",
             lambda: A.wait_lg_all()]
    for h in range(2): comp.append(f"v_max3_f32 v{vMX+h}, v{180+4*h}, v{181+4*h}, v{182+4*h}")
    for h in range(2): comp.append(f"v_max_f32 v{vMX+h}, v{vMX+h}, v{183+4*h}")
    for h in range(2): comp.append(f"v_mul_f32 v{vMX+h}, s{sSC}, v{vMX+h}")
    cut2 = min(cut + 4, 16)
    mix(A, comp, vl[cut:cut2])
    stamp_at(A, "mxdone")
    def softmax(blk):
        it = []
        for h in range(2):
            b = vS + blk*16 + h*8
            for k in range(8): it.append(f"v_fma_f32 v{b+k}, v{b+k}, s{sSC}, -v{vMX+h}")
            for k in range(8): it.append(f"v_exp_f32 v{b+k}, v{b+k}")
        for h in range(2):
            b = vS + blk*16 + h*8
            for k in range(4): it.append(f"v_cvt_pk_bf16_f32 v{vS+blk*8+h*4+k}, v{b+2*k}, v{b+2*k+1}")
        return it
    def lsum(blk):
        return [f"{MF} {vr(vT+8+4*h)}, {vr(vT)}, {vr(vS+blk*8+h*4)}, {vr(vT+8+4*h) if blk else 0}" for h in range(2)]
    comp = [f"v_mov_b32 v{vT+k}, 0x3f803f80" for k in range(4)]
    for blk in range(8):
        comp += softmax(blk)
        if blk: comp += lsum(blk-1)
    comp += lsum(7)
    comp += ["v_and_b32 v1, 15, v0", f"s_lshl_b32 s{sT0}, s3, 2", f"v_lshl_add_u32 v1, v1, 4, s{sT0}", f"v_add_u32 v1, {L_LX}, v1",
             f"ds_write_b32 v1, v{vT+8}", f"ds_write_b32 v1, v{vT+12} offset:256"]
    mix(A, comp, vl[cut2:] + v_loads(2))
    stamp_at(A, "smdone")

    def pv(blk):
        it = [lambda: A.wait_vm(vseq[blk, 7])]
        R = RING[blk % 3]
        for q in range(4):
            tb = vT + (q & 1) * 8
            it += perms(R, q, tb)
            for jo in range(2):
                for h in range(2):
                    d = ar(aACC + h*32 + (2*q+jo)*4)
                    it.append(f"{MF} {d}, {vr(tb+4*jo)}, {vr(vS+blk*8+h*4)}, {d if blk else 0}")
        return it
    A.wait_lg_all()
    run(pv(0))
    site("OB", 0, 3, v_loads(3)); stamp_at(A, "v3")
    run(["s_barrier",
         "v_and_b32 v1, 15, v0", "v_lshlrev_b32 v1, 4, v1", f"v_add_u32 v1, {L_LX}, v1",
         f"ds_read_b128 {vr(48)}, v1", f"ds_read_b128 {vr(52)}, v1 offset:256"])
    run(pv(1))
    run([lambda: A.wait_lg_all(),
         "v_add_f32 v48, v48, v49", "v_add_f32 v52, v52, v53", "v_add_f32 v50, v50, v51", "v_add_f32 v54, v54, v55",
         f"v_add_f32 v{vWQ}, v48, v50", f"v_add_f32 v{vX}, v52, v54",
         "v_and_b32 v1, 16, v0", "v_cmp_eq_u32 vcc, 0, v1",
         f"s_lshl_b32 s{sT0}, s{sXCC}, 28", f"s_xor_b32 s{sT0}, s{sT0}, s{sE1}",
         f"v_mov_b32 v50, s{sE1}", f"v_mov_b32 v51, s{sT0}",
         f"v_cndmask_b32 v48, v{vMX+1}, v{vMX}, vcc", f"v_cndmask_b32 v49, v{vX}, v{vWQ}, vcc",
         "v_and_b32 v1, 31, v0", "v_lshlrev_b32 v1, 4, v1",
         f"s_lshl_b32 s{sT0}, s{sPID}, 9", f"s_add_u32 s{sT0}, s{sT0}, {XS_OFF}"])
    A("s_cmp_lg_u32 s3, 0"); A("s_cbranch_scc1 L_nostat")
    A.raw(f"    buffer_store_dwordx4 {vr(48)}, v1, {srd(sWS)}, s{sT0} offen {pubf}")
    A.raw("    s_nop 1")
    A.label("L_nostat")
    mix(A, pv(2), v_loads(4)); stamp_at(A, "v4")
    mix(A, pv(3), v_loads(5)); stamp_at(A, "v5")
    site("OB", 1, 6, v_loads(6)); stamp_at(A, "v6")
    run(pv(4))
    statseq = {}
    def ldstat(h):
        def f():
            if h == 0:
                A("v_and_b32 v1, 15, v0"); A("v_lshlrev_b32 v1, 4, v1")
                A(f"s_xor_b32 s{sNX}, s{sPID}, 1"); A(f"s_lshl_b32 s{sNX}, s{sNX}, 9"); A(f"s_add_u32 s{sNX}, s{sNX}, {XS_OFF}")
            statseq[h] = A(f"buffer_load_dwordx4 {vr(72+4*h)}, v1, {srd(sWS)}, s{sNX} offen offset:{h*256} {ldf}")
        return f
    vl = v_loads(7)
    cut = min(DV[7], 8)
    mix(A, pv(5) + tail_addr(), [ldstat(0), ldstat(1)] + vl[:cut])
    mix(A, [lambda: A.wait_vm(statseq[1])] + stat_scales(A, local) + pv(6), vl[cut:])
    stamp_at(A, "v7")
    p7 = pv(7)
    run(p7[:1]); stamp_at(A, "v7land"); run(p7[1:])
    tail(A, pubf, ldf, stamp_at, sleepx, sleepg)
    A.label("L_fin")
    if stamps:
        A(f"s_lshl_b32 s{sT0}, s2, 2"); A(f"s_add_u32 s{sT0}, s{sT0}, s3"); A(f"s_lshl_b32 s{sT0}, s{sT0}, 6")
        A(f"s_add_u32 s{sT0}, s{sT0}, {STAMP_OFF}")
        A(f"s_add_u32 s18, s18, s{sT0}"); A("s_addc_u32 s19, s19, 0")
        A("v_mov_b32 v1, 0")
        for j in range(4):
            for k in range(4): A(f"v_mov_b32 v{4+k}, s{sSTAMP+4*j+k}")
            A(f"global_store_dwordx4 v1, v[4:7], s[18:19] offset:{16*j}")
    A.label("L_end")
    A("s_endpgm")

    B = Asm()
    B.label("L_QB")
    stamp_at(B, "qbs"); stamp_at(B, "cnt_clk0")
    qs = {}
    def q_load(u, i):
        def f():
            B.wait_vm_n(DQ - 1)
            if "noload" in exp and not (u == 1 and i == 0):
                qs[u, i] = qs[1, 0]; return
            qs[u, i] = wq_load(B, u, i, w2f)
        return f
    def q_cons(u):
        it = [lambda: B.wait_vm(qs[u, 7] if u else qs[1, 0])]
        if "nocomp" in exp: return it
        for q in range(4):
            tb = vT + (q & 1) * 8
            it += perms(WQR[u % 3], q, tb)
            for jo in range(2):
                d = vr(vQA + (2*q+jo)*4)
                it.append(f"{MF} {d}, {vr(tb+4*jo)}, {vr(vXO_+4*u)}, {d if u else 0}")
        return it
    for u in (1, 2):
        for i in range(8): q_load(u, i)()
    mix(B, q_cons(0), [])
    for u in range(1, 7):
        mix(B, q_cons(u), [q_load(u+2, i) for i in range(8)])
    kn = [k_load(B, 1, i, 24, dyn=True) for i in range(8)]
    mix(B, q_cons(7), kn)
    mix(B, q_cons(8), [])
    stamp_at(B, "qbl"); stamp_at(B, "cnt_clk1")
    B(f"s_lshl_b32 s{sT0}, s3, 13"); B(f"s_add_u32 s{sT0}, s{sT0}, {L_QR}"); B(f"v_add_u32 v1, s{sT0}, v{vLIN}")
    for j in range(8): B(f"ds_write_b128 v1, {vr(vQA+4*j)} offset:{j*1024}")
    B(f"v_add_u32 v1, {L_QR}, v{vLIN}")
    B.wait_lg_all(); B("s_barrier")
    rs = {}
    for h in range(2):
        for j in range(8):
            for k in range(2):
                rs[h, j, k] = B(f"ds_read_b128 {vr(vS+h*64+j*8+k*4)}, v1 offset:{(h+2*k)*8192+j*1024}")
    for h in range(2):
        for p in range(4):
            B.wait_lg(rs[h, 2*p+1, 1])
            for jo in range(2):
                b = vS + h*64 + (2*p+jo)*8
                for r in range(4): B(f"v_add_f32 v{b+r}, v{b+r}, v{b+4+r}")
            for r in range(4):
                B(f"v_cvt_pk_bf16_f32 v{vQ+h*16+r*4+p}, v{vS+h*64+(2*p)*8+r}, v{vS+h*64+(2*p+1)*8+r}")
    stamp_at(B, "qbe")
    B(f"s_cmp_eq_u32 s{sSPL}, 0"); B("s_cbranch_scc1 L_QB_ret0"); B("s_branch L_QB_ret1")

    C = Asm()
    C.label("L_OB")
    stamp_at(C, "obs")
    os_ = {}
    OSL = [0, 1, 2, 0, 1, 2, 0, 1]
    def o_load(s, i):
        def f():
            C.wait_vm_n(DQ - 1)
            h, r = s >> 2, s & 3
            off = (h*128 + r*8 + i) * 1152
            so = off // 4096 * 4096
            C(f"s_mov_b32 s{sSO}, {so}")
            os_[s, i] = C(f"buffer_load_dwordx3 {vr(WOS[OSL[s]]+4*i, 3)}, v{vWO}, {srd(sWO)}, s{sSO} offen offset:{off-so} {w2f}")
        return f
    def o_cons(s):
        it = [lambda: C.wait_vm(os_[s, 7])]
        for q in range(3):
            tb = vT + (q & 1) * 8
            it += perms(WOS[OSL[s]], q, tb)
            for k in range(8): it.append(f"v_accvgpr_write_b32 a{s*24+q*8+k}, v{tb+k}")
        return it
    for s in (0, 1):
        for i in range(8): o_load(s, i)()
    for s in range(6):
        mix(C, o_cons(s), [o_load(s+2, i) for i in range(8)])
    mix(C, o_cons(6), [v_load(C, 3, i, 24, dyn=True) for i in range(8)])
    mix(C, o_cons(7), [])
    stamp_at(C, "obe")
    C(f"s_cmp_eq_u32 s{sSPL}, 0"); C("s_cbranch_scc1 L_OB_ret0"); C("s_branch L_OB_ret1")

    D = Asm()
    D.label("L_statpoll")
    D(f"s_mov_b32 s{sCNT}, {POLL_MAX}")
    D.label("L_statloop")
    for h in range(2): D(f"buffer_load_dwordx4 {vr(72+4*h)}, v1, {srd(sWS)}, s{sNX} offen offset:{h*256} {ldf}")
    D("s_waitcnt vmcnt(0)")
    for c in stat_check(): D(c)
    D("s_cbranch_scc1 L_statok")
    D(f"s_sub_u32 s{sCNT}, s{sCNT}, 1"); D(f"s_cmp_lg_u32 s{sCNT}, 0"); D("s_cbranch_scc1 L_statloop")
    D("s_endpgm")

    out = A.text() + B.text() + C.text() + D.text() + "L_codeend:\n" + "    s_nop 0\n" * 64
    out += f""".section .rodata,"a"
.p2align 6
.amdhsa_kernel {KNAME}
  .amdhsa_next_free_vgpr 512
  .amdhsa_next_free_sgpr 102
  .amdhsa_accum_offset 256
  .amdhsa_group_segment_fixed_size 0
  .amdhsa_kernarg_size 64
  .amdhsa_user_sgpr_count 2
  .amdhsa_user_sgpr_kernarg_segment_ptr 1
  .amdhsa_system_sgpr_workgroup_id_x 1
.end_amdhsa_kernel
"""
    return out

def tail_addr():
    it = []
    a = it.append
    a(f"s_mul_i32 s{sT0}, s3, 384")
    a(f"v_add_u32 v80, s{sT0}, v0")
    a(f"s_movk_i32 s{sT1}, 17280")
    for gm in range(6):
        a(f"v_add_u32 v81, {gm*64}, v80")
        a("v_mul_u32_u24 v82, 911, v81"); a("v_lshrrev_b32 v82, 16, v82")
        a(f"v_mul_u32_u24 v82, s{sT1}, v82"); a(f"v_lshl_add_u32 v{vPUB+gm}, v81, 4, v82")
    a(f"s_lshl_b32 s{sT0}, s{sB}, 1"); a(f"s_add_u32 s{sT0}, s{sT0}, s{sSPL}")
    a(f"s_mul_i32 s{sPB}, s{sT0}, {256*1152}"); a(f"s_add_u32 s{sPB}, s{sPB}, {PY_OFF}")
    a(f"s_mul_i32 s{sT1}, s{sKVH}, {16*1152}"); a(f"s_add_u32 s12, s{sPB}, s{sT1}")
    a(f"s_mul_i32 s{sT1}, s{sKVH}, 1152"); a(f"s_add_u32 s{sPB}, s{sPB}, s{sT1}")
    a("s_mul_i32 s13, s3, 3"); a("s_add_u32 s14, s13, 1"); a("s_add_u32 s15, s13, 2")
    for k in range(3):
        a(f"s_lshl_b32 s{sT1}, s{13+k}, 7"); a(f"s_add_u32 s{sGA+2*k}, s12, s{sT1}"); a(f"s_add_u32 s{sGA+2*k+1}, s{sGA+2*k}, 9216")
    a("v_lshrrev_b32 v80, 3, v0"); a("v_mul_u32_u24 v80, 1152, v80"); a("v_and_b32 v81, 7, v0"); a(f"v_lshl_add_u32 v{vGAT}, v81, 4, v80")
    a("v_lshrrev_b32 v87, 4, v0"); a("v_mul_u32_u24 v87, 6, v87")
    a(f"s_mul_i32 s{sT0}, s{sSPL}, 288"); a(f"v_add_u32 v87, s{sT0}, v87")
    a(f"s_mul_i32 s12, s{sKVH}, 72")
    for k in range(3):
        a(f"s_lshl_b32 s{sT0}, s{13+k}, 3"); a(f"s_add_u32 s{sT0}, s{sT0}, s12")
        a(f"v_add_u32 v80, s{sT0}, v81")
        a("v_lshrrev_b32 v82, 6, v80")
        a("v_mul_u32_u24 v83, 43, v82"); a("v_lshrrev_b32 v83, 8, v83")
        a("v_mul_u32_u24 v84, 90, v83")
        a("v_add_u32 v84, v82, v84")
        a("v_bfe_u32 v85, v80, 4, 2"); a("v_mul_u32_u24 v85, 24, v85")
        a("v_add3_u32 v84, v84, v85, v87")
        a("v_and_b32 v85, 15, v80"); a("v_mul_u32_u24 v85, 1152, v85")
        a(f"v_lshl_add_u32 v{vOUT+k}, v84, 1, v85")
    a(f"s_mul_i32 s16, s{sB}, 18432")
    a(f"s_lshl_b32 s{sT0}, s3, 14"); a(f"s_add_u32 s{sT0}, s{sT0}, {L_OC}"); a(f"v_add_u32 v{vOCW}, s{sT0}, v{vLIN}")
    a(f"s_lshl_b32 s{sT0}, s3, 11"); a(f"s_add_u32 s{sT0}, s{sT0}, {L_OC}"); a(f"v_add_u32 v{vOCR}, s{sT0}, v{vLIN}")
    a(f"s_lshl_b32 s{sT0}, s3, 2"); a(f"v_add_u32 v{vBXW}, s{sT0}, v{vLIN}")
    a(f"v_mov_b32 v{vTAG}, s{sTAG}")
    a(f"s_lshl_b32 s{sXOo}, s{sPID}, 14"); a(f"s_lshl_b32 s{sT0}, s3, 12"); a(f"s_add_u32 s{sXOo}, s{sXOo}, s{sT0}")
    a(f"s_xor_b32 s{sXOp}, s{sXOo}, {1<<14}")
    a(f"s_add_u32 s{sXOo}, s{sXOo}, {XO_OFF}"); a(f"s_add_u32 s{sXOp}, s{sXOp}, {XO_OFF}")
    for n in (sXL, sXG):
        a(f"s_mov_b32 s{n}, s{sWS}"); a(f"s_mov_b32 s{n+1}, s{sWS+1}"); a(f"s_mov_b32 s{n+3}, 0x20000")
    return it

def stat_check():
    return [f"v_xor_b32 v80, s{sE1}, v74", f"v_xor_b32 v81, s{sE1}, v75", f"v_xor_b32 v82, s{sE1}, v78", f"v_xor_b32 v83, s{sE1}, v79",
            "v_or_b32 v84, v81, v83", "v_and_b32 v84, 0x0fffffff, v84",
            "v_or3_b32 v80, v80, v84, v82", "v_cmp_eq_u32 vcc, 0, v80", "s_cmp_eq_u64 vcc, -1"]

def stat_scales(A, local):
    it = stat_check()
    def br():
        A("s_cbranch_scc0 L_statpoll")
        A.label("L_statok")
    it.append(br)
    it += [f"v_readfirstlane_b32 s{sT0}, v81", f"s_lshr_b32 s{sT0}, s{sT0}, 28", f"s_cmp_eq_u32 s{sT0}, s{sXCC}",
           f"s_cselect_b32 s{sXL+2}, {WS_USED if local else 0}, 0", f"s_cselect_b32 s{sXG+2}, {0 if local else WS_USED}, {WS_USED}"]
    for h in range(2):
        it += [f"v_max_f32 v{80+h}, v{vMX+h}, v{72+4*h}"]
    for h in range(2):
        it += [f"v_sub_f32 v{82+h}, v{vMX+h}, v{80+h}", f"v_sub_f32 v{84+h}, v{72+4*h}, v{80+h}"]
    for h in range(2):
        it += [f"v_exp_f32 v{82+h}, v{82+h}", f"v_exp_f32 v{84+h}, v{84+h}"]
    for h in range(2):
        it += [f"v_mul_f32 v{84+h}, v{84+h}, v{73+4*h}"]
    for h in range(2):
        it += [f"v_fma_f32 v{84+h}, v{82+h}, v{vWQ+h}, v{84+h}"]
    for h in range(2):
        it += [f"v_rcp_f32 v{84+h}, v{84+h}"]
    for h in range(2):
        it += [f"v_mul_f32 v{vWQ+h}, v{82+h}, v{84+h}"]
    return it

def poll(A, name, loads, base, n, slp):
    A(f"s_mov_b32 s{sCNT}, {POLL_MAX}")
    A.label(name)
    for l in loads: A(l)
    A("s_waitcnt vmcnt(0)")
    A.vm_done = A.vm - 1
    for k in range(n): A(f"v_xor_b32 v{base+k}, s{sTAG}, v{base+k}")
    A(f"v_or3_b32 v1, v{base}, v{base+1}, v{base+2}")
    A(f"v_or3_b32 v70, v{base+3}, v{base+4}, v{base+5}")
    k = 6; t = 0
    while k < n:
        r = ("v1", "v70")[t]; t ^= 1
        if k + 1 < n: A(f"v_or3_b32 {r}, {r}, v{base+k}, v{base+k+1}"); k += 2
        else: A(f"v_or_b32 {r}, {r}, v{base+k}"); k += 1
    A("v_or_b32 v1, v1, v70"); A("v_and_b32 v1, 0xfff, v1")
    A("v_cmp_eq_u32 vcc, 0, v1"); A("s_cmp_eq_u64 vcc, -1")
    A(f"s_cbranch_scc1 {name}_ok")
    if slp: A(f"s_sleep {slp}")
    A(f"s_sub_u32 s{sCNT}, s{sCNT}, 1"); A(f"s_cmp_lg_u32 s{sCNT}, 0"); A(f"s_cbranch_scc1 {name}")
    A("s_endpgm")
    A.label(f"{name}_ok")

def tail(A, pubf, ldf, stamp_at, sleepx, sleepg):
    for k in range(16): A(f"ds_write_b128 v{vOCW}, {ar(aACC+4*k)} offset:{k*1024}")
    A.wait_lg_all(); stamp_at(A, "ocw"); A("s_barrier"); stamp_at(A, "ocb")
    rs = {}
    for x in range(4):
        for src in range(4):
            rs[x, src] = A(f"ds_read_b128 {vr(192+src*16+x*4)}, v{vOCR} offset:{src*16384+(x>>1)*8192+(x&1)*1024}")
    for x in range(4):
        A.wait_lg(rs[x, 3])
        b = 192 + x*4
        for r in range(4): A(f"v_add_f32 v{b+r}, v{b+r}, v{b+16+r}")
        for r in range(4): A(f"v_add_f32 v{b+32+r}, v{b+32+r}, v{b+48+r}")
        for r in range(4): A(f"v_add_f32 v{b+r}, v{b+r}, v{b+32+r}")
        for r in range(4): A(f"v_mul_f32 v{b+r}, v{b+r}, v{vWQ+(x>>1)}")
        for r in range(4): A(f"v_and_or_b32 v{32+x*4+r}, v{b+r}, s{sMASK}, v{vTAG}")
        A(f"buffer_store_dwordx4 {vr(32+x*4)}, v{vLIN}, {srd(sXL)}, s{sXOo} offen offset:{x*1024}")
        A(f"buffer_store_dwordx4 {vr(32+x*4)}, v{vLIN}, {srd(sXG)}, s{sXOo} offen offset:{x*1024} {pubf}")
    for k in range(16): A(f"v_and_b32 v{16+k}, s{sMASK}, v{192+k}")
    stamp_at(A, "xst")
    poll(A, "L_xp", [f"buffer_load_dwordx4 {vr(112+4*x)}, v{vLIN}, {srd(sWS)}, s{sXOp} offen offset:{x*1024} {ldf}" for x in range(4)], 112, 16, sleepx)
    stamp_at(A, "cntx"); stamp_at(A, "xok")
    for h in range(2):
        for r in range(4):
            A(f"v_add_f32 v{16+h*8+r}, v{16+h*8+r}, v{112+h*8+r}")
            A(f"v_add_f32 v{20+h*8+r}, v{20+h*8+r}, v{116+h*8+r}")
            A(f"v_cvt_pk_bf16_f32 v{128+h*4+r}, v{16+h*8+r}, v{20+h*8+r}")
            A(f"ds_write_b32 v{vBXW}, v{128+h*4+r} offset:{L_BX+(h*4+r)*1024}")
    A.wait_lg_all(); A("s_barrier")
    A("s_cmp_eq_u32 s3, 3"); A("s_cbranch_scc1 L_fin")
    stamp_at(A, "bxb")
    bs = [A(f"ds_read_b128 {vr(136+4*s)}, v{vLIN} offset:{L_BX+s*1024}") for s in range(8)]
    def pubtile(j):
        for x in range(4): A(f"v_and_or_b32 v{192+4*j+x}, v{168+4*j+x}, s{sMASK}, v{vTAG}")
        A(f"buffer_store_dwordx4 {vr(192+j*4)}, v{vPUB+j}, {srd(sPUB)}, s{sPB} offen {pubf}")
    for jp in range(3):
        for s in range(8):
            A.wait_lg(bs[s])
            for j in (2*jp, 2*jp+1):
                d = vr(168 + 4*j)
                A(f"{MF} {d}, {ar(s*24+j*4)}, {vr(136+4*s)}, {d if s else 0}")
            if jp and s == 4: pubtile(2*jp-2)
            if jp and s == 6: pubtile(2*jp-1)
    pubtile(4); pubtile(5)
    stamp_at(A, "pub")
    poll(A, "L_gp", [f"buffer_load_dwordx4 {vr(216+4*k)}, v{vGAT}, {srd(sWS)}, s{sGA+k} offen {ldf}" for k in range(6)], 216, 24, sleepg)
    stamp_at(A, "cntg"); stamp_at(A, "gok")
    B3 = [216 + 8*k for k in range(3)]
    for b in B3:
        for x in range(4): A(f"v_add_f32 v{b+x}, v{b+x}, v{b+4+x}")
    for b in B3:
        A(f"v_permlane32_swap_b32 v{b}, v{b+2}"); A(f"v_permlane32_swap_b32 v{b+1}, v{b+3}")
    for b in B3:
        A(f"v_add_f32 v{b}, v{b}, v{b+2}"); A(f"v_add_f32 v{b+1}, v{b+1}, v{b+3}")
    for b in B3: A(f"v_permlane16_swap_b32 v{b}, v{b+1}")
    for b in B3: A(f"v_add_f32 v{b}, v{b}, v{b+1}")
    for b in B3: A(f"v_add_f32_dpp v{b+1}, v{b}, v{b} row_ror:8 row_mask:0xf bank_mask:0xf")
    for k, b in enumerate(B3):
        A(f"v_cvt_pk_bf16_f32 v{b}, v{b+1}, v{b+1}")
        A(f"buffer_store_short v{b}, v{vOUT+k}, {srd(sOUT)}, s16 offen")
    A(f"s_or_b32 s{sT0}, s{sKVH}, s{sSPL}"); A(f"s_or_b32 s{sT0}, s{sT0}, s3"); A(f"s_cmp_lg_u32 s{sT0}, 0"); A("s_cbranch_scc1 L_noep")
    A(f"v_mov_b32 v1, s{sE1}"); A(f"s_lshl_b32 s{sT0}, s{sB}, 8"); A("v_mov_b32 v2, 0")
    A(f"buffer_store_dword v1, v2, {srd(sWS)}, s{sT0} offen")
    A.label("L_noep")
    stamp_at(A, "end")

if __name__ == "__main__":
    import json
    kw = json.loads(sys.argv[2]) if len(sys.argv) > 2 else {}
    open(sys.argv[1], "w").write(gen(**kw))
```

```python
import re

def expand(op):
    op = op.strip()
    neg = op.lstrip('-')
    if neg.startswith('abs(') or neg.startswith('|'):
        neg = neg.replace('abs(', '').replace(')', '').replace('|', '')
    op = neg
    m = re.fullmatch(r'([vas])\[(\d+):(\d+)\]', op)
    if m:
        return [f"{m.group(1)}{i}" for i in range(int(m.group(2)), int(m.group(3)) + 1)]
    if re.fullmatch(r'[vas]\d+', op):
        return [op]
    if op == 'vcc': return ['vcc']
    if op in ('vcc_lo', 'vcc_hi'): return ['vcc']
    if op == 'exec': return ['exec']
    if op == 'm0': return ['m0']
    return []

TRANS = ('v_exp_f32', 'v_log_f32', 'v_rcp_f32', 'v_rsq_f32', 'v_sqrt_f32', 'v_sin_f32', 'v_cos_f32')

class Inst:
    def __init__(self, text):
        self.text = text
        t = text.split(';')[0].strip()
        parts = t.split(None, 1)
        self.mn = parts[0]
        rest = parts[1] if len(parts) > 1 else ''
        ops = []
        depth = 0; cur = ''
        for ch in rest:
            if ch == '[': depth += 1
            if ch == ']': depth -= 1
            if ch == ',' and depth == 0:
                ops.append(cur.strip()); cur = ''
            else:
                cur += ch
        if cur.strip(): ops.append(cur.strip())
        mods = ''
        if ops:
            sp = ops[-1].split(None, 1)
            ops[-1] = sp[0]
            if len(sp) > 1: mods = sp[1]
        self.ops = ops; self.mods = mods
        mn = self.mn
        self.kind = 'other'; W = []; R = []
        self.dpp = 'dpp' in mn or 'row_' in mods or 'quad_perm' in mods
        self.states = 1
        if mn.startswith('v_mfma'):
            self.kind = 'mfma'
            W = expand(ops[0]); self.A = expand(ops[1]); self.B = expand(ops[2]); self.C = expand(ops[3])
            R = self.A + self.B + self.C
            self.passes = 4 if '16x16x32' in mn else 8
        elif mn.startswith('v_cmp'):
            self.kind = 'valu'; W = expand(ops[0]); R = sum((expand(o) for o in ops[1:]), [])
        elif mn.startswith('v_readfirstlane') or mn.startswith('v_readlane'):
            self.kind = 'valu'; W = expand(ops[0]); R = sum((expand(o) for o in ops[1:]), [])
        elif mn.startswith('v_permlane'):
            self.kind = 'valu'; W = expand(ops[0]) + expand(ops[1]); R = list(W)
        elif mn.startswith('v_'):
            self.kind = 'valu'
            W = expand(ops[0]); R = sum((expand(o) for o in ops[1:]), [])
            if mn.startswith('v_fmac') or self.dpp: R += W
            if mn.startswith('v_add_co') or mn.startswith('v_addc_co') or mn.startswith('v_sub_co'):
                W += expand(ops[1]); R = sum((expand(o) for o in ops[2:]), [])
            if mn.startswith('v_cndmask') and len(ops) == 3: R += ['vcc']
        elif mn.startswith('buffer_') or mn.startswith('global_'):
            self.kind = 'vmem'
            if 'lds' in mods.split():
                R = sum((expand(o) for o in ops), []) + ['m0']
            elif '_load' in mn:
                W = expand(ops[0]); R = sum((expand(o) for o in ops[1:]), [])
            else:
                R = sum((expand(o) for o in ops), [])
                if mn.startswith('buffer_store'): self.sdata = expand(ops[0])
                else: self.sdata = expand(ops[1])
                if 'atomic' in mn and 'sc0' in mods: W = expand(ops[0])
        elif mn.startswith('ds_'):
            self.kind = 'ds'
            if mn.startswith('ds_read') or mn.startswith('ds_bpermute') or mn.startswith('ds_swizzle'):
                W = expand(ops[0]); R = sum((expand(o) for o in ops[1:]), [])
            else:
                R = sum((expand(o) for o in ops), [])
        elif mn == 's_nop':
            self.kind = 'nop'; self.states = int(ops[0], 0) + 1
        elif mn.startswith('s_'):
            self.kind = 'salu'
            if mn.startswith('s_cmp') or mn.startswith('s_cbranch') or mn in ('s_waitcnt', 's_barrier', 's_branch', 's_endpgm', 's_sleep', 's_setprio', 's_bitcmp1_b32', 's_bitcmp0_b32'):
                R = sum((expand(o) for o in ops), [])
            elif ops:
                W = expand(ops[0]); R = sum((expand(o) for o in ops[1:]), [])
                if 'saveexec' in mn: W += ['exec']
        self.W = W; self.R = R
        self.trans = any(mn.startswith(x) for x in TRANS)

def required(prod, cons):
    need = 0
    pw = set(prod.W)
    if prod.kind == 'valu':
        vw = {r for r in pw if r[0] in 'va' and r != 'vcc'}
        sw = {r for r in pw if r[0] == 's' or r == 'vcc'}
        if cons.kind == 'mfma' and vw & set(cons.R): need = max(need, 2)
        if cons.kind == 'valu':
            if cons.mn.startswith('v_permlane') and vw & set(cons.R): need = max(need, 2)
            if cons.dpp and vw & set(cons.R): need = max(need, 2)
            if (cons.mn.startswith('v_readfirstlane') or cons.mn.startswith('v_readlane')) and vw & set(cons.R): need = max(need, 1)
            if prod.trans and not cons.trans and vw & set(cons.R): need = max(need, 1)
            if sw & set(cons.R): need = max(need, 2)
            if 'exec' in pw: need = max(need, 5)
        if cons.kind == 'vmem' and sw & set(cons.R): need = max(need, 5)
        if cons.kind == 'salu' and sw & set(cons.R): need = max(need, 1)
        if prod.trans and cons.kind in ('vmem', 'ds') and vw & set(cons.R): need = max(need, 1)
    if prod.kind == 'mfma':
        P = prod.passes
        big = {4: 8, 8: 12}[P]; part = {4: 6, 8: 10}[P]; war = {4: 3, 8: 7}[P]
        if cons.kind == 'mfma':
            if pw & (set(cons.A) | set(cons.B)): need = max(need, big)
            if pw & set(cons.C):
                if not (prod.W == cons.C and prod.passes == cons.passes): need = max(need, part)
            elif pw & set(cons.W): need = max(need, big)
        elif cons.kind in ('valu', 'vmem', 'ds'):
            if pw & (set(cons.R) | set(cons.W)): need = max(need, big)
            if cons.kind == 'valu' and set(prod.C) & set(cons.W): need = max(need, war)
    if prod.kind == 'salu' and 'm0' in pw and cons.kind == 'vmem' and 'm0' in cons.R: need = max(need, 1)
    if prod.kind == 'salu' and 'exec' in pw and cons.kind == 'valu' and cons.dpp: need = max(need, 1)
    if prod.kind == 'vmem' and hasattr(prod, 'sdata') and len(prod.sdata) >= 3:
        if cons.kind == 'valu' and set(prod.sdata) & set(cons.W): need = max(need, 2)
        elif set(prod.sdata) & set(cons.W): need = max(need, 1)
    return need

class Asm:
    def __init__(self):
        self.lines = []
        self.hist = []
        self.vm = 0
        self.vm_done = -1
        self.lg = 0
        self.lg_done = -1
        self.nops = 0
    def raw(self, text):
        self.lines.append(text)
    def comment(self, t):
        self.lines.append('    ; ' + t)
    def flush(self):
        dist = 0; need = 0
        for p in reversed(self.hist):
            mx = 0
            if p.kind == 'mfma': mx = {4: 8, 8: 12}[p.passes]
            elif p.kind == 'valu': mx = 5 if any(r[0] == 's' or r in ('vcc', 'exec') for r in p.W) else 2
            elif p.kind == 'salu' and 'm0' in p.W: mx = 1
            elif p.kind == 'vmem' and hasattr(p, 'sdata'): mx = 2
            need = max(need, mx - dist)
            dist += p.states
            if dist > 16: break
        if need > 0: self._nop(need)
        self.hist = []
    def _nop(self, n):
        while n > 0:
            k = min(n, 16)
            i = Inst(f"s_nop {k-1}")
            self.lines.append('    ' + i.text); self.hist.append(i); self.nops += 1
            n -= k
    def label(self, name):
        self.flush()
        self.lines.append(name + ':')
    drop = ()
    def __call__(self, text):
        i = Inst(text)
        if any(i.mn.startswith(d) for d in self.drop):
            return self.lg - 1 if i.kind == 'ds' else None
        if i.mn.startswith('s_cbranch') or i.mn in ('s_branch', 's_setpc_b64', 's_swappc_b64'):
            self.flush()
        dist = 0; need = 0
        for p in reversed(self.hist):
            need = max(need, required(p, i) - dist)
            dist += p.states
            if dist > 20: break
        if need > 0: self._nop(need)
        self.lines.append('    ' + text)
        self.hist.append(i)
        if len(self.hist) > 40: self.hist = self.hist[-30:]
        if i.kind == 'vmem':
            self.vm += 1
            return self.vm - 1
        if i.kind == 'ds':
            self.lg += 1
            return self.lg - 1
        return None
    def wait_vm(self, seq):
        if seq <= self.vm_done: return
        n = self.vm - 1 - seq
        assert n >= 0
        n = min(n, 63)
        self(f"s_waitcnt vmcnt({n})")
        self.vm_done = self.vm - 1 - n
    def wait_vm_n(self, n):
        if self.vm - 1 - n <= self.vm_done: return
        self(f"s_waitcnt vmcnt({n})")
        self.vm_done = self.vm - 1 - n
    def wait_lg(self, seq):
        if seq <= self.lg_done or seq < 0: return
        n = min(self.lg - 1 - seq, 15)
        self(f"s_waitcnt lgkmcnt({n})")
        self.lg_done = self.lg - 1 - n
    def wait_lg_all(self):
        self("s_waitcnt lgkmcnt(0)")
        self.lg_done = self.lg - 1
    def wait_vm_all(self):
        self("s_waitcnt vmcnt(0)")
        self.vm_done = self.vm - 1
    def text(self):
        return '\n'.join(self.lines) + '\n'
```

```python
import sys, math, struct
from asmlib import Asm

KNAME = "standalone__sliding_block_cached__sampling_kernel"
HDR = open('standalone__sliding_block_cached__sampling.s.ref').read().split('; Override')[0]

EP_OFF = 0
XS_OFF = 0x10000
XO_OFF = 0x100000
PY_OFF = 0x800000
WS_USED = 0x1000000
STAMP_OFF = 512 << 20
L_KW = 24576
L_QR = 98304
L_PX = L_QR
L_BX = L_QR
L_MX = 131072
L_LX = L_MX + 512
L_XI = 132096
LDS_BYTES = L_XI + 20480
POLL_MAX = 200000

def f32(x): return struct.unpack('<I', struct.pack('<f', x))[0]
SCALE = f32(1.4426950408889634 / math.sqrt(128.0))

sK, sV, sWQ, sWO, sX, sWS, sOUT, sWP, sPUB = 20, 24, 28, 32, 36, 40, 44, 68, 72
sXL, sXG = 28, 36
sSELL, sSELH, sSC, sTAG, sTAB, sSO, sLK, sKVH, sSPL, sB = 48, 49, 50, 51, 52, 61, 62, 63, 64, 65
sE1, sMASK = 66, 67
sPID, sXOo, sXOp, sNX, sXCC, sCNT, sT0, sT1, sSLOT = 76, 77, 78, 79, 80, 82, 83, 84, 85
sSTAMP = 86
sPB, sGA, sOB = 4, 6, 8
def srd(n): return f"s[{n}:{n+3}]"
vKA, vKR, vLIN, vWQ, vX, vWO, vMX = 2, 6, 10, 11, 12, 13, 14
vQ = 16
vS = 48
vT = 176
vVT = 16
vPM = 192
vACC = 224
vVA, vVR, vPW, vPR = 2, 6, 4, 5
vXO_ = 48
vQA = 84
WQR = [192, 224, 116]
WOS = [112, 144, 16]
vPUB, vOUT, vGAT, vBXW = 240, 241, 242, 243

def vr(b, n=4): return f"v[{b}:{b+n-1}]"
def ar(b, n=4): return f"a[{b}:{b+n-1}]"
MF = "v_mfma_f32_16x16x32_bf16"

def cost(it):
    if callable(it): return 1
    if it.startswith('v_mfma'): return 12
    if it.startswith('v_exp') or it.startswith('v_rcp'): return 8
    return 4

def mix(A, comp, loads):
    tot = sum(cost(c) for c in comp)
    n = len(loads); k = 0; acc = 0
    for c in comp:
        while k < n and acc >= tot * k / max(n, 1):
            loads[k](); k += 1
        if callable(c): c()
        else: A(c)
        acc += cost(c)
    while k < n:
        loads[k](); k += 1

def perms(R, q, tb):
    it = []
    for p in range(4): it.append(f"v_perm_b32 v{tb+p}, v{R+(2*p+1)*4+q}, v{R+(2*p)*4+q}, s{sSELL}")
    for p in range(4): it.append(f"v_perm_b32 v{tb+4+p}, v{R+(2*p+1)*4+q}, v{R+(2*p)*4+q}, s{sSELH}")
    return it

def gen(DK=(16,)*8, DV=(8,)*8, DQ=16, stamps=False, kf="nt", vf="nt", w1f="", w2f="", pubf="sc1", ldf="sc1",
        codepf=True, wsbase=0, pretouch=1, ptf="", local=True, promote=False, sleepx=0, sleepg=0, tlbwarm=True, noOB=False, noQB=False, exp="", outtouch=True, outf="", kfirst=True, pt="xp"):
    if isinstance(DK, int): DK = (DK,) * 8
    if isinstance(DV, int): DV = (DV,) * 8
    dr = []
    if "nobar" in exp: dr += ["s_barrier"]
    if "nomath" in exp: dr += ["v_mfma", "v_exp", "v_fma", "v_cvt", "v_perm", "v_max3", "v_accvgpr_write"]
    if "nods" in exp: dr += ["ds_"]
    Asm.drop = tuple(dr)
    A = Asm()
    def stamp_at(B, name):
        if not stamps or name not in stamps: return
        i = stamps.index(name) + 1
        if name.startswith("cnt") and not name.startswith("cnt_clk"):
            B(f"s_sub_u32 s{sSTAMP+2*i}, {POLL_MAX}, s{sCNT}"); B(f"s_mov_b32 s{sSTAMP+2*i+1}, 0")
            return
        B.wait_lg_all()
        B(f"{'s_memtime' if name.startswith('cnt_clk') else 's_memrealtime'} s[{sSTAMP+2*i}:{sSTAMP+2*i+1}]")
        B.wait_lg_all()
    def run(comp, B=A):
        for c in comp:
            if callable(c): c()
            else: B(c)

    A.raw(HDR.rstrip())
    A.raw(f"; @launch grid=(256,1,1) block=(256,1,1) lds={LDS_BYTES}")
    A.raw('.amdgcn_target "amdgcn-amd-amdhsa--gfx950"')
    A.raw(".text"); A.raw(f".globl {KNAME}"); A.raw(".p2align 8"); A.raw(f".type {KNAME},@function"); A.raw(f"{KNAME}:")
    A("s_cmp_ge_u32 s2, 256"); A("s_cbranch_scc1 L_end")
    A("s_load_dwordx8 s[4:11], s[0:1], 0")
    A("s_load_dwordx8 s[12:19], s[0:1], 32")
    if stamps: A(f"s_memrealtime s[{sSTAMP}:{sSTAMP+1}]")
    A("s_getpc_b64 s[100:101]")
    A.raw("L_pc:")
    A("v_lshrrev_b32 v1, 6, v0")
    A("v_mov_b32 v18, v0")
    A("v_readfirstlane_b32 s3, v1")
    A("v_and_b32 v0, 63, v0")
    A(f"s_and_b32 s{sTAB}, s2, 7"); A(f"s_lshr_b32 s{sSLOT}, s2, 3")
    A(f"s_and_b32 s{sT0}, s{sSLOT}, 1"); A(f"s_lshl_b32 s61, s{sTAB}, 1"); A(f"s_add_u32 s{sKVH}, s61, s{sT0}")
    A(f"s_lshr_b32 s{sSPL}, s{sSLOT}, 1"); A(f"s_and_b32 s{sSPL}, s{sSPL}, 1")
    A(f"s_lshr_b32 s{sB}, s{sSLOT}, 2")
    A("v_lshrrev_b32 v20, 4, v0")
    A("v_and_b32 v21, 15, v0")
    A(f"v_lshlrev_b32 v{vLIN}, 4, v0")
    A("v_lshlrev_b32 v22, 2, v20"); A("v_xor_b32 v22, v21, v22"); A("v_lshlrev_b32 v22, 4, v22"); A(f"v_lshl_add_u32 v{vKA}, v20, 8, v22")
    for i in range(1, 4): A(f"v_xor_b32 v{vKA+i}, {i<<4}, v{vKA}")
    A(f"s_mul_i32 s{sLK}, s3, {L_KW}")
    A(f"s_lshl_b32 s{sPID}, s{sB}, 4"); A(f"s_add_u32 s{sPID}, s{sPID}, s{sKVH}")
    A(f"s_lshl_b32 s{sT0}, s{sPID}, 21"); A(f"s_add_u32 s{sT0}, s{sT0}, {6144*256}")
    A(f"s_lshl_b32 s{sT1}, s{sSPL}, 18"); A(f"s_add_u32 s{sT0}, s{sT0}, s{sT1}")
    A(f"s_lshl_b32 s{sT1}, s3, 16"); A(f"s_add_u32 s{sT0}, s{sT0}, s{sT1}")
    A(f"s_lshl_b32 s{sPID}, s{sPID}, 1"); A(f"s_add_u32 s{sPID}, s{sPID}, s{sSPL}")
    A("v_mov_b32 v23, 0x7ffffff0"); A("v_cmp_gt_u32 vcc, 144, v18")
    A("v_lshrrev_b32 v22, 3, v18"); A(f"s_mul_i32 s{sT1}, s{sSLOT}, 18"); A(f"v_add_u32 v22, s{sT1}, v22"); A("v_lshlrev_b32 v22, 13, v22")
    A("v_and_b32 v24, 7, v18"); A("v_lshl_add_u32 v22, v24, 7, v22"); A("v_cndmask_b32 v16, v23, v22, vcc")
    A("v_lshlrev_b32 v22, 7, v18"); A("v_cndmask_b32 v17, v23, v22, vcc")
    A("s_waitcnt lgkmcnt(0)")
    def mksrd(n, p, off, size):
        if off is None or off == 0:
            A(f"s_mov_b32 s{n}, s{p}"); A(f"s_mov_b32 s{n+1}, s{p+1}")
        else:
            A(f"s_add_u32 s{n}, s{p}, {off}"); A(f"s_addc_u32 s{n+1}, s{p+1}, 0")
        A(f"s_mov_b32 s{n+2}, {size}"); A(f"s_mov_b32 s{n+3}, 0x20000")
    mksrd(sK, 6, f"s{sT0}", 65536)
    kseq = {}
    def k_load(B, blk, i, D, dyn=False):
        def f():
            B.wait_vm_n(D - 1)
            if i % 4 == 0:
                if dyn: B(f"s_add_u32 s{sSO}, s{sNX}, {(i//4)*4096}")
                else: B(f"s_mov_b32 s{sSO}, {blk*8192 + (i//4)*4096}")
                B(f"s_add_u32 m0, s{sLK}, {(blk%3)*8192 + (i//4)*4096}")
            q = B(f"buffer_load_dwordx4 v{vKA+(i&3)}, {srd(sK)}, s{sSO} offen offset:{(i&3)*1024} {kf} lds")
            if not dyn: kseq[blk, i] = q
        return f
    def k_loads(blk): return [k_load(A, blk, i, DK[blk]) for i in range(8)]
    def prefetches():
        mksrd(sWP, 10, None, 576*8192)
        A(f"s_lshl_b32 s{sT1}, s{sTAB}, 10")
        A(f"buffer_load_dword a255, v16, {srd(sWP)}, s{sT1} offen {w1f}")
        mksrd(sWO, 12, None, 4096*1152)
        A(f"s_lshl_b32 s{sT1}, s{sTAB}, 5"); A(f"s_add_u32 s{sT1}, s{sT1}, s{sSLOT}"); A(f"s_mul_i32 s{sT1}, s{sT1}, {144*128}")
        A(f"buffer_load_dword a255, v17, {srd(sWO)}, s{sT1} offen {w1f}")
    nfirst = 8 if kfirst is True else int(kfirst)
    for i in range(nfirst): k_load(A, 0, i, 63)()
    prefetches()
    if codepf:
        A("v_lshlrev_b32 v16, 7, v18"); A("v_min_u32 v16, L_codeend-L_pc-4, v16")
        A("global_load_dword a255, v16, s[100:101]")
    mksrd(sV, 8, f"s{sT0}", 65536)
    A(f"s_mul_i32 s{sT0}, s{sB}, 18432")
    mksrd(sX, 4, f"s{sT0}", 18432)
    A(f"s_lshl_b32 s{sT1}, s3, 10")
    for k in range(5):
        A(f"s_add_u32 m0, s{sT1}, {L_XI + k*4096}"); A(f"s_add_u32 s{sSO}, s{sT1}, {k*4096}")
        A(f"buffer_load_dwordx4 v{vLIN}, {srd(sX)}, s{sSO} offen lds")
    for i in range(nfirst, 8): k_load(A, 0, i, 63)()
    mksrd(sOUT, 14, None, 8*16*576*2)
    if tlbwarm:
        A("v_mov_b32 v17, 0")
        A(f"buffer_load_dword a255, v17, {srd(sV)}, 0 offen {vf}")
    if outtouch:
        A(f"s_mul_i32 s{sT1}, s{sPID}, 576"); A(f"s_andn2_b32 s{sT1}, s{sT1}, 127")
        A("v_lshlrev_b32 v17, 7, v18"); A("v_cmp_gt_u32 vcc, 5, v18"); A("v_cndmask_b32 v17, v23, v17, vcc")
        A(f"buffer_load_dword a255, v17, {srd(sOUT)}, s{sT1} offen")
    if stamps:
        A(f"s_lshl_b32 s{sT1}, s2, 8"); A(f"s_add_u32 s{sT1}, s{sT1}, {STAMP_OFF}")
        A(f"s_add_u32 s16, s18, s{sT1}"); A("s_addc_u32 s17, s19, 0")
        A("v_and_b32 v17, 128, v18")
        A("global_load_dword a255, v17, s[16:17]")
    A(f"s_and_b32 s{sT0}, s3, 1"); A(f"s_lshl_b32 s{sT1}, s{sKVH}, 1"); A(f"s_add_u32 s{sT0}, s{sT0}, s{sT1}"); A(f"s_lshl_b32 s{sT0}, s{sT0}, 8")
    A(f"s_lshr_b32 s{sT1}, s3, 1"); A(f"s_mul_i32 s61, s{sT1}, {288*8192}"); A(f"s_add_u32 s{sT0}, s{sT0}, s61")
    mksrd(sWQ, 10, f"s{sT0}", 287*8192+256)
    A("v_lshlrev_b32 v22, 4, v21"); A(f"v_lshl_add_u32 v{vWQ}, v20, 16, v22")
    A(f"s_mul_i32 s{sT1}, s{sT1}, 576"); A(f"s_add_u32 s{sT1}, s{sT1}, {L_XI}")
    A("v_mul_u32_u24 v22, 1152, v21"); A("v_lshl_add_u32 v22, v20, 4, v22"); A(f"v_add_u32 v{vX}, s{sT1}, v22")
    A(f"s_mul_i32 s{sT0}, s{sKVH}, {256*1152}")
    A(f"s_mul_i32 s{sT1}, s{sSPL}, 576"); A(f"s_add_u32 s{sT0}, s{sT0}, s{sT1}")
    A(f"s_mul_i32 s{sT1}, s3, 192"); A(f"s_add_u32 s{sT0}, s{sT0}, s{sT1}")
    mksrd(sWO, 12, f"s{sT0}", 255*1152+192)
    mksrd(sWS, 18, wsbase, WS_USED)
    A("s_cmp_eq_u32 s3, 3"); A(f"s_cselect_b32 s{sWO+2}, 0, s{sWO+2}")
    if noOB: A(f"s_mov_b32 s{sWO+2}, 0")
    if noQB: A(f"s_mov_b32 s{sWQ+2}, 0")
    A(f"s_lshl_b32 s{sT0}, s{sB}, 8"); A(f"s_load_dword s{sE1}, s[{sWS}:{sWS+1}], s{sT0}")
    A(f"s_mov_b32 s{sSELL}, 0x05040100"); A(f"s_mov_b32 s{sSELH}, 0x07060302"); A(f"s_mov_b32 s{sSC}, {SCALE:#x}")
    A(f"s_getreg_b32 s{sXCC}, hwreg(HW_REG_XCC_ID, 0, 4)")
    A("v_mul_u32_u24 v22, 4608, v20"); A("v_mul_u32_u24 v23, 12, v21"); A(f"v_add_u32 v{vWO}, v22, v23")
    A("v_and_b32 v22, 3, v21"); A("v_lshlrev_b32 v22, 2, v22"); A("v_lshrrev_b32 v23, 2, v21"); A("v_add_u32 v22, v22, v23")
    A("v_lshlrev_b32 v23, 2, v20"); A("v_xor_b32 v23, v23, v22"); A("v_lshlrev_b32 v23, 4, v23"); A("v_lshl_add_u32 v23, v21, 8, v23")
    A(f"v_add_u32 v{vKR}, s{sLK}, v23")
    for s in range(1, 4): A(f"v_xor_b32 v{vKR+s}, {s<<4}, v{vKR}")
    A(f"v_mov_b32 v{vMX}, 0xff800000"); A(f"v_mov_b32 v{vMX+1}, 0xff800000")

    mvseq = {}
    def k_move(blk):
        it = [lambda: A.wait_vm(kseq[blk, 7])]
        for t in range(2):
            for s in range(4):
                def f(t=t, s=s):
                    mvseq[blk] = A(f"ds_read_b128 {ar(blk*32+t*16+s*4)}, v{vKR+s} offset:{(blk%3)*8192+t*4096}")
                it.append(f)
        return it
    def qk(blk):
        it = [lambda: A.wait_lg(mvseq[blk])]
        for s in range(4):
            for t in range(2):
                for h in range(2):
                    d = vr(vS + blk*16 + h*8 + t*4)
                    it.append(f"{MF} {d}, {ar(blk*32+t*16+s*4)}, {vr(vQ+h*16+s*4)}, {d if s else 0}")
        return it
    def rmax(blk):
        it = []
        for k in range(4):
            for h in range(2):
                b = vS + blk*16 + h*8 + 2*k
                it.append(f"v_max3_f32 v{vMX+h}, v{vMX+h}, v{b}, v{b+1}")
        return it
    def site(name, which, blk, loads):
        A.wait_lg_all()
        A(f"s_mov_b32 s{sNX}, {blk*8192}")
        A(f"s_cmp_eq_u32 s{sSPL}, {which}")
        A(f"s_cbranch_scc1 L_{name}")
        for f in loads: f()
        A.vm_done = min(A.vm_done, A.vm - 9)
        A.label(f"L_{name}_ret{which}")
    def do_pretouch():
        A(f"s_lshl_b32 s{sT0}, s{sPID}, 14"); A(f"s_lshl_b32 s{sT1}, s3, 12"); A(f"s_add_u32 s{sT0}, s{sT0}, s{sT1}"); A(f"s_add_u32 s{sT0}, s{sT0}, {XO_OFF}")
        A(f"v_lshl_add_u32 v{vT}, v0, 7, s{sT0}")
        A(f"s_mul_i32 s{sT0}, s3, 24"); A(f"s_sub_u32 s{sT0}, s{sT0}, 24"); A(f"v_add_u32 v{vT+1}, s{sT0}, v0")
        A(f"v_mul_u32_u24 v{vT+2}, 10923, v{vT+1}"); A(f"v_lshrrev_b32 v{vT+2}, 16, v{vT+2}")
        A(f"v_mul_u32_u24 v{vT+2}, {12288-768}, v{vT+2}"); A(f"v_lshl_add_u32 v{vT+2}, v{vT+1}, 7, v{vT+2}")
        A(f"s_lshl_b32 s{sT0}, s{sB}, 1"); A(f"s_add_u32 s{sT0}, s{sT0}, s{sSPL}"); A(f"s_mul_i32 s{sT0}, s{sT0}, 196608")
        A(f"s_mul_i32 s{sT1}, s{sKVH}, 768"); A(f"s_add_u32 s{sT0}, s{sT0}, s{sT1}"); A(f"s_add_u32 s{sT0}, s{sT0}, {PY_OFF}")
        A(f"v_add_u32 v{vT+2}, s{sT0}, v{vT+2}")
        A(f"v_cmp_gt_u32 vcc, 24, v0"); A(f"v_mov_b32 v{vT+3}, 0x7ffffff0"); A(f"v_cndmask_b32 v{vT}, v{vT+2}, v{vT}, vcc")
        A(f"v_cmp_gt_u32 vcc, {48 if 'p' in pt else 24}, v0"); A(f"v_cndmask_b32 v{vT}, v{vT+3}, v{vT}, vcc")
        if 'x' not in pt:
            A(f"v_cmp_lt_u32 vcc, 23, v0"); A(f"v_cndmask_b32 v{vT}, v{vT+3}, v{vT}, vcc")
        A(f"buffer_load_dword a255, v{vT}, {srd(sWS)}, 0 offen {ptf}")
    def post_k(blk):
        stamp_at(A, f"k{blk}")
        if blk == pretouch: do_pretouch()

    site("QB", 0, 1, k_loads(1))
    A(f"s_add_u32 s{sE1}, s{sE1}, 1")
    post_k(1)
    mix(A, k_move(0), k_loads(2)); post_k(2)
    A.wait_lg(mvseq[0])
    mix(A, k_move(1), k_loads(3)); post_k(3)
    site("QB", 1, 4, k_loads(4)); post_k(4)
    stamp_at(A, "qb1")
    run(k_move(2)); A.wait_lg(mvseq[2])
    mix(A, k_move(3) + qk(0) + qk(1) + rmax(0) + qk(2) + rmax(1), k_loads(5)); post_k(5)
    A.wait_lg(mvseq[3])
    mix(A, k_move(4) + qk(3) + rmax(2) + qk(4) + rmax(3), k_loads(6)); post_k(6)
    mix(A, k_move(5) + qk(5) + rmax(4) + tail_addr(), k_loads(7)); post_k(7)
    vseq = {}
    def v_load(B, blk, i, D, dyn=False):
        def f():
            B.wait_vm_n(D - 1)
            if i % 4 == 0:
                if dyn: B(f"s_add_u32 s{sSO}, s{sNX}, {(i//4)*4096}")
                else: B(f"s_mov_b32 s{sSO}, {blk*8192 + (i//4)*4096}")
                B(f"s_add_u32 m0, s{sLK}, {((blk+2)%3)*8192 + (i//4)*4096}")
            q = B(f"buffer_load_dwordx4 v{vVA+(i&1)}, {srd(sV)}, s{sSO} offen offset:{(i&3)*1024} {vf} lds")
            if not dyn: vseq[blk, i] = q
        return f
    def v_loads(blk): return [v_load(A, blk, i, DV[blk]) for i in range(8)]
    run(["v_lshrrev_b32 v176, 4, v0", "v_and_b32 v177, 15, v0", "v_lshlrev_b32 v178, 1, v176", "v_xor_b32 v177, v177, v178",
         "v_lshlrev_b32 v177, 4, v177", f"v_lshl_add_u32 v{vVA}, v176, 8, v177", f"v_xor_b32 v{vVA+1}, 0x80, v{vVA}",
         f"s_lshl_b32 s{sT0}, s3, 11", f"s_add_u32 s{sT0}, s{sT0}, {L_PX}", f"v_add_u32 v{vPW}, s{sT0}, v{vLIN}", f"v_add_u32 v{vPR}, {L_PX}, v{vLIN}"])
    mix(A, k_move(6) + qk(6) + rmax(5), v_loads(0))
    vl = v_loads(1)
    cut = 0
    comp = k_move(7) + rmax(6) + qk(7)
    comp += ["v_and_b32 v176, 15, v0", f"s_lshl_b32 s{sT0}, s3, 2",
             "v_lshlrev_b32 v176, 4, v176", f"v_add_u32 v176, {L_MX}, v176",
             f"v_add_u32 v177, s{sT0}, v176"]
    comp += rmax(7)
    for h in range(2): comp.append(f"v_mov_b32 v{178+h}, v{vMX+h}")
    for h in range(2): comp.append(f"v_permlane32_swap_b32 v{178+h}, v{vMX+h}")
    for h in range(2): comp.append(f"v_max_f32 v{vMX+h}, v{vMX+h}, v{178+h}")
    for h in range(2): comp.append(f"v_mov_b32 v{178+h}, v{vMX+h}")
    for h in range(2): comp.append(f"v_permlane16_swap_b32 v{178+h}, v{vMX+h}")
    for h in range(2): comp.append(f"v_max_f32 v{vMX+h}, v{vMX+h}, v{178+h}")
    comp += [f"ds_write_b32 v177, v{vMX}", f"ds_write_b32 v177, v{vMX+1} offset:256",
             lambda: A.wait_lg_all(), "s_barrier",
             f"ds_read_b128 {vr(180)}, v176", f"ds_read_b128 {vr(184)}, v176 offset:256",
             lambda: A.wait_lg_all()]
    for h in range(2): comp.append(f"v_max3_f32 v{vMX+h}, v{180+4*h}, v{181+4*h}, v{182+4*h}")
    for h in range(2): comp.append(f"v_max_f32 v{vMX+h}, v{vMX+h}, v{183+4*h}")
    for h in range(2): comp.append(f"v_mul_f32 v{vMX+h}, s{sSC}, v{vMX+h}")
    cut2 = 6
    mix(A, comp, vl[cut:cut2])
    run(["v_lshrrev_b32 v178, 2, v0", "v_and_b32 v179, 7, v178", "v_lshlrev_b32 v179, 1, v179",
         "v_bfe_u32 v180, v0, 1, 1", f"s_lshl_b32 s{sT0}, s3, 2", f"v_or_b32 v180, s{sT0}, v180",
         "v_xor_b32 v179, v179, v180", "v_lshlrev_b32 v179, 4, v179", "v_lshl_add_u32 v179, v178, 8, v179",
         "v_and_b32 v180, 1, v0", f"v_lshl_add_u32 v{vVR}, v180, 3, v179",
         f"v_xor_b32 v{vVR+1}, 32, v{vVR}", f"v_add_u32 v{vVR+2}, {2*L_KW}, v{vVR}", f"v_add_u32 v{vVR+3}, {2*L_KW}, v{vVR+1}"])
    stamp_at(A, "mxdone")
    def softmax(blk):
        it = []
        for h in range(2):
            b = vS + blk*16 + h*8
            for k in range(8): it.append(f"v_fma_f32 v{b+k}, v{b+k}, s{sSC}, -v{vMX+h}")
            for k in range(8): it.append(f"v_exp_f32 v{b+k}, v{b+k}")
        for h in range(2):
            b = vS + blk*16 + h*8
            for k in range(4): it.append(f"v_cvt_pk_bf16_f32 v{vS+blk*8+h*4+k}, v{b+2*k}, v{b+2*k+1}")
        return it
    def lsum(blk):
        return [f"{MF} {vr(vT+8+4*h)}, {vr(vT)}, {vr(vS+blk*8+h*4)}, {vr(vT+8+4*h) if blk else 0}" for h in range(2)]
    comp = [f"v_mov_b32 v{vT+k}, 0x3f803f80" for k in range(4)]
    for blk in range(8):
        comp += softmax(blk)
        if blk: comp += lsum(blk-1)
    comp += lsum(7)
    comp += ["v_and_b32 v1, 15, v0", f"s_lshl_b32 s{sT0}, s3, 2", f"v_lshl_add_u32 v1, v1, 4, s{sT0}", f"v_add_u32 v1, {L_LX}, v1",
             f"ds_write_b32 v1, v{vT+8}", f"ds_write_b32 v1, v{vT+12} offset:256"]
    def pwrite(j):
        return [f"ds_write_b128 v{vPW}, {vr(vS+j*8+h*4)} offset:{(j%4)*8192+h*1024}" for h in range(2)]
    comp += pwrite(0) + pwrite(1)
    mix(A, comp, vl[cut2:] + v_loads(2))
    stamp_at(A, "smdone")

    def sync(j):
        return [lambda: A.wait_vm(vseq[j, 7]), lambda: A.wait_lg_all(), "s_barrier"]
    rd = {}
    def preads(j):
        it = []
        for src in range(4):
            for h in range(2):
                def f(src=src, h=h): rd["p", src, h] = A(f"ds_read_b128 {vr(vPM+src*8+h*4)}, v{vPR} offset:{(j%4)*8192+src*2048+h*1024}")
                it.append(f)
        return it
    def rnd(j, withp=True):
        it = []
        pr = preads(j) if withp else []
        for src in range(4):
            it += pr[2*src:2*src+2]
            for t2 in range(2):
                for t in range(2):
                    def f(src=src, t2=t2, t=t):
                        rd["v", src, t2] = A(f"ds_read_b64_tr_b16 {vr(vVT+src*8+t2*4+t*2, 2)}, v{vVR+t2+2*(src>>1)} offset:{(src&1)*L_KW+((j+2)%3)*8192+t*4096}")
                    it.append(f)
        if j + 2 < 8: it += pwrite(j + 2)
        for src in range(4):
            for t2 in range(2):
                it.append(lambda src=src, t2=t2: A.wait_lg(rd["v", src, t2]))
                for h in range(2):
                    d = vr(vACC + h*8 + t2*4)
                    it.append(f"{MF} {d}, {vr(vVT+src*8+t2*4)}, {vr(vPM+src*8+h*4)}, {d if (j or src) else 0}")
        return it
    run(sync(0))
    run(["v_and_b32 v1, 15, v0", "v_lshlrev_b32 v1, 4, v1", f"v_add_u32 v1, {L_LX}, v1",
         f"ds_read_b128 {vr(176)}, v1", f"ds_read_b128 {vr(180)}, v1 offset:256"])
    run(rnd(0))
    run(["v_add_f32 v176, v176, v177", "v_add_f32 v180, v180, v181", "v_add_f32 v178, v178, v179", "v_add_f32 v182, v182, v183",
         f"v_add_f32 v{vWQ}, v176, v178", f"v_add_f32 v{vX}, v180, v182",
         "v_and_b32 v1, 16, v0", "v_cmp_eq_u32 vcc, 0, v1",
         f"s_lshl_b32 s{sT0}, s{sXCC}, 28", f"s_xor_b32 s{sT0}, s{sT0}, s{sE1}",
         f"v_mov_b32 v186, s{sE1}", f"v_mov_b32 v187, s{sT0}",
         f"v_cndmask_b32 v184, v{vMX+1}, v{vMX}, vcc", f"v_cndmask_b32 v185, v{vX}, v{vWQ}, vcc",
         "v_and_b32 v1, 31, v0", "v_lshlrev_b32 v1, 4, v1",
         f"s_lshl_b32 s{sT0}, s{sPID}, 9", f"s_add_u32 s{sT0}, s{sT0}, {XS_OFF}"])
    A("s_cmp_lg_u32 s3, 0"); A("s_cbranch_scc1 L_nostat")
    A.raw(f"    buffer_store_dwordx4 {vr(184)}, v1, {srd(sWS)}, s{sT0} offen {pubf}")
    A.raw("    s_nop 1")
    A.label("L_nostat")
    run(sync(1))
    site("OB", 0, 3, v_loads(3)); stamp_at(A, "v3")
    run(rnd(1))
    run(sync(2)); mix(A, rnd(2), v_loads(4)); stamp_at(A, "v4")
    run(sync(3)); mix(A, rnd(3), v_loads(5)); stamp_at(A, "v5")
    run(sync(4))
    site("OB", 1, 6, v_loads(6)); stamp_at(A, "v6")
    statseq = {}
    def ldstat(h):
        def f():
            if h == 0:
                A("v_and_b32 v1, 15, v0"); A("v_lshlrev_b32 v1, 4, v1")
                A(f"s_xor_b32 s{sNX}, s{sPID}, 1"); A(f"s_lshl_b32 s{sNX}, s{sNX}, 9"); A(f"s_add_u32 s{sNX}, s{sNX}, {XS_OFF}")
            statseq[h] = A(f"buffer_load_dwordx4 {vr(72+4*h)}, v1, {srd(sWS)}, s{sNX} offen offset:{h*256} {ldf}")
        return f
    mix(A, rnd(4), [ldstat(0), ldstat(1)])
    run(sync(5)); mix(A, rnd(5), v_loads(7))
    run([lambda: A.wait_vm(statseq[1])] + stat_scales(A, local))
    run(sync(6)); run(rnd(6)); run(preads(7))
    run([f"v_mov_b32 v{103+4*k}, s{sE1}" for k in range(3)])
    stamp_at(A, "v7")
    sy = sync(7)
    run(sy[:1]); stamp_at(A, "v7land"); run(sy[1:]); stamp_at(A, "v7b")
    if "notail" in exp: A("s_branch L_fin")
    run(rnd(7, withp=False))
    tail(A, pubf, ldf, stamp_at, sleepx, sleepg, outf)
    A.label("L_fin")
    if stamps:
        A(f"s_lshl_b32 s{sT0}, s2, 2"); A(f"s_add_u32 s{sT0}, s{sT0}, s3"); A(f"s_lshl_b32 s{sT0}, s{sT0}, 6")
        A(f"s_add_u32 s{sT0}, s{sT0}, {STAMP_OFF}")
        A(f"s_add_u32 s18, s18, s{sT0}"); A("s_addc_u32 s19, s19, 0")
        A("v_mov_b32 v1, 0")
        for j in range(4):
            for k in range(4): A(f"v_mov_b32 v{4+k}, s{sSTAMP+4*j+k}")
            A(f"global_store_dwordx4 v1, v[4:7], s[18:19] offset:{16*j} sc1")
    A.label("L_end")
    A("s_endpgm")

    B = Asm()
    B.label("L_QB")
    stamp_at(B, "qbs"); stamp_at(B, "cnt_clk0")
    qs = {}
    def q_load(u, i):
        def f():
            B.wait_vm_n(DQ - 1)
            B(f"s_mov_b32 s{sSO}, {(u*32+i)*8192}")
            qs[u, i] = B(f"buffer_load_dwordx4 {vr(WQR[u%3]+4*i)}, v{vWQ}, {srd(sWQ)}, s{sSO} offen {w2f}")
        return f
    xs = {}
    def q_cons(u):
        it = [lambda: B.wait_vm(qs[u, 7]), lambda: B.wait_lg(xs[u])]
        if "nocomp" in exp: return it
        for q in range(4):
            tb = vT + (q & 1) * 8
            it += perms(WQR[u % 3], q, tb)
            for jo in range(2):
                d = vr(vQA + (2*q+jo)*4)
                it.append(f"{MF} {d}, {vr(tb+4*jo)}, {vr(vXO_+4*u)}, {d if u else 0}")
        return it
    for u in (0, 1):
        for i in range(8): q_load(u, i)()
    B.wait_vm(qs[0, 0]); B("s_barrier")
    for u in range(9): xs[u] = B(f"ds_read_b128 {vr(vXO_+4*u)}, v{vX} offset:{u*64}")
    for u in range(0, 7):
        mix(B, q_cons(u), [q_load(u+2, i) for i in range(8)])
    kn = [k_load(B, 1, i, 24, dyn=True) for i in range(8)]
    mix(B, q_cons(7), kn)
    mix(B, q_cons(8), [])
    stamp_at(B, "qbl"); stamp_at(B, "cnt_clk1")
    B(f"s_lshl_b32 s{sT0}, s3, 13"); B(f"s_add_u32 s{sT0}, s{sT0}, {L_QR}"); B(f"v_add_u32 v1, s{sT0}, v{vLIN}")
    for j in range(8): B(f"ds_write_b128 v1, {vr(vQA+4*j)} offset:{j*1024}")
    B(f"v_add_u32 v1, {L_QR}, v{vLIN}")
    B.wait_lg_all(); B("s_barrier")
    rs = {}
    for h in range(2):
        for j in range(8):
            for k in range(2):
                rs[h, j, k] = B(f"ds_read_b128 {vr(vS+h*64+j*8+k*4)}, v1 offset:{(h+2*k)*8192+j*1024}")
    for h in range(2):
        for p in range(4):
            B.wait_lg(rs[h, 2*p+1, 1])
            for jo in range(2):
                b = vS + h*64 + (2*p+jo)*8
                for r in range(4): B(f"v_add_f32 v{b+r}, v{b+r}, v{b+4+r}")
            for r in range(4):
                B(f"v_cvt_pk_bf16_f32 v{vQ+h*16+r*4+p}, v{vS+h*64+(2*p)*8+r}, v{vS+h*64+(2*p+1)*8+r}")
    stamp_at(B, "qbe")
    B(f"s_cmp_eq_u32 s{sSPL}, 0"); B("s_cbranch_scc1 L_QB_ret0"); B("s_branch L_QB_ret1")

    C = Asm()
    C.label("L_OB")
    stamp_at(C, "obs")
    C("s_cmp_eq_u32 s3, 3"); C("s_cbranch_scc1 L_OB3")
    os_ = {}
    OSL = [0, 1, 2, 0, 1, 2, 0, 1]
    def o_load(s, i):
        def f():
            C.wait_vm_n(DQ - 1)
            h, r = s >> 2, s & 3
            off = (h*128 + r*32 + (i>>2)*16 + (i&3)) * 1152
            so = off // 4096 * 4096
            C(f"s_mov_b32 s{sSO}, {so}")
            os_[s, i] = C(f"buffer_load_dwordx3 {vr(WOS[OSL[s]]+4*i, 3)}, v{vWO}, {srd(sWO)}, s{sSO} offen offset:{off-so} {w2f}")
        return f
    def o_cons(s):
        it = [lambda: C.wait_vm(os_[s, 7])]
        for q in range(3):
            tb = vT + (q & 1) * 8
            it += perms(WOS[OSL[s]], q, tb)
            for k in range(8): it.append(f"v_accvgpr_write_b32 a{s*24+q*8+k}, v{tb+k}")
        return it
    for s in (0, 1):
        for i in range(8): o_load(s, i)()
    for s in range(6):
        mix(C, o_cons(s), [o_load(s+2, i) for i in range(8)])
    mix(C, o_cons(6), [v_load(C, 3, i, 24, dyn=True) for i in range(8)])
    mix(C, o_cons(7), [])
    stamp_at(C, "obe")
    C(f"s_cmp_eq_u32 s{sSPL}, 0"); C("s_cbranch_scc1 L_OB_ret0"); C("s_branch L_OB_ret1")
    C.label("L_OB3")
    for i in range(8): v_load(C, 3, i, 63, dyn=True)()
    C(f"s_cmp_eq_u32 s{sSPL}, 0"); C("s_cbranch_scc1 L_OB_ret0"); C("s_branch L_OB_ret1")

    D = Asm()
    D.label("L_statpoll")
    D(f"s_mov_b32 s{sCNT}, {POLL_MAX}")
    D.label("L_statloop")
    for h in range(2): D(f"buffer_load_dwordx4 {vr(72+4*h)}, v1, {srd(sWS)}, s{sNX} offen offset:{h*256} {ldf}")
    D("s_waitcnt vmcnt(0)")
    for c in stat_check(): D(c)
    D("s_cbranch_scc1 L_statok")
    D(f"s_sub_u32 s{sCNT}, s{sCNT}, 1"); D(f"s_cmp_lg_u32 s{sCNT}, 0"); D("s_cbranch_scc1 L_statloop")
    D("s_endpgm")

    out = A.text() + B.text() + C.text() + D.text() + "L_codeend:\n" + "    s_nop 0\n" * 64
    out += f""".section .rodata,"a"
.p2align 6
.amdhsa_kernel {KNAME}
  .amdhsa_next_free_vgpr 512
  .amdhsa_next_free_sgpr 102
  .amdhsa_accum_offset 256
  .amdhsa_group_segment_fixed_size 0
  .amdhsa_kernarg_size 64
  .amdhsa_user_sgpr_count 2
  .amdhsa_user_sgpr_kernarg_segment_ptr 1
  .amdhsa_system_sgpr_workgroup_id_x 1
.end_amdhsa_kernel
"""
    return out

def tail_addr():
    it = []
    a = it.append
    a("v_and_b32 v176, 15, v0"); a("v_lshrrev_b32 v177, 4, v0")
    a("v_mul_u32_u24 v178, 12288, v176"); a(f"v_lshl_add_u32 v{vPUB}, v177, 4, v178")
    a("v_mul_u32_u24 v178, 768, v177"); a(f"v_lshl_add_u32 v{vGAT}, v176, 4, v178")
    a(f"s_lshl_b32 s{sT0}, s{sB}, 1"); a(f"s_add_u32 s{sT0}, s{sT0}, s{sSPL}")
    a(f"s_mul_i32 s{sT0}, s{sT0}, 196608"); a(f"s_lshl_b32 s{sT1}, s3, 8"); a(f"s_add_u32 s{sT0}, s{sT0}, s{sT1}"); a(f"s_add_u32 s{sT0}, s{sT0}, {PY_OFF}")
    a(f"s_mul_i32 s{sT1}, s{sKVH}, 768"); a(f"s_add_u32 s{sPB}, s{sT0}, s{sT1}")
    a(f"s_mul_i32 s{sT1}, s{sKVH}, 12288"); a(f"s_add_u32 s{sGA}, s{sT0}, s{sT1}"); a(f"s_add_u32 s{sGA+1}, s{sGA}, 6144")
    a("v_cmp_eq_u32 vcc, 3, v177"); a("v_bfe_u32 v178, v0, 2, 2"); a("v_cndmask_b32 v177, v177, 1, vcc")
    a("v_mad_u32_u24 v178, v178, 3, v177")
    a("v_and_b32 v179, 3, v178"); a("v_mul_u32_u24 v179, 12, v179"); a("v_and_b32 v178, 12, v178"); a("v_add_u32 v179, v179, v178")
    a("v_and_b32 v178, 3, v0"); a(f"v_mad_u32_u24 v{vOUT}, v178, 48, v179")
    a(f"s_lshr_b32 s{sT0}, s{sPID}, 1"); a(f"s_mul_i32 s{sOB}, s{sT0}, 1152"); a(f"s_mul_i32 s{sT0}, s{sSPL}, 576"); a(f"s_add_u32 s{sOB}, s{sOB}, s{sT0}")
    a(f"s_mul_i32 s{sT0}, s3, 192"); a(f"s_add_u32 s{sOB}, s{sOB}, s{sT0}")
    a(f"s_lshl_b32 s{sT0}, s3, 10"); a(f"s_add_u32 s{sT0}, s{sT0}, {L_BX}"); a(f"v_add_u32 v{vBXW}, s{sT0}, v{vLIN}")
    a(f"s_lshl_b32 s{sXOo}, s{sPID}, 14"); a(f"s_lshl_b32 s{sT0}, s3, 12"); a(f"s_add_u32 s{sXOo}, s{sXOo}, s{sT0}")
    a(f"s_xor_b32 s{sXOp}, s{sXOo}, {1<<14}")
    a(f"s_add_u32 s{sXOo}, s{sXOo}, {XO_OFF}"); a(f"s_add_u32 s{sXOp}, s{sXOp}, {XO_OFF}")
    for n in (sXL, sXG):
        a(f"s_mov_b32 s{n}, s{sWS}"); a(f"s_mov_b32 s{n+1}, s{sWS+1}"); a(f"s_mov_b32 s{n+3}, 0x20000")
    return it

def stat_check():
    return [f"v_xor_b32 v80, s{sE1}, v74", f"v_xor_b32 v81, s{sE1}, v75", f"v_xor_b32 v82, s{sE1}, v78", f"v_xor_b32 v83, s{sE1}, v79",
            "v_or_b32 v84, v81, v83", "v_and_b32 v84, 0x0fffffff, v84",
            "v_or3_b32 v80, v80, v84, v82", "v_cmp_eq_u32 vcc, 0, v80", "s_cmp_eq_u64 vcc, -1"]

def stat_scales(A, local):
    it = stat_check()
    def br():
        A("s_cbranch_scc0 L_statpoll")
        A.label("L_statok")
    it.append(br)
    it += [f"v_readfirstlane_b32 s{sT0}, v81", f"s_lshr_b32 s{sT0}, s{sT0}, 28", f"s_cmp_eq_u32 s{sT0}, s{sXCC}",
           f"s_cselect_b32 s{sXL+2}, {WS_USED if local else 0}, 0", f"s_cselect_b32 s{sXG+2}, {0 if local else WS_USED}, {WS_USED}"]
    for h in range(2):
        it += [f"v_max_f32 v{80+h}, v{vMX+h}, v{72+4*h}"]
    for h in range(2):
        it += [f"v_sub_f32 v{82+h}, v{vMX+h}, v{80+h}", f"v_sub_f32 v{84+h}, v{72+4*h}, v{80+h}"]
    for h in range(2):
        it += [f"v_exp_f32 v{82+h}, v{82+h}", f"v_exp_f32 v{84+h}, v{84+h}"]
    for h in range(2):
        it += [f"v_mul_f32 v{84+h}, v{84+h}, v{73+4*h}"]
    for h in range(2):
        it += [f"v_fma_f32 v{84+h}, v{82+h}, v{vWQ+h}, v{84+h}"]
    for h in range(2):
        it += [f"v_rcp_f32 v{84+h}, v{84+h}"]
    for h in range(2):
        it += [f"v_mul_f32 v{vWQ+h}, v{82+h}, v{84+h}"]
    return it

def poll(A, name, loads, tags, slp):
    A(f"s_mov_b32 s{sCNT}, {POLL_MAX}")
    A.label(name)
    for l in loads: A(l)
    A("s_waitcnt vmcnt(0)")
    A.vm_done = A.vm - 1
    for k, t in enumerate(tags): A(f"v_xor_b32 v{70+k}, s{sE1}, v{t}")
    A("v_or3_b32 v70, v70, v71, v72")
    if len(tags) == 4: A("v_or_b32 v70, v70, v73")
    A("v_cmp_eq_u32 vcc, 0, v70"); A("s_cmp_eq_u64 vcc, -1")
    A(f"s_cbranch_scc1 {name}_ok")
    if slp: A(f"s_sleep {slp}")
    A(f"s_sub_u32 s{sCNT}, s{sCNT}, 1"); A(f"s_cmp_lg_u32 s{sCNT}, 0"); A(f"s_cbranch_scc1 {name}")
    A("s_endpgm")
    A.label(f"{name}_ok")

def tail(A, pubf, ldf, stamp_at, sleepx, sleepg, outf):
    XG = 100
    def xreg(k): return XG + (k // 3) * 4 + k % 3
    sent = 0
    for x in range(4):
        b = vACC + x*4
        for r in range(4): A(f"v_mul_f32 v{b+r}, v{b+r}, v{vWQ+(x>>1)}")
        for p in range(2): A(f"v_cvt_pk_bf16_f32 v{xreg(2*x+p)}, v{b+2*p}, v{b+2*p+1}")
        while sent < 3 and min(3*sent + 2, 7) <= 2*x + 1:
            A(f"buffer_store_dwordx4 {vr(XG+sent*4)}, v{vLIN}, {srd(sXL)}, s{sXOo} offen offset:{sent*1024}")
            A(f"buffer_store_dwordx4 {vr(XG+sent*4)}, v{vLIN}, {srd(sXG)}, s{sXOo} offen offset:{sent*1024} {pubf}")
            sent += 1
    stamp_at(A, "xst")
    poll(A, "L_xp", [f"buffer_load_dwordx4 {vr(112+4*x)}, v{vLIN}, {srd(sWS)}, s{sXOp} offen offset:{x*1024} {ldf}" for x in range(3)], [115, 119, 123], sleepx)
    stamp_at(A, "cntx"); stamp_at(A, "xok")
    for h in range(2):
        for p in range(4):
            k = h*4 + p; src = 112 + (k // 3) * 4 + k % 3
            A(f"v_lshlrev_b32 v{16+2*k}, 16, v{src}"); A(f"v_and_b32 v{17+2*k}, 0xffff0000, v{src}")
        for e in range(8): A(f"v_add_f32 v{16+h*8+e}, v{16+h*8+e}, v{vACC+h*8+e}")
        for p in range(4): A(f"v_cvt_pk_bf16_f32 v{128+h*4+p}, v{16+h*8+2*p}, v{17+h*8+2*p}")
        A(f"ds_write_b128 v{vBXW}, {vr(128+h*4)} offset:{h*4096}")
    A.wait_lg_all(); A("s_barrier")
    A("s_cmp_eq_u32 s3, 3"); A("s_cbranch_scc1 L_fin")
    stamp_at(A, "bxb")
    bs = [A(f"ds_read_b128 {vr(136+4*s)}, v{vPR} offset:{s*1024}") for s in range(8)]
    PG = 192
    def preg(D): return PG + (D // 3) * 4 + D % 3
    def pack(jp):
        for r in range(4): A(f"v_cvt_pk_bf16_f32 v{preg(jp*4+r)}, v{168+8*jp+r}, v{172+8*jp+r}")
    def pub(gm): A(f"buffer_store_dwordx4 {vr(PG+gm*4)}, v{vPUB}, {srd(sWS)}, s{sPB} offen offset:{gm*64} {pubf}")
    for k in range(4): A(f"v_mov_b32 v{PG+3+4*k}, s{sE1}")
    for jp in range(3):
        for s in range(8):
            A.wait_lg(bs[s])
            for j in (2*jp, 2*jp+1):
                d = vr(168 + 4*j)
                A(f"{MF} {d}, {ar(s*24+j*4)}, {vr(136+4*s)}, {d if s else 0}")
            if jp and s == 4:
                pack(jp - 1); pub(jp - 1)
    pack(2); pub(2); pub(3)
    stamp_at(A, "pub")
    GB = 208
    poll(A, "L_gp", [f"buffer_load_dwordx4 {vr(GB+4*k)}, v{vGAT}, {srd(sWS)}, s{sGA+(k>>1)} offen offset:{(k&1)*3072} {ldf}" for k in range(4)],
         [GB+3+4*k for k in range(4)], sleepg)
    stamp_at(A, "cntg"); stamp_at(A, "gok")
    for k in range(4):
        for d in range(3):
            A(f"v_lshlrev_b32 v{16+8*k+d}, 16, v{GB+4*k+d}"); A(f"v_and_b32 v{20+8*k+d}, 0xffff0000, v{GB+4*k+d}")
    for e in (0, 1, 2, 4, 5, 6):
        A(f"v_add_f32 v{16+e}, v{16+e}, v{24+e}"); A(f"v_add_f32 v{32+e}, v{32+e}, v{40+e}")
    for e in (1, 5, 0, 4, 2, 6): A(f"v_add_f32 v{16+e}, v{16+e}, v{32+e}")
    A("v_mov_b32 v19, v17"); A("v_mov_b32 v23, v21")
    for (a_, b_) in ((16, 18), (20, 22), (17, 19), (21, 23)): A(f"v_permlane32_swap_b32 v{a_}, v{b_}")
    for (a_, b_) in ((16, 18), (20, 22), (17, 19), (21, 23)): A(f"v_add_f32 v{a_}, v{a_}, v{b_}")
    A("v_permlane16_swap_b32 v16, v17"); A("v_permlane16_swap_b32 v20, v21")
    A("v_add_f32 v16, v16, v17"); A("v_add_f32 v20, v20, v21")
    A("v_cvt_pk_bf16_f32 v16, v16, v20")
    A(f"buffer_store_dword v16, v{vOUT}, {srd(sOUT)}, s{sOB} offen {outf}")
    A(f"s_or_b32 s{sT0}, s{sKVH}, s{sSPL}"); A(f"s_or_b32 s{sT0}, s{sT0}, s3"); A(f"s_cmp_lg_u32 s{sT0}, 0"); A("s_cbranch_scc1 L_noep")
    A(f"v_mov_b32 v1, s{sE1}"); A(f"s_lshl_b32 s{sT0}, s{sB}, 8"); A("v_mov_b32 v2, 0")
    A(f"buffer_store_dword v1, v2, {srd(sWS)}, s{sT0} offen")
    A.label("L_noep")
    stamp_at(A, "end")

if __name__ == "__main__":
    import json
    kw = json.loads(sys.argv[2]) if len(sys.argv) > 2 else {}
    open(sys.argv[1], "w").write(gen(**kw))
```

```python
import sys, math, struct
from asmlib import Asm

KNAME = "standalone__sliding_block_cached__sampling_kernel"
HDR = open('standalone__sliding_block_cached__sampling.s.ref').read().split('; Override')[0]

EP_OFF = 0
XS_OFF = 0x10000
XO_OFF = 0x100000
PY_OFF = 0x800000
WS_USED = 0x1000000
STAMP_OFF = 512 << 20
NS = 4
L_KW = NS * 8192
L_QR = 4 * L_KW
L_PX = L_QR
L_BX = L_QR
L_MX = L_QR + 24576
L_LX = L_MX + 512
L_XI = L_QR
LDS_BYTES = L_QR + 32768
POLL_MAX = 200000

def f32(x): return struct.unpack('<I', struct.pack('<f', x))[0]
SCALE = f32(1.4426950408889634 / math.sqrt(128.0))

sK, sV, sWQ, sWO, sX, sWS, sOUT, sWP, sPUB = 20, 24, 28, 32, 36, 40, 44, 68, 72
sXL, sXG = 28, 36
sSELL, sSELH, sSC, sTAG, sTAB, sSO, sLK, sKVH, sSPL, sB = 48, 49, 50, 51, 52, 61, 62, 63, 64, 65
sE1, sMASK = 66, 67
sPID, sXOo, sXOp, sNX, sXCC, sLVL, sCNT, sT0, sT1, sSLOT = 76, 77, 78, 79, 80, 81, 82, 83, 84, 85
sSTAMP = 86
sNS, sSTA, sNS2 = 53, 54, 55
sPB, sGA, sOB = 4, 6, 8
def srd(n): return f"s[{n}:{n+3}]"
vKA, vKR, vLIN, vWQ, vX, vWO, vMX = 2, 6, 10, 11, 12, 13, 14
vQ = 16
vS = 48
vT = 176
vVT = 16
vPM = 192
vACC = 224
vVA, vVR, vPW, vPR = 2, 6, 4, 5
vXO_ = 48
vQA = 84
WQR = [192, 224, 116]
WOS = [112, 144, 16]
vPUB, vOUT, vGAT, vBXW = 240, 241, 242, 243

def vr(b, n=4): return f"v[{b}:{b+n-1}]"
def ar(b, n=4): return f"a[{b}:{b+n-1}]"
MF = "v_mfma_f32_16x16x32_bf16"

def cost(it):
    if callable(it): return 1
    if it.startswith('v_mfma'): return 12
    if it.startswith('v_exp') or it.startswith('v_rcp'): return 8
    return 4

def mix(A, comp, loads):
    tot = sum(cost(c) for c in comp)
    n = len(loads); k = 0; acc = 0
    for c in comp:
        while k < n and acc >= tot * k / max(n, 1):
            loads[k](); k += 1
        if callable(c): c()
        else: A(c)
        acc += cost(c)
    while k < n:
        loads[k](); k += 1

def perms(R, q, tb):
    it = []
    for p in range(4): it.append(f"v_perm_b32 v{tb+p}, v{R+(2*p+1)*4+q}, v{R+(2*p)*4+q}, s{sSELL}")
    for p in range(4): it.append(f"v_perm_b32 v{tb+4+p}, v{R+(2*p+1)*4+q}, v{R+(2*p)*4+q}, s{sSELH}")
    return it

def gen(DK=(16,)*8, DV=(8,)*8, DQ=16, stamps=False, kf="nt", vf="nt", w1f="", w2f="", pubf="sc1", ldf="sc1",
        codepf=True, wsbase=0, pretouch=1, ptf="", local=True, promote=False, sleepx=0, sleepg=0, tlbwarm=True, noOB=False, noQB=False, exp="", outtouch=True, outf="", kfirst=True, pt="xp", DLO=None, lomask=0x55, DMID=None, midmask=0, siteQ=(1, 4), siteO=(4, 6), front7=8, q2=True, DQ2=12, rstage=2):
    siteQ = tuple(siteQ); siteO = tuple(siteO)
    if isinstance(DK, int): DK = (DK,) * 8
    if isinstance(DV, int): DV = (DV,) * 8
    if isinstance(DLO, int): DLO = (DLO,) * 16
    if isinstance(DMID, int): DMID = (DMID,) * 16
    dr = []
    if "nobar" in exp: dr += ["s_barrier"]
    if "nomath" in exp: dr += ["v_mfma", "v_exp", "v_fma", "v_cvt", "v_perm", "v_max3", "v_accvgpr_write"]
    if "nods" in exp: dr += ["ds_"]
    Asm.drop = tuple(dr)
    A = Asm()
    def stamp_at(B, name):
        if not stamps or name not in stamps: return
        i = stamps.index(name) + 1
        if name.startswith("cnt") and not name.startswith("cnt_clk"):
            B(f"s_sub_u32 s{sSTAMP+2*i}, {POLL_MAX}, s{sCNT}"); B(f"s_mov_b32 s{sSTAMP+2*i+1}, 0")
            return
        B.wait_lg_all()
        B(f"{'s_memtime' if name.startswith('cnt_clk') else 's_memrealtime'} s[{sSTAMP+2*i}:{sSTAMP+2*i+1}]")
        B.wait_lg_all()
    def run(comp, B=A):
        for c in comp:
            if callable(c): c()
            else: B(c)

    A.raw(HDR.rstrip())
    A.raw(f"; @launch grid=(256,1,1) block=(256,1,1) lds={LDS_BYTES}")
    A.raw('.amdgcn_target "amdgcn-amd-amdhsa--gfx950"')
    A.raw(".text"); A.raw(f".globl {KNAME}"); A.raw(".p2align 8"); A.raw(f".type {KNAME},@function"); A.raw(f"{KNAME}:")
    A("s_cmp_ge_u32 s2, 256"); A("s_cbranch_scc1 L_end")
    A("s_load_dwordx8 s[4:11], s[0:1], 0")
    A("s_load_dwordx8 s[12:19], s[0:1], 32")
    if stamps: A(f"s_memrealtime s[{sSTAMP}:{sSTAMP+1}]")
    A("s_getpc_b64 s[100:101]")
    A.raw("L_pc:")
    A("v_lshrrev_b32 v1, 6, v0")
    A("v_mov_b32 v18, v0")
    A("v_readfirstlane_b32 s3, v1")
    A("v_and_b32 v0, 63, v0")
    A(f"s_and_b32 s{sTAB}, s2, 7"); A(f"s_lshr_b32 s{sSLOT}, s2, 3")
    A(f"s_and_b32 s{sT0}, s{sSLOT}, 1"); A(f"s_lshl_b32 s61, s{sTAB}, 1"); A(f"s_add_u32 s{sKVH}, s61, s{sT0}")
    A(f"s_lshr_b32 s{sSPL}, s{sSLOT}, 1"); A(f"s_and_b32 s{sSPL}, s{sSPL}, 1")
    A(f"s_lshr_b32 s{sB}, s{sSLOT}, 2")
    A("v_lshrrev_b32 v20, 4, v0")
    A("v_and_b32 v21, 15, v0")
    A(f"v_lshlrev_b32 v{vLIN}, 4, v0")
    A("v_lshlrev_b32 v22, 2, v20"); A("v_xor_b32 v22, v21, v22"); A("v_lshlrev_b32 v22, 4, v22"); A(f"v_lshl_add_u32 v{vKA}, v20, 8, v22")
    for i in range(1, 4): A(f"v_xor_b32 v{vKA+i}, {i<<4}, v{vKA}")
    A(f"s_mul_i32 s{sLK}, s3, {L_KW}")
    A(f"s_lshl_b32 s{sPID}, s{sB}, 4"); A(f"s_add_u32 s{sPID}, s{sPID}, s{sKVH}")
    A(f"s_lshl_b32 s{sT0}, s{sPID}, 21"); A(f"s_add_u32 s{sT0}, s{sT0}, {6144*256}")
    A(f"s_lshl_b32 s{sT1}, s{sSPL}, 18"); A(f"s_add_u32 s{sT0}, s{sT0}, s{sT1}")
    A(f"s_lshl_b32 s{sT1}, s3, 16"); A(f"s_add_u32 s{sT0}, s{sT0}, s{sT1}")
    A(f"s_lshl_b32 s{sPID}, s{sPID}, 1"); A(f"s_add_u32 s{sPID}, s{sPID}, s{sSPL}")
    A("v_mov_b32 v23, 0x7ffffff0"); A("v_cmp_gt_u32 vcc, 144, v18")
    A("v_lshrrev_b32 v22, 3, v18"); A(f"s_mul_i32 s{sT1}, s{sSLOT}, 18"); A(f"v_add_u32 v22, s{sT1}, v22"); A("v_lshlrev_b32 v22, 13, v22")
    A("v_and_b32 v24, 7, v18"); A("v_lshl_add_u32 v22, v24, 7, v22"); A("v_cndmask_b32 v16, v23, v22, vcc")
    A("v_lshlrev_b32 v22, 7, v18"); A("v_cndmask_b32 v17, v23, v22, vcc")
    A("s_waitcnt lgkmcnt(0)")
    def mksrd(n, p, off, size):
        if off is None or off == 0:
            A(f"s_mov_b32 s{n}, s{p}"); A(f"s_mov_b32 s{n+1}, s{p+1}")
        else:
            A(f"s_add_u32 s{n}, s{p}, {off}"); A(f"s_addc_u32 s{n+1}, s{p+1}, 0")
        A(f"s_mov_b32 s{n+2}, {size}"); A(f"s_mov_b32 s{n+3}, 0x20000")
    mksrd(sK, 6, f"s{sT0}", 65536)
    A(f"s_lshl_b32 s{sT1}, s{sB}, 8"); A(f"s_add_u32 s{sT1}, s{sT1}, {wsbase}"); A(f"s_load_dword s{sE1}, s[18:19], s{sT1}")
    nlab = [0]
    def throttle(B, D, idx):
        B.wait_vm_n(D - 1)
        if idx is None or DLO is None: return
        lo = DLO[idx]; mid = DMID[idx] if DMID else D
        if lo >= D and mid >= D: return
        nlab[0] += 1
        if mid < D:
            B.raw(f"    s_cmp_eq_u32 s{sLVL}, 0"); B.raw(f"    s_cbranch_scc1 L_t{nlab[0]}")
            B.raw(f"    s_waitcnt vmcnt({mid-1})")
        B.raw(f"    s_cmp_lt_u32 s{sLVL}, 2"); B.raw(f"    s_cbranch_scc1 L_t{nlab[0]}")
        B.raw(f"    s_waitcnt vmcnt({lo-1})")
        B.raw(f"L_t{nlab[0]}:")
    kseq = {}
    def k_load(B, blk, i, D, dyn=False):
        def f():
            throttle(B, D, None if dyn else blk)
            if i % 4 == 0:
                if dyn: B(f"s_add_u32 s{sSO}, s{sNX}, {(dyn-1)*8192 + (i//4)*4096}")
                else: B(f"s_mov_b32 s{sSO}, {blk*8192 + (i//4)*4096}")
                if dyn: B(f"s_add_u32 m0, s{sNS if dyn == 1 else sNS2}, {(i//4)*4096}")
                else: B(f"s_add_u32 m0, s{sLK}, {(blk%NS)*8192 + (i//4)*4096}")
            q = B(f"buffer_load_dwordx4 v{vKA+(i&3)}, {srd(sK)}, s{sSO} offen offset:{(i&3)*1024} {kf} lds")
            if not dyn: kseq[blk, i] = q
        return f
    def k_loads(blk): return [k_load(A, blk, i, DK[blk]) for i in range(8)]
    k0site = 0 in siteQ
    nfirst = 0 if k0site else (8 if kfirst is True else int(kfirst))
    for i in range(nfirst): k_load(A, 0, i, 63)()
    mksrd(sWP, 10, None, 576*8192)
    A(f"s_lshl_b32 s{sT1}, s{sTAB}, 10")
    A(f"buffer_load_dword a255, v16, {srd(sWP)}, s{sT1} offen {w1f}")
    mksrd(sV, 8, f"s{sT0}", 65536)
    A(f"s_mul_i32 s{sT0}, s{sB}, 18432")
    mksrd(sX, 4, f"s{sT0}", 18432)
    A(f"s_lshl_b32 s{sT1}, s3, 10")
    for k in range(5):
        A(f"s_add_u32 m0, s{sT1}, {L_XI + k*4096}"); A(f"s_add_u32 s{sSO}, s{sT1}, {k*4096}")
        A(f"buffer_load_dwordx4 v{vLIN}, {srd(sX)}, s{sSO} offen lds")
    if codepf:
        A(f"s_lshl_b32 s{sT1}, s{sSLOT}, 3"); A(f"v_add_u32 v16, s{sT1}, v18"); A("v_lshlrev_b32 v16, 7, v16")
        A("v_min_u32 v16, L_codeend-L_pc-4, v16")
        A("v_cmp_gt_u32 vcc, 8, v18"); A("s_and_saveexec_b64 s[56:57], vcc"); A("s_cbranch_execz L_nocpf")
        A.raw("    global_load_dword a255, v16, s[100:101]")
        A.label("L_nocpf")
        A("s_mov_b64 exec, s[56:57]")
    if not k0site:
        for i in range(nfirst, 8): k_load(A, 0, i, 63)()
    mksrd(sOUT, 14, None, 8*16*576*2)
    mksrd(sWP, 12, None, 4096*1152)
    A("v_accvgpr_write_b32 a254, v17")
    def late_touch():
        A("v_accvgpr_read_b32 v1, a254")
        A(f"s_lshl_b32 s{sT1}, s{sTAB}, 5"); A(f"s_add_u32 s{sT1}, s{sT1}, s{sSLOT}"); A(f"s_mul_i32 s{sT1}, s{sT1}, {144*128}")
        A(f"buffer_load_dword a255, v1, {srd(sWP)}, s{sT1} offen {w1f}")
        if tlbwarm:
            A(f"v_mov_b32 v{vT}, 0")
            A(f"buffer_load_dword a255, v{vT}, {srd(sV)}, 0 offen {vf}")
        if outtouch:
            A(f"s_mul_i32 s{sT1}, s{sPID}, 576"); A(f"s_lshl_b32 s{sT0}, s3, 13"); A(f"s_add_u32 s{sT1}, s{sT1}, s{sT0}")
            A(f"v_lshlrev_b32 v{vT+1}, 7, v0"); A("v_cmp_gt_u32 vcc, 5, v0"); A(f"v_mov_b32 v{vT+2}, 0x7ffffff0")
            A("s_cmp_eq_u32 s3, 0"); A("s_cselect_b64 vcc, vcc, 0")
            A(f"v_cndmask_b32 v{vT+1}, v{vT+2}, v{vT+1}, vcc")
            A(f"buffer_load_dword a255, v{vT+1}, {srd(sOUT)}, s{sT1} offen")
    if rstage < 0: late_touch()
    if stamps:
        A(f"s_lshl_b32 s{sT1}, s2, 8"); A(f"s_add_u32 s{sT1}, s{sT1}, {STAMP_OFF}")
        A(f"s_add_u32 s16, s18, s{sT1}"); A("s_addc_u32 s17, s19, 0")
        A("v_and_b32 v17, 128, v18")
        A("global_load_dword a255, v17, s[16:17]")
    A(f"s_and_b32 s{sT0}, s3, 1"); A(f"s_lshl_b32 s{sT1}, s{sKVH}, 1"); A(f"s_add_u32 s{sT0}, s{sT0}, s{sT1}"); A(f"s_lshl_b32 s{sT0}, s{sT0}, 8")
    A(f"s_lshr_b32 s{sT1}, s3, 1"); A(f"s_mul_i32 s61, s{sT1}, {288*8192}"); A(f"s_add_u32 s{sT0}, s{sT0}, s61")
    mksrd(sWQ, 10, f"s{sT0}", 287*8192+256)
    A("v_lshlrev_b32 v22, 4, v21"); A(f"v_lshl_add_u32 v{vWQ}, v20, 16, v22")
    A(f"s_mul_i32 s{sT1}, s{sT1}, 576"); A(f"s_add_u32 s{sT1}, s{sT1}, {L_XI}")
    A("v_mul_u32_u24 v22, 1152, v21"); A("v_lshl_add_u32 v22, v20, 4, v22"); A(f"v_add_u32 v{vX}, s{sT1}, v22")
    A(f"s_mul_i32 s{sT0}, s{sKVH}, {256*1152}")
    A(f"s_mul_i32 s{sT1}, s{sSPL}, 576"); A(f"s_add_u32 s{sT0}, s{sT0}, s{sT1}")
    A(f"s_mul_i32 s{sT1}, s3, 192"); A(f"s_add_u32 s{sT0}, s{sT0}, s{sT1}")
    mksrd(sWO, 12, f"s{sT0}", 255*1152+192)
    mksrd(sWS, 18, wsbase, WS_USED)
    A("s_cmp_eq_u32 s3, 3"); A(f"s_cselect_b32 s{sWO+2}, 0, s{sWO+2}")
    if noOB: A(f"s_mov_b32 s{sWO+2}, 0")
    if noQB: A(f"s_mov_b32 s{sWQ+2}, 0")
    A(f"s_mov_b32 s{sSELL}, 0x05040100"); A(f"s_mov_b32 s{sSELH}, 0x07060302"); A(f"s_mov_b32 s{sSC}, {SCALE:#x}")
    A(f"s_getreg_b32 s{sXCC}, hwreg(HW_REG_XCC_ID, 0, 4)")
    if DLO is not None:
        A(f"s_lshr_b32 s{sT0}, {lomask}, s{sXCC}"); A(f"s_and_b32 s{sT0}, s{sT0}, 1"); A(f"s_lshl_b32 s{sLVL}, s{sT0}, 1")
        A(f"s_lshr_b32 s{sT0}, {midmask}, s{sXCC}"); A(f"s_and_b32 s{sT0}, s{sT0}, 1"); A(f"s_or_b32 s{sLVL}, s{sLVL}, s{sT0}")
    A("v_mul_u32_u24 v22, 4608, v20"); A("v_mul_u32_u24 v23, 12, v21"); A(f"v_add_u32 v{vWO}, v22, v23")
    A("v_and_b32 v22, 3, v21"); A("v_lshlrev_b32 v22, 2, v22"); A("v_lshrrev_b32 v23, 2, v21"); A("v_add_u32 v22, v22, v23")
    A("v_lshlrev_b32 v23, 2, v20"); A("v_xor_b32 v23, v23, v22"); A("v_lshlrev_b32 v23, 4, v23"); A("v_lshl_add_u32 v23, v21, 8, v23")
    A(f"v_add_u32 v{vKR}, s{sLK}, v23")
    for s in range(1, 4): A(f"v_xor_b32 v{vKR+s}, {s<<4}, v{vKR}")
    A(f"v_mov_b32 v{vMX}, 0xff800000"); A(f"v_mov_b32 v{vMX+1}, 0xff800000")

    mvseq = {}
    def k_move(blk):
        it = [lambda: A.wait_vm(kseq[blk, 7])]
        for t in range(2):
            for s in range(4):
                def f(t=t, s=s):
                    mvseq[blk] = A(f"ds_read_b128 {ar(blk*32+t*16+s*4)}, v{vKR+s} offset:{(blk%NS)*8192+t*4096}")
                it.append(f)
        return it
    def qk(blk):
        it = [lambda: A.wait_lg(mvseq[blk])]
        for s in range(4):
            for t in range(2):
                for h in range(2):
                    d = vr(vS + blk*16 + h*8 + t*4)
                    it.append(f"{MF} {d}, {ar(blk*32+t*16+s*4)}, {vr(vQ+h*16+s*4)}, {d if s else 0}")
        return it
    def rmax(blk):
        it = []
        for k in range(4):
            for h in range(2):
                b = vS + blk*16 + h*8 + 2*k
                it.append(f"v_max3_f32 v{vMX+h}, v{vMX+h}, v{b}, v{b+1}")
        return it
    def site(name, which, blk, loads, blk2=None):
        if blk or name != "QB": A.wait_lg_all()
        A(f"s_mov_b32 s{sNX}, {blk*8192}")
        A(f"s_add_u32 s{sNS}, s{sLK}, {(blk%NS)*8192}")
        if blk2 is not None: A(f"s_add_u32 s{sNS2}, s{sLK}, {(blk2%NS)*8192}")
        A(f"s_cmp_eq_u32 s{sSPL}, {which}")
        A(f"s_cbranch_scc1 L_{name}")
        for f in loads: f()
        A.vm_done = min(A.vm_done, A.vm - 1 - len(loads))
        A.label(f"L_{name}_ret{which}")
    def do_pretouch():
        A(f"s_lshl_b32 s{sT0}, s{sPID}, 14"); A(f"s_lshl_b32 s{sT1}, s3, 12"); A(f"s_add_u32 s{sT0}, s{sT0}, s{sT1}"); A(f"s_add_u32 s{sT0}, s{sT0}, {XO_OFF}")
        A(f"v_lshl_add_u32 v{vT}, v0, 7, s{sT0}")
        A(f"s_mul_i32 s{sT0}, s3, 24"); A(f"s_sub_u32 s{sT0}, s{sT0}, 24"); A(f"v_add_u32 v{vT+1}, s{sT0}, v0")
        A(f"v_mul_u32_u24 v{vT+2}, 10923, v{vT+1}"); A(f"v_lshrrev_b32 v{vT+2}, 16, v{vT+2}")
        A(f"v_mul_u32_u24 v{vT+2}, {12288-768}, v{vT+2}"); A(f"v_lshl_add_u32 v{vT+2}, v{vT+1}, 7, v{vT+2}")
        A(f"s_lshl_b32 s{sT0}, s{sB}, 1"); A(f"s_add_u32 s{sT0}, s{sT0}, s{sSPL}"); A(f"s_mul_i32 s{sT0}, s{sT0}, 196608")
        A(f"s_mul_i32 s{sT1}, s{sKVH}, 768"); A(f"s_add_u32 s{sT0}, s{sT0}, s{sT1}"); A(f"s_add_u32 s{sT0}, s{sT0}, {PY_OFF}")
        A(f"v_add_u32 v{vT+2}, s{sT0}, v{vT+2}")
        A(f"v_cmp_gt_u32 vcc, 24, v0"); A(f"v_mov_b32 v{vT+3}, 0x7ffffff0"); A(f"v_cndmask_b32 v{vT}, v{vT+2}, v{vT}, vcc")
        A(f"v_cmp_gt_u32 vcc, {48 if 'p' in pt else 24}, v0"); A(f"v_cndmask_b32 v{vT}, v{vT+3}, v{vT}, vcc")
        if 'x' not in pt:
            A(f"v_cmp_lt_u32 vcc, 23, v0"); A(f"v_cndmask_b32 v{vT}, v{vT+3}, v{vT}, vcc")
        A(f"buffer_load_dword a255, v{vT}, {srd(sWS)}, 0 offen {ptf}")
    def post_k(blk):
        stamp_at(A, f"k{blk}")
        if blk == rstage: late_touch()
        if blk == pretouch: do_pretouch()

    nmv = [0]; nqk = [0]; nmx = [0]
    def kcomp(upto_move, do_qk, maxqk=3):
        it = []
        while nmv[0] <= upto_move: it += k_move(nmv[0]); nmv[0] += 1
        n = 0
        while do_qk and nqk[0] < nmv[0] and n < maxqk:
            it += qk(nqk[0]); nqk[0] += 1; n += 1
            while nmx[0] < nqk[0] - 1: it += rmax(nmx[0]); nmx[0] += 1
        return it
    skip = set()
    for blk in range(0 if k0site else 1, 8):
        if blk in skip:
            post_k(blk); continue
        last = blk + 1 if (blk in siteQ and q2) else blk
        if last >= NS:
            if nmv[0] <= last - NS: run(kcomp(last - NS, False))
            A.wait_lg(mvseq[last - NS])
        if blk in siteQ:
            if q2:
                site("QB", siteQ.index(blk), blk, k_loads(blk) + k_loads(blk + 1), blk + 1); skip.add(blk + 1)
            else:
                site("QB", siteQ.index(blk), blk, k_loads(blk))
            if blk == siteQ[1]:
                A(f"s_add_u32 s{sE1}, s{sE1}, 1")
                stamp_at(A, "qb1")
        else:
            comp = kcomp(blk - 2, blk > siteQ[1])
            if blk == 7: comp += tail_addr()
            mix(A, comp, k_loads(blk))
        post_k(blk)
    assert 7 not in skip
    assert 7 not in siteQ
    vseq = {}
    def v_load(B, blk, i, D, dyn=False):
        def f():
            throttle(B, D, None if dyn else 8 + blk)
            if i % 4 == 0:
                if dyn: B(f"s_add_u32 s{sSO}, s{sNX}, {(i//4)*4096}")
                else: B(f"s_mov_b32 s{sSO}, {blk*8192 + (i//4)*4096}")
                if dyn: B(f"s_add_u32 m0, s{sNS}, {(i//4)*4096}")
                else: B(f"s_add_u32 m0, s{sLK}, {(blk%NS)*8192 + (i//4)*4096}")
            q = B(f"buffer_load_dwordx4 v{vVA+(i&1)}, {srd(sV)}, s{sSO} offen offset:{(i&3)*1024} {vf} lds")
            if not dyn: vseq[blk, i] = q
        return f
    def v_loads(blk): return [v_load(A, blk, i, DV[blk]) for i in range(8)]
    run(["v_lshrrev_b32 v176, 4, v0", "v_and_b32 v177, 15, v0", "v_lshlrev_b32 v178, 1, v176", "v_xor_b32 v177, v177, v178",
         "v_lshlrev_b32 v177, 4, v177", f"v_lshl_add_u32 v{vVA}, v176, 8, v177", f"v_xor_b32 v{vVA+1}, 0x80, v{vVA}",
         f"s_lshl_b32 s{sT0}, s3, 11", f"s_add_u32 s{sT0}, s{sT0}, {L_PX}", f"v_add_u32 v{vPW}, s{sT0}, v{vLIN}", f"v_add_u32 v{vPR}, {L_PX}, v{vLIN}"])
    A.wait_lg(mvseq[4])
    mix(A, kcomp(6, True, 8), v_loads(0))
    vl = v_loads(1)
    cut = 0
    comp = kcomp(7, True, 8)
    comp += ["v_and_b32 v176, 15, v0", f"s_lshl_b32 s{sT0}, s3, 2",
             "v_lshlrev_b32 v176, 4, v176", f"v_add_u32 v176, {L_MX}, v176",
             f"v_add_u32 v177, s{sT0}, v176"]
    comp += rmax(7)
    for h in range(2): comp.append(f"v_mov_b32 v{178+h}, v{vMX+h}")
    for h in range(2): comp.append(f"v_permlane32_swap_b32 v{178+h}, v{vMX+h}")
    for h in range(2): comp.append(f"v_max_f32 v{vMX+h}, v{vMX+h}, v{178+h}")
    for h in range(2): comp.append(f"v_mov_b32 v{178+h}, v{vMX+h}")
    for h in range(2): comp.append(f"v_permlane16_swap_b32 v{178+h}, v{vMX+h}")
    for h in range(2): comp.append(f"v_max_f32 v{vMX+h}, v{vMX+h}, v{178+h}")
    comp += [f"ds_write_b32 v177, v{vMX}", f"ds_write_b32 v177, v{vMX+1} offset:256",
             lambda: A.wait_lg_all(), "s_barrier",
             f"ds_read_b128 {vr(180)}, v176", f"ds_read_b128 {vr(184)}, v176 offset:256",
             lambda: A.wait_lg_all()]
    for h in range(2): comp.append(f"v_max3_f32 v{vMX+h}, v{180+4*h}, v{181+4*h}, v{182+4*h}")
    for h in range(2): comp.append(f"v_max_f32 v{vMX+h}, v{vMX+h}, v{183+4*h}")
    for h in range(2): comp.append(f"v_mul_f32 v{vMX+h}, s{sSC}, v{vMX+h}")
    cut2 = 6
    mix(A, comp, vl[cut:cut2])
    run(["v_lshrrev_b32 v178, 2, v0", "v_and_b32 v179, 7, v178", "v_lshlrev_b32 v179, 1, v179",
         "v_bfe_u32 v180, v0, 1, 1", f"s_lshl_b32 s{sT0}, s3, 2", f"v_or_b32 v180, s{sT0}, v180",
         "v_xor_b32 v179, v179, v180", "v_lshlrev_b32 v179, 4, v179", "v_lshl_add_u32 v179, v178, 8, v179",
         "v_and_b32 v180, 1, v0", f"v_lshl_add_u32 v{vVR}, v180, 3, v179",
         f"v_xor_b32 v{vVR+1}, 32, v{vVR}", f"v_add_u32 v{vVR+2}, {2*L_KW}, v{vVR}", f"v_add_u32 v{vVR+3}, {2*L_KW}, v{vVR+1}"])
    stamp_at(A, "mxdone")
    def softmax(blk):
        it = []
        for h in range(2):
            b = vS + blk*16 + h*8
            for k in range(8): it.append(f"v_fma_f32 v{b+k}, v{b+k}, s{sSC}, -v{vMX+h}")
            for k in range(8): it.append(f"v_exp_f32 v{b+k}, v{b+k}")
        for h in range(2):
            b = vS + blk*16 + h*8
            for k in range(4): it.append(f"v_cvt_pk_bf16_f32 v{vS+blk*8+h*4+k}, v{b+2*k}, v{b+2*k+1}")
        return it
    def lsum(blk):
        return [f"{MF} {vr(vT+8+4*h)}, {vr(vT)}, {vr(vS+blk*8+h*4)}, {vr(vT+8+4*h) if blk else 0}" for h in range(2)]
    comp = [f"v_mov_b32 v{vT+k}, 0x3f803f80" for k in range(4)]
    for blk in range(8):
        comp += softmax(blk)
        if blk: comp += lsum(blk-1)
    comp += lsum(7)
    comp += ["v_and_b32 v1, 15, v0", f"s_lshl_b32 s{sT0}, s3, 2", f"v_lshl_add_u32 v1, v1, 4, s{sT0}", f"v_add_u32 v1, {L_LX}, v1",
             f"ds_write_b32 v1, v{vT+8}", f"ds_write_b32 v1, v{vT+12} offset:256"]
    def pwrite(j):
        return [f"ds_write_b128 v{vPW}, {vr(vS+j*8+h*4)} offset:{(j%3)*8192+h*1024}" for h in range(2)]
    comp += pwrite(0) + pwrite(1)
    mix(A, comp, vl[cut2:] + v_loads(2))
    stamp_at(A, "smdone")

    def sync(j):
        return [lambda: A.wait_vm(vseq[j, 7]), lambda: A.wait_lg_all(), "s_barrier"]
    rd = {}
    def preads(j):
        it = []
        for src in range(4):
            for h in range(2):
                def f(src=src, h=h): rd["p", src, h] = A(f"ds_read_b128 {vr(vPM+src*8+h*4)}, v{vPR} offset:{(j%3)*8192+src*2048+h*1024}")
                it.append(f)
        return it
    def rnd(j, withp=True):
        it = []
        pr = preads(j) if withp else []
        for src in range(4):
            it += pr[2*src:2*src+2]
            for t2 in range(2):
                for t in range(2):
                    def f(src=src, t2=t2, t=t):
                        rd["v", src, t2] = A(f"ds_read_b64_tr_b16 {vr(vVT+src*8+t2*4+t*2, 2)}, v{vVR+t2+2*(src>>1)} offset:{(src&1)*L_KW+(j%NS)*8192+t*4096}")
                    it.append(f)
        if j + 2 < 8: it += pwrite(j + 2)
        for src in range(4):
            for t2 in range(2):
                it.append(lambda src=src, t2=t2: A.wait_lg(rd["v", src, t2]))
                for h in range(2):
                    d = vr(vACC + h*8 + t2*4)
                    it.append(f"{MF} {d}, {vr(vVT+src*8+t2*4)}, {vr(vPM+src*8+h*4)}, {d if (j or src) else 0}")
        return it
    def stats_read():
        return ["v_and_b32 v1, 15, v0", "v_lshlrev_b32 v1, 4, v1", f"v_add_u32 v1, {L_LX}, v1",
                f"ds_read_b128 {vr(176)}, v1", f"ds_read_b128 {vr(180)}, v1 offset:256"]
    def stats_pub():
        def st():
            A("s_cmp_lg_u32 s3, 0"); A("s_cbranch_scc1 L_nostat")
            A.raw(f"    buffer_store_dwordx4 {vr(184)}, v1, {srd(sWS)}, s{sT0} offen {pubf}")
            A.raw("    s_nop 1")
            A.label("L_nostat")
        return ["v_add_f32 v176, v176, v177", "v_add_f32 v180, v180, v181", "v_add_f32 v178, v178, v179", "v_add_f32 v182, v182, v183",
                f"v_add_f32 v{vWQ}, v176, v178", f"v_add_f32 v{vX}, v180, v182",
                "v_and_b32 v1, 16, v0", "v_cmp_eq_u32 vcc, 0, v1",
                f"s_lshl_b32 s{sT0}, s{sXCC}, 28", f"s_xor_b32 s{sT0}, s{sT0}, s{sE1}",
                f"v_mov_b32 v186, s{sE1}", f"v_mov_b32 v187, s{sT0}",
                f"v_cndmask_b32 v184, v{vMX+1}, v{vMX}, vcc", f"v_cndmask_b32 v185, v{vX}, v{vWQ}, vcc",
                "v_and_b32 v1, 31, v0", "v_lshlrev_b32 v1, 4, v1",
                f"s_lshl_b32 s{sT0}, s{sPID}, 9", f"s_add_u32 s{sT0}, s{sT0}, {XS_OFF}", st]
    ev = []
    for r in range(7): ev += [("S", r), ("R", r)]
    pos = [0]
    def take(until):
        it = []
        while pos[0] <= ev.index(until):
            k, r = ev[pos[0]]; pos[0] += 1
            if k == "S": it += sync(r)
            else:
                if r == 0: it += stats_read()
                it += rnd(r)
                if r == 0: it += stats_pub()
        return it
    statseq = {}
    def ldstat(h):
        def f():
            if h == 0:
                A("v_and_b32 v1, 15, v0"); A("v_lshlrev_b32 v1, 4, v1")
                A(f"s_xor_b32 s{sSTA}, s{sPID}, 1"); A(f"s_lshl_b32 s{sSTA}, s{sSTA}, 9"); A(f"s_add_u32 s{sSTA}, s{sSTA}, {XS_OFF}")
            statseq[h] = A(f"buffer_load_dwordx4 {vr(72+4*h)}, v1, {srd(sWS)}, s{sSTA} offen offset:{h*256} {ldf}")
        return f
    for j in range(3, 8):
        if j >= NS: run(take(("S", j - NS + 1)))
        if j == 7: run([ldstat(0), ldstat(1)])
        if j in siteO:
            site("OB", siteO.index(j), j, v_loads(j))
        elif j == 7:
            vl7 = v_loads(7)
            mix(A, take(("R", 4)), vl7[:front7] )
            mix(A, take(("R", 5)), vl7[front7:])
        else:
            mix(A, take(("R", j - 2)), v_loads(j))
        stamp_at(A, f"v{j}")
    run(take(("R", 5)))
    run([lambda: A.wait_vm(statseq[1])] + stat_scales(A, local))
    run([f"v_mov_b32 v{103+4*k}, s{sE1}" for k in range(3)])
    run(take(("R", 6))); run(preads(7))
    stamp_at(A, "v7")
    sy = sync(7)
    run(sy[:1]); stamp_at(A, "v7land"); run(sy[1:]); stamp_at(A, "v7b")
    if "notail" in exp: A("s_branch L_fin")
    run(rnd(7, withp=False))
    tail(A, pubf, ldf, stamp_at, sleepx, sleepg, outf)
    A.label("L_fin")
    if stamps:
        A(f"s_lshl_b32 s{sT0}, s2, 2"); A(f"s_add_u32 s{sT0}, s{sT0}, s3"); A(f"s_lshl_b32 s{sT0}, s{sT0}, 6")
        A(f"s_add_u32 s{sT0}, s{sT0}, {STAMP_OFF}")
        A(f"s_add_u32 s18, s18, s{sT0}"); A("s_addc_u32 s19, s19, 0")
        A("v_mov_b32 v1, 0")
        for j in range(4):
            for k in range(4): A(f"v_mov_b32 v{4+k}, s{sSTAMP+4*j+k}")
            A(f"global_store_dwordx4 v1, v[4:7], s[18:19] offset:{16*j} sc1")
    A.label("L_end")
    A("s_endpgm")

    B = Asm()
    B.label("L_QB")
    stamp_at(B, "qbs"); stamp_at(B, "cnt_clk0")
    qs = {}
    def q_load(u, i):
        def f():
            B.wait_vm_n(DQ - 1)
            B(f"s_mov_b32 s{sSO}, {(u*32+i)*8192}")
            qs[u, i] = B(f"buffer_load_dwordx4 {vr(WQR[u%3]+4*i)}, v{vWQ}, {srd(sWQ)}, s{sSO} offen {w2f}")
        return f
    xs = {}
    def q_cons(u):
        it = [lambda: B.wait_vm(qs[u, 7]), lambda: B.wait_lg(xs[u])]
        if "nocomp" in exp: return it
        for q in range(4):
            tb = vT + (q & 1) * 8
            it += perms(WQR[u % 3], q, tb)
            for jo in range(2):
                d = vr(vQA + (2*q+jo)*4)
                it.append(f"{MF} {d}, {vr(tb+4*jo)}, {vr(vXO_+4*u)}, {d if u else 0}")
        return it
    for u in (0, 1):
        for i in range(8): q_load(u, i)()
    B.wait_vm(qs[0, 0]); B("s_barrier")
    for u in range(9): xs[u] = B(f"ds_read_b128 {vr(vXO_+4*u)}, v{vX} offset:{u*64}")
    for u in range(0, 7):
        mix(B, q_cons(u), [q_load(u+2, i) for i in range(8)])
    kn = [k_load(B, 1, i, 24, dyn=1) for i in range(8)]
    mix(B, q_cons(7), kn)
    mix(B, q_cons(8), [])
    stamp_at(B, "qbl")
    red = ["s_barrier",
           f"s_lshl_b32 s{sT0}, s3, 13", f"s_add_u32 s{sT0}, s{sT0}, {L_QR}", f"v_add_u32 v1, s{sT0}, v{vLIN}"]
    for j in range(8): red.append(f"ds_write_b128 v1, {vr(vQA+4*j)} offset:{j*1024}")
    red += [f"v_add_u32 v1, {L_QR}, v{vLIN}", lambda: B.wait_lg_all(), "s_barrier"]
    rs = {}
    for h in range(2):
        for j in range(8):
            for k in range(2):
                def f(h=h, j=j, k=k): rs[h, j, k] = B(f"ds_read_b128 {vr(vS+h*64+j*8+k*4)}, v1 offset:{(h+2*k)*8192+j*1024}")
                red.append(f)
    for h in range(2):
        for p in range(4):
            red.append(lambda h=h, p=p: B.wait_lg(rs[h, 2*p+1, 1]))
            for jo in range(2):
                b = vS + h*64 + (2*p+jo)*8
                for r in range(4): red.append(f"v_add_f32 v{b+r}, v{b+r}, v{b+4+r}")
            for r in range(4):
                red.append(f"v_cvt_pk_bf16_f32 v{vQ+h*16+r*4+p}, v{vS+h*64+(2*p)*8+r}, v{vS+h*64+(2*p+1)*8+r}")
    mix(B, red, [k_load(B, 2, i, DQ2, dyn=2) for i in range(8)] if q2 else [])
    stamp_at(B, "qbe")
    B(f"s_cmp_eq_u32 s{sSPL}, 0"); B("s_cbranch_scc1 L_QB_ret0"); B("s_branch L_QB_ret1")

    C = Asm()
    C.label("L_OB")
    stamp_at(C, "obs")
    C("s_cmp_eq_u32 s3, 3"); C("s_cbranch_scc1 L_OB3")
    os_ = {}
    OSL = [0, 1, 2, 0, 1, 2, 0, 1]
    def o_load(s, i):
        def f():
            C.wait_vm_n(DQ - 1)
            h, r = s >> 2, s & 3
            off = (h*128 + r*32 + (i>>2)*16 + (i&3)) * 1152
            so = off // 4096 * 4096
            C(f"s_mov_b32 s{sSO}, {so}")
            os_[s, i] = C(f"buffer_load_dwordx3 {vr(WOS[OSL[s]]+4*i, 3)}, v{vWO}, {srd(sWO)}, s{sSO} offen offset:{off-so} {w2f}")
        return f
    def o_cons(s):
        it = [lambda: C.wait_vm(os_[s, 7])]
        for q in range(3):
            tb = vT + (q & 1) * 8
            it += perms(WOS[OSL[s]], q, tb)
            for k in range(8): it.append(f"v_accvgpr_write_b32 a{s*24+q*8+k}, v{tb+k}")
        return it
    for s in (0, 1):
        for i in range(8): o_load(s, i)()
    for s in range(6):
        mix(C, o_cons(s), [o_load(s+2, i) for i in range(8)])
    mix(C, o_cons(6), [v_load(C, 3, i, 24, dyn=1) for i in range(8)])
    mix(C, o_cons(7), [])
    stamp_at(C, "obe")
    C(f"s_cmp_eq_u32 s{sSPL}, 0"); C("s_cbranch_scc1 L_OB_ret0"); C("s_branch L_OB_ret1")
    C.label("L_OB3")
    for i in range(8): v_load(C, 3, i, 63, dyn=1)()
    C(f"s_cmp_eq_u32 s{sSPL}, 0"); C("s_cbranch_scc1 L_OB_ret0"); C("s_branch L_OB_ret1")

    D = Asm()
    D.label("L_statpoll")
    D(f"s_mov_b32 s{sCNT}, {POLL_MAX}")
    D.label("L_statloop")
    for h in range(2): D(f"buffer_load_dwordx4 {vr(72+4*h)}, v1, {srd(sWS)}, s{sSTA} offen offset:{h*256} {ldf}")
    D("s_waitcnt vmcnt(0)")
    for c in stat_check(): D(c)
    D("s_cbranch_scc1 L_statok")
    D(f"s_sub_u32 s{sCNT}, s{sCNT}, 1"); D(f"s_cmp_lg_u32 s{sCNT}, 0"); D("s_cbranch_scc1 L_statloop")
    D("s_endpgm")

    out = A.text() + B.text() + C.text() + D.text() + "L_codeend:\n" + "    s_nop 0\n" * 64
    out += f""".section .rodata,"a"
.p2align 6
.amdhsa_kernel {KNAME}
  .amdhsa_next_free_vgpr 512
  .amdhsa_next_free_sgpr 102
  .amdhsa_accum_offset 256
  .amdhsa_group_segment_fixed_size 0
  .amdhsa_kernarg_size 64
  .amdhsa_user_sgpr_count 2
  .amdhsa_user_sgpr_kernarg_segment_ptr 1
  .amdhsa_system_sgpr_workgroup_id_x 1
.end_amdhsa_kernel
"""
    return out

def tail_addr():
    it = []
    a = it.append
    a("v_and_b32 v176, 15, v0"); a("v_lshrrev_b32 v177, 4, v0")
    a("v_mul_u32_u24 v178, 12288, v176"); a(f"v_lshl_add_u32 v{vPUB}, v177, 4, v178")
    a("v_mul_u32_u24 v178, 768, v177"); a(f"v_lshl_add_u32 v{vGAT}, v176, 4, v178")
    a(f"s_lshl_b32 s{sT0}, s{sB}, 1"); a(f"s_add_u32 s{sT0}, s{sT0}, s{sSPL}")
    a(f"s_mul_i32 s{sT0}, s{sT0}, 196608"); a(f"s_lshl_b32 s{sT1}, s3, 8"); a(f"s_add_u32 s{sT0}, s{sT0}, s{sT1}"); a(f"s_add_u32 s{sT0}, s{sT0}, {PY_OFF}")
    a(f"s_mul_i32 s{sT1}, s{sKVH}, 768"); a(f"s_add_u32 s{sPB}, s{sT0}, s{sT1}")
    a(f"s_mul_i32 s{sT1}, s{sKVH}, 12288"); a(f"s_add_u32 s{sGA}, s{sT0}, s{sT1}"); a(f"s_add_u32 s{sGA+1}, s{sGA}, 6144")
    a("v_cmp_eq_u32 vcc, 3, v177"); a("v_bfe_u32 v178, v0, 2, 2"); a("v_cndmask_b32 v177, v177, 1, vcc")
    a("v_mad_u32_u24 v178, v178, 3, v177")
    a("v_and_b32 v179, 3, v178"); a("v_mul_u32_u24 v179, 12, v179"); a("v_and_b32 v178, 12, v178"); a("v_add_u32 v179, v179, v178")
    a("v_and_b32 v178, 3, v0"); a(f"v_mad_u32_u24 v{vOUT}, v178, 48, v179")
    a(f"s_lshr_b32 s{sT0}, s{sPID}, 1"); a(f"s_mul_i32 s{sOB}, s{sT0}, 1152"); a(f"s_mul_i32 s{sT0}, s{sSPL}, 576"); a(f"s_add_u32 s{sOB}, s{sOB}, s{sT0}")
    a(f"s_mul_i32 s{sT0}, s3, 192"); a(f"s_add_u32 s{sOB}, s{sOB}, s{sT0}")
    a(f"s_lshl_b32 s{sT0}, s3, 10"); a(f"s_add_u32 s{sT0}, s{sT0}, {L_BX}"); a(f"v_add_u32 v{vBXW}, s{sT0}, v{vLIN}")
    a(f"s_lshl_b32 s{sXOo}, s{sPID}, 14"); a(f"s_lshl_b32 s{sT0}, s3, 12"); a(f"s_add_u32 s{sXOo}, s{sXOo}, s{sT0}")
    a(f"s_xor_b32 s{sXOp}, s{sXOo}, {1<<14}")
    a(f"s_add_u32 s{sXOo}, s{sXOo}, {XO_OFF}"); a(f"s_add_u32 s{sXOp}, s{sXOp}, {XO_OFF}")
    for n in (sXL, sXG):
        a(f"s_mov_b32 s{n}, s{sWS}"); a(f"s_mov_b32 s{n+1}, s{sWS+1}"); a(f"s_mov_b32 s{n+3}, 0x20000")
    return it

def stat_check():
    return [f"v_xor_b32 v80, s{sE1}, v74", f"v_xor_b32 v81, s{sE1}, v75", f"v_xor_b32 v82, s{sE1}, v78", f"v_xor_b32 v83, s{sE1}, v79",
            "v_or_b32 v84, v81, v83", "v_and_b32 v84, 0x0fffffff, v84",
            "v_or3_b32 v80, v80, v84, v82", "v_cmp_eq_u32 vcc, 0, v80", "s_cmp_eq_u64 vcc, -1"]

def stat_scales(A, local):
    it = stat_check()
    def br():
        A("s_cbranch_scc0 L_statpoll")
        A.label("L_statok")
    it.append(br)
    it += [f"v_readfirstlane_b32 s{sT0}, v81", f"s_lshr_b32 s{sT0}, s{sT0}, 28", f"s_cmp_eq_u32 s{sT0}, s{sXCC}",
           f"s_cselect_b32 s{sXL+2}, {WS_USED if local else 0}, 0", f"s_cselect_b32 s{sXG+2}, {0 if local else WS_USED}, {WS_USED}"]
    for h in range(2):
        it += [f"v_max_f32 v{80+h}, v{vMX+h}, v{72+4*h}"]
    for h in range(2):
        it += [f"v_sub_f32 v{82+h}, v{vMX+h}, v{80+h}", f"v_sub_f32 v{84+h}, v{72+4*h}, v{80+h}"]
    for h in range(2):
        it += [f"v_exp_f32 v{82+h}, v{82+h}", f"v_exp_f32 v{84+h}, v{84+h}"]
    for h in range(2):
        it += [f"v_mul_f32 v{84+h}, v{84+h}, v{73+4*h}"]
    for h in range(2):
        it += [f"v_fma_f32 v{84+h}, v{82+h}, v{vWQ+h}, v{84+h}"]
    for h in range(2):
        it += [f"v_rcp_f32 v{84+h}, v{84+h}"]
    for h in range(2):
        it += [f"v_mul_f32 v{vWQ+h}, v{82+h}, v{84+h}"]
    return it

def poll(A, name, loads, tags, slp):
    A(f"s_mov_b32 s{sCNT}, {POLL_MAX}")
    A.label(name)
    for l in loads: A(l)
    A("s_waitcnt vmcnt(0)")
    A.vm_done = A.vm - 1
    for k, t in enumerate(tags): A(f"v_xor_b32 v{70+k}, s{sE1}, v{t}")
    A("v_or3_b32 v70, v70, v71, v72")
    if len(tags) == 4: A("v_or_b32 v70, v70, v73")
    A("v_cmp_eq_u32 vcc, 0, v70"); A("s_cmp_eq_u64 vcc, -1")
    A(f"s_cbranch_scc1 {name}_ok")
    if slp: A(f"s_sleep {slp}")
    A(f"s_sub_u32 s{sCNT}, s{sCNT}, 1"); A(f"s_cmp_lg_u32 s{sCNT}, 0"); A(f"s_cbranch_scc1 {name}")
    A("s_endpgm")
    A.label(f"{name}_ok")

def tail(A, pubf, ldf, stamp_at, sleepx, sleepg, outf):
    XG = 100
    def xreg(k): return XG + (k // 3) * 4 + k % 3
    sent = 0
    for x in range(4):
        b = vACC + x*4
        for r in range(4): A(f"v_mul_f32 v{b+r}, v{b+r}, v{vWQ+(x>>1)}")
        for p in range(2): A(f"v_cvt_pk_bf16_f32 v{xreg(2*x+p)}, v{b+2*p}, v{b+2*p+1}")
        while sent < 3 and min(3*sent + 2, 7) <= 2*x + 1:
            A(f"buffer_store_dwordx4 {vr(XG+sent*4)}, v{vLIN}, {srd(sXL)}, s{sXOo} offen offset:{sent*1024}")
            A(f"buffer_store_dwordx4 {vr(XG+sent*4)}, v{vLIN}, {srd(sXG)}, s{sXOo} offen offset:{sent*1024} {pubf}")
            sent += 1
    stamp_at(A, "xst")
    poll(A, "L_xp", [f"buffer_load_dwordx4 {vr(112+4*x)}, v{vLIN}, {srd(sWS)}, s{sXOp} offen offset:{x*1024} {ldf}" for x in range(3)], [115, 119, 123], sleepx)
    stamp_at(A, "cntx"); stamp_at(A, "xok")
    for h in range(2):
        for p in range(4):
            k = h*4 + p; src = 112 + (k // 3) * 4 + k % 3
            A(f"v_lshlrev_b32 v{16+2*k}, 16, v{src}"); A(f"v_and_b32 v{17+2*k}, 0xffff0000, v{src}")
        for e in range(8): A(f"v_add_f32 v{16+h*8+e}, v{16+h*8+e}, v{vACC+h*8+e}")
        for p in range(4): A(f"v_cvt_pk_bf16_f32 v{128+h*4+p}, v{16+h*8+2*p}, v{17+h*8+2*p}")
        A(f"ds_write_b128 v{vBXW}, {vr(128+h*4)} offset:{h*4096}")
    A.wait_lg_all(); A("s_barrier")
    A("s_cmp_eq_u32 s3, 3"); A("s_cbranch_scc1 L_fin")
    stamp_at(A, "bxb")
    bs = [A(f"ds_read_b128 {vr(136+4*s)}, v{vPR} offset:{s*1024}") for s in range(8)]
    PG = 192
    def preg(D): return PG + (D // 3) * 4 + D % 3
    def pack(jp):
        for r in range(4): A(f"v_cvt_pk_bf16_f32 v{preg(jp*4+r)}, v{168+8*jp+r}, v{172+8*jp+r}")
    def pub(gm): A(f"buffer_store_dwordx4 {vr(PG+gm*4)}, v{vPUB}, {srd(sWS)}, s{sPB} offen offset:{gm*64} {pubf}")
    for k in range(4): A(f"v_mov_b32 v{PG+3+4*k}, s{sE1}")
    for jp in range(3):
        for s in range(8):
            A.wait_lg(bs[s])
            for j in (2*jp, 2*jp+1):
                d = vr(168 + 4*j)
                A(f"{MF} {d}, {ar(s*24+j*4)}, {vr(136+4*s)}, {d if s else 0}")
            if jp and s == 4:
                pack(jp - 1); pub(jp - 1)
    pack(2); pub(2); pub(3)
    stamp_at(A, "pub")
    GB = 208
    poll(A, "L_gp", [f"buffer_load_dwordx4 {vr(GB+4*k)}, v{vGAT}, {srd(sWS)}, s{sGA+(k>>1)} offen offset:{(k&1)*3072} {ldf}" for k in range(4)],
         [GB+3+4*k for k in range(4)], sleepg)
    stamp_at(A, "cntg"); stamp_at(A, "gok")
    for k in range(4):
        for d in range(3):
            A(f"v_lshlrev_b32 v{16+8*k+d}, 16, v{GB+4*k+d}"); A(f"v_and_b32 v{20+8*k+d}, 0xffff0000, v{GB+4*k+d}")
    for e in (0, 1, 2, 4, 5, 6):
        A(f"v_add_f32 v{16+e}, v{16+e}, v{24+e}"); A(f"v_add_f32 v{32+e}, v{32+e}, v{40+e}")
    for e in (1, 5, 0, 4, 2, 6): A(f"v_add_f32 v{16+e}, v{16+e}, v{32+e}")
    A("v_mov_b32 v19, v17"); A("v_mov_b32 v23, v21")
    for (a_, b_) in ((16, 18), (20, 22), (17, 19), (21, 23)): A(f"v_permlane32_swap_b32 v{a_}, v{b_}")
    for (a_, b_) in ((16, 18), (20, 22), (17, 19), (21, 23)): A(f"v_add_f32 v{a_}, v{a_}, v{b_}")
    A("v_permlane16_swap_b32 v16, v17"); A("v_permlane16_swap_b32 v20, v21")
    A("v_add_f32 v16, v16, v17"); A("v_add_f32 v20, v20, v21")
    A("v_cvt_pk_bf16_f32 v16, v16, v20")
    A(f"buffer_store_dword v16, v{vOUT}, {srd(sOUT)}, s{sOB} offen {outf}")
    A(f"s_or_b32 s{sT0}, s{sKVH}, s{sSPL}"); A(f"s_or_b32 s{sT0}, s{sT0}, s3"); A(f"s_cmp_lg_u32 s{sT0}, 0"); A("s_cbranch_scc1 L_noep")
    A(f"v_mov_b32 v1, s{sE1}"); A(f"s_lshl_b32 s{sT0}, s{sB}, 8"); A("v_mov_b32 v2, 0")
    A(f"buffer_store_dword v1, v2, {srd(sWS)}, s{sT0} offen")
    A.label("L_noep")
    stamp_at(A, "end")

if __name__ == "__main__":
    import json
    kw = json.loads(sys.argv[2]) if len(sys.argv) > 2 else {}
    open(sys.argv[1], "w").write(gen(**kw))
```

```python
import sys, math, struct
from asmlib import Asm

KNAME = "standalone__sliding_block_cached__sampling_kernel"
HDR = open('standalone__sliding_block_cached__sampling.s.ref').read().split('; Override')[0]

EP_OFF = 0
XS_OFF = 0x10000
XO_OFF = 0x100000
PY_OFF = 0x800000
WS_USED = 0x1000000
STAMP_OFF = 512 << 20
NS = 4
L_KW = NS * 8192
L_QR = 4 * L_KW
L_PX = L_QR
L_BX = L_QR
L_MX = L_QR + 24576
L_LX = L_MX + 512
L_XI = L_QR
LDS_BYTES = L_QR + 32768
POLL_MAX = 200000

def f32(x): return struct.unpack('<I', struct.pack('<f', x))[0]
SCALE = f32(1.4426950408889634 / math.sqrt(128.0))

sK, sV, sWQ, sWO, sX, sWS, sOUT, sWP, sPUB = 20, 24, 28, 32, 36, 40, 44, 68, 72
sXL, sXG = 28, 36
sSELL, sSELH, sSC, sTAG, sTAB, sSO, sLK, sKVH, sSPL, sB = 48, 49, 50, 51, 52, 61, 62, 63, 64, 65
sE1, sMASK = 66, 67
sPID, sXOo, sXOp, sNX, sXCC, sLVL, sCNT, sT0, sT1, sSLOT = 76, 77, 78, 79, 80, 81, 82, 83, 84, 85
sSTAMP = 86
sNS, sSTA, sNS2 = 53, 54, 55
sPB, sGA, sOB = 4, 6, 8
def srd(n): return f"s[{n}:{n+3}]"
vKA, vKR, vLIN, vWQ, vX, vWO, vMX = 2, 6, 10, 11, 12, 13, 14
vQ = 16
vS = 48
vT = 176
vVT = 16
vPM = 192
vACC = 224
vVA, vVR, vPW, vPR = 2, 6, 4, 5
vXO_ = 48
vQA = 84
WQR = [192, 224, 116]
WOS = [112, 144, 16]
vPUB, vOUT, vGAT, vBXW, vBXR = 240, 241, 242, 243, 244
sRO = 56
sLOC = 60

def vr(b, n=4): return f"v[{b}:{b+n-1}]"
def ar(b, n=4): return f"a[{b}:{b+n-1}]"
MF = "v_mfma_f32_16x16x32_bf16"

def cost(it):
    if callable(it): return 1
    if it.startswith('v_mfma'): return 12
    if it.startswith('v_exp') or it.startswith('v_rcp'): return 8
    return 4

def mix(A, comp, loads):
    tot = sum(cost(c) for c in comp)
    n = len(loads); k = 0; acc = 0
    for c in comp:
        while k < n and acc >= tot * k / max(n, 1):
            loads[k](); k += 1
        if callable(c): c()
        else: A(c)
        acc += cost(c)
    while k < n:
        loads[k](); k += 1

def perms(R, q, tb):
    it = []
    for p in range(4): it.append(f"v_perm_b32 v{tb+p}, v{R+(2*p+1)*4+q}, v{R+(2*p)*4+q}, s{sSELL}")
    for p in range(4): it.append(f"v_perm_b32 v{tb+4+p}, v{R+(2*p+1)*4+q}, v{R+(2*p)*4+q}, s{sSELH}")
    return it

def gen(DK=(16,)*8, DV=(8,)*8, DQ=16, stamps=False, kf="nt", vf="nt", w1f="", w2f="", pubf="sc1", ldf="sc1",
        codepf=True, wsbase=0, pretouch=1, ptf="", local=True, promote=False, sleepx=0, sleepg=0, tlbwarm=True, noOB=False, noQB=False, exp="", outtouch=True, outf="", kfirst=True, pt="xp", DLO=None, lomask=0x55, DMID=None, midmask=0, siteQ=(1, 4), siteO=(4, 6), front7=8, q2=True, DQ2=12, rstage=2, own=True, pipe=False, brx=True, k0early=True, pfirst=True, oswap=0, ptx=0, ptxw="xp", faildbg=False, pollmax=200000):
    global POLL_MAX, FAILDBG
    POLL_MAX = pollmax; FAILDBG = faildbg
    siteQ = tuple(siteQ); siteO = tuple(siteO)
    if isinstance(DK, int): DK = (DK,) * 8
    if isinstance(DV, int): DV = (DV,) * 8
    if isinstance(DLO, int): DLO = (DLO,) * 16
    if isinstance(DMID, int): DMID = (DMID,) * 16
    dr = []
    if "nobar" in exp: dr += ["s_barrier"]
    if "nomath" in exp: dr += ["v_mfma", "v_exp", "v_fma", "v_cvt", "v_perm", "v_max3", "v_accvgpr_write"]
    if "nods" in exp: dr += ["ds_"]
    Asm.drop = tuple(dr)
    A = Asm()
    def stamp_at(B, name):
        if not stamps or name not in stamps: return
        i = stamps.index(name) + 1
        if name.startswith("cnt") and not name.startswith("cnt_clk"):
            B(f"s_sub_u32 s{sSTAMP+2*i}, {POLL_MAX}, s{sCNT}"); B(f"s_mov_b32 s{sSTAMP+2*i+1}, 0")
            return
        B.wait_lg_all()
        B(f"{'s_memtime' if name.startswith('cnt_clk') else 's_memrealtime'} s[{sSTAMP+2*i}:{sSTAMP+2*i+1}]")
        B.wait_lg_all()
    def run(comp, B=A):
        for c in comp:
            if callable(c): c()
            else: B(c)

    A.raw(HDR.rstrip())
    A.raw(f"; @launch grid=(256,1,1) block=(256,1,1) lds={LDS_BYTES}")
    A.raw('.amdgcn_target "amdgcn-amd-amdhsa--gfx950"')
    A.raw(".text"); A.raw(f".globl {KNAME}"); A.raw(".p2align 8"); A.raw(f".type {KNAME},@function"); A.raw(f"{KNAME}:")
    A("s_cmp_ge_u32 s2, 256"); A("s_cbranch_scc1 L_end")
    A("s_load_dwordx8 s[4:11], s[0:1], 0")
    A("s_load_dwordx8 s[12:19], s[0:1], 32")
    if stamps: A(f"s_memrealtime s[{sSTAMP}:{sSTAMP+1}]")
    A("s_getpc_b64 s[100:101]")
    A.raw("L_pc:")
    if codepf:
        A(f"s_and_b32 s{sT1}, s2, 0xf8"); A(f"v_add_lshl_u32 v16, v0, s{sT1}, 7")
        A("v_min_u32 v16, L_codeend-L_pc-4, v16")
        A("v_cmp_gt_u32 vcc, 8, v0"); A("s_and_saveexec_b64 s[56:57], vcc"); A.raw("    s_cbranch_execz L_nocpf")
        A.raw("    global_load_dword a255, v16, s[100:101]")
        A.raw("L_nocpf:")
        A("s_mov_b64 exec, s[56:57]")
    A("v_lshrrev_b32 v1, 6, v0")
    A("v_mov_b32 v18, v0")
    A("v_readfirstlane_b32 s3, v1")
    A("v_and_b32 v0, 63, v0")
    A(f"s_and_b32 s{sTAB}, s2, 7"); A(f"s_lshr_b32 s{sSLOT}, s2, 3")
    A(f"s_and_b32 s{sT0}, s{sSLOT}, 1"); A(f"s_lshl_b32 s61, s{sTAB}, 1"); A(f"s_add_u32 s{sKVH}, s61, s{sT0}")
    A(f"s_lshr_b32 s{sSPL}, s{sSLOT}, 1"); A(f"s_and_b32 s{sSPL}, s{sSPL}, 1")
    A(f"s_lshr_b32 s{sB}, s{sSLOT}, 2")
    A("v_lshrrev_b32 v20, 4, v0")
    A("v_and_b32 v21, 15, v0")
    A(f"v_lshlrev_b32 v{vLIN}, 4, v0")
    A("v_lshlrev_b32 v22, 2, v20"); A("v_xor_b32 v22, v21, v22"); A("v_lshlrev_b32 v22, 4, v22"); A(f"v_lshl_add_u32 v{vKA}, v20, 8, v22")
    for i in range(1, 4): A(f"v_xor_b32 v{vKA+i}, {i<<4}, v{vKA}")
    A(f"s_mul_i32 s{sLK}, s3, {L_KW}")
    A(f"s_lshl_b32 s{sPID}, s{sB}, 4"); A(f"s_add_u32 s{sPID}, s{sPID}, s{sKVH}")
    A(f"s_lshl_b32 s{sT0}, s{sPID}, 21"); A(f"s_add_u32 s{sT0}, s{sT0}, {6144*256}")
    A(f"s_lshl_b32 s{sT1}, s{sSPL}, 18"); A(f"s_add_u32 s{sT0}, s{sT0}, s{sT1}")
    A(f"s_lshl_b32 s{sT1}, s3, 16"); A(f"s_add_u32 s{sT0}, s{sT0}, s{sT1}")
    A(f"s_lshl_b32 s{sPID}, s{sPID}, 1"); A(f"s_add_u32 s{sPID}, s{sPID}, s{sSPL}")
    A("v_mov_b32 v23, 0x7ffffff0"); A("v_cmp_gt_u32 vcc, 144, v18")
    A("v_lshrrev_b32 v22, 3, v18"); A(f"s_mul_i32 s{sT1}, s{sSLOT}, 18"); A(f"v_add_u32 v22, s{sT1}, v22"); A("v_lshlrev_b32 v22, 13, v22")
    A("v_and_b32 v24, 7, v18"); A("v_lshl_add_u32 v22, v24, 7, v22"); A("v_cndmask_b32 v16, v23, v22, vcc")
    A("v_lshlrev_b32 v22, 7, v18"); A("v_cndmask_b32 v17, v23, v22, vcc")
    A("s_waitcnt lgkmcnt(0)")
    def mksrd(n, p, off, size):
        if off is None or off == 0:
            A(f"s_mov_b32 s{n}, s{p}"); A(f"s_mov_b32 s{n+1}, s{p+1}")
        else:
            A(f"s_add_u32 s{n}, s{p}, {off}"); A(f"s_addc_u32 s{n+1}, s{p+1}, 0")
        A(f"s_mov_b32 s{n+2}, {size}"); A(f"s_mov_b32 s{n+3}, 0x20000")
    mksrd(sK, 6, f"s{sT0}", 65536)
    nlab = [0]
    def throttle(B, D, idx):
        B.wait_vm_n(D - 1)
        if idx is None or DLO is None: return
        lo = DLO[idx]; mid = DMID[idx] if DMID else D
        if lo >= D and mid >= D: return
        nlab[0] += 1
        if mid < D:
            B.raw(f"    s_cmp_eq_u32 s{sLVL}, 0"); B.raw(f"    s_cbranch_scc1 L_t{nlab[0]}")
            B.raw(f"    s_waitcnt vmcnt({mid-1})")
        B.raw(f"    s_cmp_lt_u32 s{sLVL}, 2"); B.raw(f"    s_cbranch_scc1 L_t{nlab[0]}")
        B.raw(f"    s_waitcnt vmcnt({lo-1})")
        B.raw(f"L_t{nlab[0]}:")
    kseq = {}
    def k_load(B, blk, i, D, dyn=False):
        def f():
            throttle(B, D, None if dyn else blk)
            if i % 4 == 0:
                if dyn: B(f"s_add_u32 s{sSO}, s{sNX}, {(dyn-1)*8192 + (i//4)*4096}")
                else: B(f"s_mov_b32 s{sSO}, {blk*8192 + (i//4)*4096}")
                if dyn: B(f"s_add_u32 m0, s{sNS if dyn == 1 else sNS2}, {(i//4)*4096}")
                else: B(f"s_add_u32 m0, s{sLK}, {(blk%NS)*8192 + (i//4)*4096}")
            q = B(f"buffer_load_dwordx4 v{vKA+(i&3)}, {srd(sK)}, s{sSO} offen offset:{(i&3)*1024} {kf} lds")
            if not dyn: kseq[blk, i] = q
        return f
    def k_loads(blk): return [k_load(A, blk, i, DK[blk]) for i in range(8)]
    k0site = 0 in siteQ
    nfirst = 0 if k0site else (8 if kfirst is True else int(kfirst))
    for i in range(nfirst): k_load(A, 0, i, 63)()
    k0e = k0site and k0early
    def ppf():
        mksrd(sWP, 10, None, 576*8192)
        A(f"s_lshl_b32 s{sT1}, s{sTAB}, 10")
        A(f"buffer_load_dword a255, v16, {srd(sWP)}, s{sT1} offen {w1f}")
    if pfirst: ppf()
    if k0e:
        A(f"s_cmp_eq_u32 s{sSPL}, 0"); A.raw("    s_cbranch_scc1 L_nok0")
        sv = A.vm
        for i in range(8): k_load(A, 0, i, 63)()
        A.vm = sv
        A.raw("L_nok0:")
    if not pfirst: ppf()
    mksrd(sV, 8, f"s{sT0}", 65536)
    A(f"s_mul_i32 s{sT0}, s{sB}, 18432")
    mksrd(sX, 4, f"s{sT0}", 18432)
    A(f"s_lshl_b32 s{sT1}, s3, 10")
    for k in range(5):
        A(f"s_add_u32 m0, s{sT1}, {L_XI + k*4096}"); A(f"s_add_u32 s{sSO}, s{sT1}, {k*4096}")
        A(f"buffer_load_dwordx4 v{vLIN}, {srd(sX)}, s{sSO} offen lds")
    A(f"s_lshl_b32 s{sT1}, s{sB}, 8"); A(f"s_add_u32 s{sT1}, s{sT1}, {wsbase}"); A(f"s_load_dword s{sE1}, s[18:19], s{sT1}")
    if not k0site:
        for i in range(nfirst, 8): k_load(A, 0, i, 63)()
    A("v_accvgpr_write_b32 a254, v17")
    def late_touch():
        A("v_accvgpr_read_b32 v1, a254")
        A(f"s_lshl_b32 s{sT1}, s{sTAB}, 5"); A(f"s_add_u32 s{sT1}, s{sT1}, s{sSLOT}"); A(f"s_mul_i32 s{sT1}, s{sT1}, {144*128}")
        A(f"buffer_load_dword a255, v1, {srd(sWP)}, s{sT1} offen {w1f}")
        if tlbwarm:
            A(f"v_mov_b32 v{vT}, 0")
            A(f"buffer_load_dword a255, v{vT}, {srd(sV)}, 0 offen {vf}")
        if outtouch:
            A(f"s_mul_i32 s{sT1}, s{sPID}, 576"); A(f"s_lshl_b32 s{sT0}, s3, 13"); A(f"s_add_u32 s{sT1}, s{sT1}, s{sT0}")
            A(f"v_lshlrev_b32 v{vT+1}, 7, v0"); A("v_cmp_gt_u32 vcc, 5, v0"); A(f"v_mov_b32 v{vT+2}, 0x7ffffff0")
            A("s_cmp_eq_u32 s3, 0"); A("s_cselect_b64 vcc, vcc, 0")
            A(f"v_cndmask_b32 v{vT+1}, v{vT+2}, v{vT+1}, vcc")
            A(f"buffer_load_dword a255, v{vT+1}, {srd(sOUT)}, s{sT1} offen")
    if stamps:
        A(f"s_lshl_b32 s{sT1}, s2, 8"); A(f"s_add_u32 s{sT1}, s{sT1}, {STAMP_OFF}")
        A(f"s_add_u32 s16, s18, s{sT1}"); A("s_addc_u32 s17, s19, 0")
        A("v_and_b32 v17, 128, v18")
        A("global_load_dword a255, v17, s[16:17]")
    A(f"s_and_b32 s{sT0}, s3, 1"); A(f"s_lshl_b32 s{sT1}, s{sKVH}, 1"); A(f"s_add_u32 s{sT0}, s{sT0}, s{sT1}"); A(f"s_lshl_b32 s{sT0}, s{sT0}, 8")
    A(f"s_lshr_b32 s{sT1}, s3, 1"); A(f"s_mul_i32 s61, s{sT1}, {288*8192}"); A(f"s_add_u32 s{sT0}, s{sT0}, s61")
    mksrd(sWQ, 10, f"s{sT0}", 287*8192+256)
    A("v_lshlrev_b32 v22, 4, v21"); A(f"v_lshl_add_u32 v{vWQ}, v20, 16, v22")
    A(f"s_mul_i32 s{sT1}, s{sT1}, 576"); A(f"s_add_u32 s{sT1}, s{sT1}, {L_XI}")
    A("v_mul_u32_u24 v22, 1152, v21"); A("v_lshl_add_u32 v22, v20, 4, v22"); A(f"v_add_u32 v{vX}, s{sT1}, v22")
    A(f"s_mov_b32 s{sSELL}, 0x05040100"); A(f"s_mov_b32 s{sSELH}, 0x07060302")
    if noQB: A(f"s_mov_b32 s{sWQ+2}, 0")
    A(f"s_getreg_b32 s{sXCC}, hwreg(HW_REG_XCC_ID, 0, 4)")
    if DLO is not None:
        A(f"s_lshr_b32 s{sT0}, {lomask}, s{sXCC}"); A(f"s_and_b32 s{sT0}, s{sT0}, 1"); A(f"s_lshl_b32 s{sLVL}, s{sT0}, 1")
        A(f"s_lshr_b32 s{sT0}, {midmask}, s{sXCC}"); A(f"s_and_b32 s{sT0}, s{sT0}, 1"); A(f"s_or_b32 s{sLVL}, s{sLVL}, s{sT0}")
    def late_setup():
        mksrd(sOUT, 14, None, 8*16*576*2)
        mksrd(sWP, 12, None, 4096*1152)
        A(f"s_mul_i32 s{sT0}, s{sKVH}, {256*1152}")
        A(f"s_mul_i32 s{sT1}, s{sSPL}, 576"); A(f"s_add_u32 s{sT0}, s{sT0}, s{sT1}")
        A(f"s_mul_i32 s{sT1}, s3, 192"); A(f"s_add_u32 s{sT0}, s{sT0}, s{sT1}")
        mksrd(sWO, 12, f"s{sT0}", 255*1152+192)
        mksrd(sWS, 18, wsbase, WS_USED)
        A("s_cmp_eq_u32 s3, 3"); A(f"s_cselect_b32 s{sWO+2}, 0, s{sWO+2}")
        if noOB: A(f"s_mov_b32 s{sWO+2}, 0")
        A(f"s_mov_b32 s{sSC}, {SCALE:#x}")
        g_, c_, t2, t3 = vT, vT+1, vT+2, vT+3
        A(f"v_lshrrev_b32 v{g_}, 4, v0"); A(f"v_and_b32 v{c_}, 15, v0")
        A(f"v_mul_u32_u24 v{t2}, 4608, v{g_}"); A(f"v_mul_u32_u24 v{t3}, 12, v{c_}"); A(f"v_add_u32 v{vWO}, v{t2}, v{t3}")
        A(f"v_and_b32 v{t2}, 3, v{c_}"); A(f"v_lshlrev_b32 v{t2}, 2, v{t2}"); A(f"v_lshrrev_b32 v{t3}, 2, v{c_}"); A(f"v_add_u32 v{t2}, v{t2}, v{t3}")
        A(f"v_lshlrev_b32 v{t3}, 2, v{g_}"); A(f"v_xor_b32 v{t3}, v{t3}, v{t2}"); A(f"v_lshlrev_b32 v{t3}, 4, v{t3}"); A(f"v_lshl_add_u32 v{t3}, v{c_}, 8, v{t3}")
        A(f"v_add_u32 v{vKR}, s{sLK}, v{t3}")
        for s in range(1, 4): A(f"v_xor_b32 v{vKR+s}, {s<<4}, v{vKR}")
        A(f"v_mov_b32 v{vMX}, 0xff800000"); A(f"v_mov_b32 v{vMX+1}, 0xff800000")
    if rstage < 0 or not k0e:
        late_setup()
        if rstage < 0: late_touch()

    mvseq = {}
    def k_move(blk):
        it = [lambda: A.wait_vm(kseq[blk, 7])]
        for t in range(2):
            for s in range(4):
                def f(t=t, s=s):
                    mvseq[blk] = A(f"ds_read_b128 {ar(blk*32+t*16+s*4)}, v{vKR+s} offset:{(blk%NS)*8192+t*4096}")
                it.append(f)
        return it
    def qk(blk):
        it = [lambda: A.wait_lg(mvseq[blk])]
        for s in range(4):
            for t in range(2):
                for h in range(2):
                    d = vr(vS + blk*16 + h*8 + t*4)
                    it.append(f"{MF} {d}, {ar(blk*32+t*16+s*4)}, {vr(vQ+h*16+s*4)}, {d if s else 0}")
        return it
    def rmax(blk):
        it = []
        for k in range(4):
            for h in range(2):
                b = vS + blk*16 + h*8 + 2*k
                it.append(f"v_max3_f32 v{vMX+h}, v{vMX+h}, v{b}, v{b+1}")
        return it
    def site(name, which, blk, loads, blk2=None):
        if blk or name != "QB": A.wait_lg_all()
        A(f"s_mov_b32 s{sNX}, {blk*8192}")
        A(f"s_add_u32 s{sNS}, s{sLK}, {(blk%NS)*8192}")
        if blk2 is not None: A(f"s_add_u32 s{sNS2}, s{sLK}, {(blk2%NS)*8192}")
        A(f"s_cmp_eq_u32 s{sSPL}, {which}")
        A(f"s_cbranch_scc1 L_{name}")
        for f in loads: f()
        A.vm_done = min(A.vm_done, A.vm - 1 - len(loads))
        A.label(f"L_{name}_ret{which}")
    def do_pretouch():
        A(f"s_lshl_b32 s{sT0}, s{sPID}, 14"); A(f"s_lshl_b32 s{sT1}, s3, 12"); A(f"s_add_u32 s{sT0}, s{sT0}, s{sT1}"); A(f"s_add_u32 s{sT0}, s{sT0}, {XO_OFF}")
        A(f"v_lshl_add_u32 v{vT}, v0, 7, s{sT0}")
        A(f"s_mul_i32 s{sT0}, s3, 24"); A(f"s_sub_u32 s{sT0}, s{sT0}, 24"); A(f"v_add_u32 v{vT+1}, s{sT0}, v0")
        A(f"v_mul_u32_u24 v{vT+2}, 10923, v{vT+1}"); A(f"v_lshrrev_b32 v{vT+2}, 16, v{vT+2}")
        A(f"v_mul_u32_u24 v{vT+2}, {12288-768}, v{vT+2}"); A(f"v_lshl_add_u32 v{vT+2}, v{vT+1}, 7, v{vT+2}")
        A(f"s_lshl_b32 s{sT0}, s{sB}, 1"); A(f"s_add_u32 s{sT0}, s{sT0}, s{sSPL}"); A(f"s_mul_i32 s{sT0}, s{sT0}, 196608")
        A(f"s_mul_i32 s{sT1}, s{sKVH}, 768"); A(f"s_add_u32 s{sT0}, s{sT0}, s{sT1}"); A(f"s_add_u32 s{sT0}, s{sT0}, {PY_OFF}")
        A(f"v_add_u32 v{vT+2}, s{sT0}, v{vT+2}")
        A(f"v_cmp_gt_u32 vcc, 24, v0"); A(f"v_mov_b32 v{vT+3}, 0x7ffffff0"); A(f"v_cndmask_b32 v{vT}, v{vT+2}, v{vT}, vcc")
        A(f"v_cmp_gt_u32 vcc, {48 if 'p' in pt else 24}, v0"); A(f"v_cndmask_b32 v{vT}, v{vT+3}, v{vT}, vcc")
        if 'x' not in pt:
            A(f"v_cmp_lt_u32 vcc, 23, v0"); A(f"v_cndmask_b32 v{vT}, v{vT+3}, v{vT}, vcc")
        if not ptx:
            A(f"buffer_load_dword a255, v{vT}, {srd(sWS)}, 0 offen {ptf}")
        else:
            A(f"v_mov_b32 v{vT+1}, {ptx*1536 if 'p' in ptxw else 0x40000000}"); A(f"v_mov_b32 v{vT+2}, {ptx << 16 if 'x' in ptxw else 0x40000000}")
            A(f"v_cmp_gt_u32 vcc, 24, v0"); A(f"v_cndmask_b32 v{vT+1}, v{vT+1}, v{vT+2}, vcc")
            A(f"v_add_u32 v{vT+1}, v{vT+1}, v{vT}")
            A(f"s_and_b32 s{sT0}, s2, {ptx}"); A(f"s_cmp_eq_u32 s{sT0}, 0"); A("s_cbranch_scc1 L_ptdo")
            if 'x' in ptxw and 'p' in ptxw:
                A("s_branch L_ptend")
            else:
                if 'x' in ptxw: A(f"v_cndmask_b32 v{vT}, v{vT}, v{vT+3}, vcc")
                else: A(f"v_cndmask_b32 v{vT}, v{vT+3}, v{vT}, vcc")
                A(f"v_mov_b32 v{vT+1}, v{vT+3}")
            A.label("L_ptdo")
            A.raw(f"    buffer_load_dword a255, v{vT}, {srd(sWS)}, 0 offen {ptf}")
            A.raw(f"    buffer_load_dword a255, v{vT+1}, {srd(sWS)}, 0 offen {ptf}")
            A.label("L_ptend")
    def post_k(blk):
        stamp_at(A, f"k{blk}")
        if blk == rstage: late_touch()
        if blk == pretouch: do_pretouch()

    nmv = [0]; nqk = [0]; nmx = [0]
    def kcomp(upto_move, do_qk, maxqk=3):
        it = []
        while nmv[0] <= upto_move: it += k_move(nmv[0]); nmv[0] += 1
        n = 0
        while do_qk and nqk[0] < nmv[0] and n < maxqk:
            it += qk(nqk[0]); nqk[0] += 1; n += 1
            while nmx[0] < nqk[0] - 1: it += rmax(nmx[0]); nmx[0] += 1
        return it
    skip = set()
    for blk in range(0 if k0site else 1, 8):
        if blk in skip:
            post_k(blk); continue
        last = blk + 1 if (blk in siteQ and q2) else blk
        if last >= NS:
            if nmv[0] <= last - NS: run(kcomp(last - NS, False))
            A.wait_lg(mvseq[last - NS])
        if blk in siteQ:
            if blk == 0 and k0e:
                def ph(i):
                    def f():
                        kseq[0, i] = A.vm; A.vm += 1
                    return f
                site("QB", 0, 0, [ph(i) for i in range(8)] + k_loads(1), 1); skip.add(1)
                if rstage >= 0: late_setup()
            elif q2:
                site("QB", siteQ.index(blk), blk, k_loads(blk) + k_loads(blk + 1), blk + 1); skip.add(blk + 1)
            else:
                site("QB", siteQ.index(blk), blk, k_loads(blk))
            if blk == siteQ[1]:
                A(f"s_add_u32 s{sE1}, s{sE1}, 1")
                stamp_at(A, "qb1")
        else:
            comp = kcomp(blk - 2, blk > siteQ[1])
            if blk == 7: comp += tail_addr()
            mix(A, comp, k_loads(blk))
        post_k(blk)
    assert 7 not in skip
    assert 7 not in siteQ
    vseq = {}
    def v_load(B, blk, i, D, dyn=False):
        def f():
            throttle(B, D, None if dyn else 8 + blk)
            if i % 4 == 0:
                if dyn: B(f"s_add_u32 s{sSO}, s{sNX}, {(i//4)*4096}")
                else: B(f"s_mov_b32 s{sSO}, {blk*8192 + (i//4)*4096}")
                if dyn: B(f"s_add_u32 m0, s{sNS}, {(i//4)*4096}")
                else: B(f"s_add_u32 m0, s{sLK}, {(blk%NS)*8192 + (i//4)*4096}")
            q = B(f"buffer_load_dwordx4 v{vVA+(i&1)}, {srd(sV)}, s{sSO} offen offset:{(i&3)*1024} {vf} lds")
            if not dyn: vseq[blk, i] = q
        return f
    def v_loads(blk): return [v_load(A, blk, i, DV[blk]) for i in range(8)]
    run(["v_lshrrev_b32 v176, 4, v0", "v_and_b32 v177, 15, v0", "v_lshlrev_b32 v178, 1, v176", "v_xor_b32 v177, v177, v178",
         "v_lshlrev_b32 v177, 4, v177", f"v_lshl_add_u32 v{vVA}, v176, 8, v177", f"v_xor_b32 v{vVA+1}, 0x80, v{vVA}",
         f"s_lshl_b32 s{sT0}, s3, 11", f"s_add_u32 s{sT0}, s{sT0}, {L_PX}", f"v_add_u32 v{vPW}, s{sT0}, v{vLIN}", f"v_add_u32 v{vPR}, {L_PX}, v{vLIN}"])
    A.wait_lg(mvseq[4])
    mix(A, kcomp(6, True, 8), v_loads(0))
    vl = v_loads(1)
    cut = 0
    comp = kcomp(7, True, 8)
    comp += ["v_and_b32 v176, 15, v0", f"s_lshl_b32 s{sT0}, s3, 2",
             "v_lshlrev_b32 v176, 4, v176", f"v_add_u32 v176, {L_MX}, v176",
             f"v_add_u32 v177, s{sT0}, v176"]
    comp += rmax(7)
    for h in range(2): comp.append(f"v_mov_b32 v{178+h}, v{vMX+h}")
    for h in range(2): comp.append(f"v_permlane32_swap_b32 v{178+h}, v{vMX+h}")
    for h in range(2): comp.append(f"v_max_f32 v{vMX+h}, v{vMX+h}, v{178+h}")
    for h in range(2): comp.append(f"v_mov_b32 v{178+h}, v{vMX+h}")
    for h in range(2): comp.append(f"v_permlane16_swap_b32 v{178+h}, v{vMX+h}")
    for h in range(2): comp.append(f"v_max_f32 v{vMX+h}, v{vMX+h}, v{178+h}")
    comp += [f"ds_write_b32 v177, v{vMX}", f"ds_write_b32 v177, v{vMX+1} offset:256",
             lambda: A.wait_lg_all(), "s_barrier",
             f"ds_read_b128 {vr(180)}, v176", f"ds_read_b128 {vr(184)}, v176 offset:256",
             lambda: A.wait_lg_all()]
    for h in range(2): comp.append(f"v_max3_f32 v{vMX+h}, v{180+4*h}, v{181+4*h}, v{182+4*h}")
    for h in range(2): comp.append(f"v_max_f32 v{vMX+h}, v{vMX+h}, v{183+4*h}")
    for h in range(2): comp.append(f"v_mul_f32 v{vMX+h}, s{sSC}, v{vMX+h}")
    cut2 = 6
    mix(A, comp, vl[cut:cut2])
    run(["v_lshrrev_b32 v178, 2, v0", "v_and_b32 v179, 7, v178", "v_lshlrev_b32 v179, 1, v179",
         "v_bfe_u32 v180, v0, 1, 1", f"s_lshl_b32 s{sT0}, s3, 2", f"v_or_b32 v180, s{sT0}, v180",
         "v_xor_b32 v179, v179, v180", "v_lshlrev_b32 v179, 4, v179", "v_lshl_add_u32 v179, v178, 8, v179",
         "v_and_b32 v180, 1, v0", f"v_lshl_add_u32 v{vVR}, v180, 3, v179",
         f"v_xor_b32 v{vVR+1}, 32, v{vVR}", f"v_add_u32 v{vVR+2}, {2*L_KW}, v{vVR}", f"v_add_u32 v{vVR+3}, {2*L_KW}, v{vVR+1}"])
    stamp_at(A, "mxdone")
    def softmax(blk):
        it = []
        for h in range(2):
            b = vS + blk*16 + h*8
            for k in range(8): it.append(f"v_fma_f32 v{b+k}, v{b+k}, s{sSC}, -v{vMX+h}")
            for k in range(8): it.append(f"v_exp_f32 v{b+k}, v{b+k}")
        for h in range(2):
            b = vS + blk*16 + h*8
            for k in range(4): it.append(f"v_cvt_pk_bf16_f32 v{vS+blk*8+h*4+k}, v{b+2*k}, v{b+2*k+1}")
        return it
    def lsum(blk):
        return [f"{MF} {vr(vT+8+4*h)}, {vr(vT)}, {vr(vS+blk*8+h*4)}, {vr(vT+8+4*h) if blk else 0}" for h in range(2)]
    comp = [f"v_mov_b32 v{vT+k}, 0x3f803f80" for k in range(4)]
    for blk in range(8):
        comp += softmax(blk)
        if blk: comp += lsum(blk-1)
    comp += lsum(7)
    comp += ["v_and_b32 v1, 15, v0", f"s_lshl_b32 s{sT0}, s3, 2", f"v_lshl_add_u32 v1, v1, 4, s{sT0}", f"v_add_u32 v1, {L_LX}, v1",
             f"ds_write_b32 v1, v{vT+8}", f"ds_write_b32 v1, v{vT+12} offset:256"]
    def pwrite(j):
        return [f"ds_write_b128 v{vPW}, {vr(vS+j*8+h*4)} offset:{(j%3)*8192+h*1024}" for h in range(2)]
    comp += pwrite(0) + pwrite(1)
    mix(A, comp, vl[cut2:] + v_loads(2))
    stamp_at(A, "smdone")

    def sync(j):
        return [lambda: A.wait_vm(vseq[j, 7]), lambda: A.wait_lg_all(), "s_barrier"]
    rd = {}
    def preads(j):
        it = []
        for src in range(4):
            for h in range(2):
                def f(src=src, h=h): rd["p", src, h] = A(f"ds_read_b128 {vr(vPM+src*8+h*4)}, v{vPR} offset:{(j%3)*8192+src*2048+h*1024}")
                it.append(f)
        return it
    def rnd(j, withp=True):
        it = []
        pr = preads(j) if withp else []
        for src in range(4):
            it += pr[2*src:2*src+2]
            for t2 in range(2):
                for t in range(2):
                    def f(src=src, t2=t2, t=t):
                        rd["v", src, t2] = A(f"ds_read_b64_tr_b16 {vr(vVT+src*8+t2*4+t*2, 2)}, v{vVR+t2+2*(src>>1)} offset:{(src&1)*L_KW+(j%NS)*8192+t*4096}")
                    it.append(f)
        if j + 2 < 8: it += pwrite(j + 2)
        for src in range(4):
            for t2 in range(2):
                it.append(lambda src=src, t2=t2: A.wait_lg(rd["v", src, t2]))
                for h in range(2):
                    d = vr(vACC + h*8 + t2*4)
                    it.append(f"{MF} {d}, {vr(vVT+src*8+t2*4)}, {vr(vPM+src*8+h*4)}, {d if (j or src) else 0}")
        return it
    def stats_read():
        return ["v_and_b32 v1, 15, v0", "v_lshlrev_b32 v1, 4, v1", f"v_add_u32 v1, {L_LX}, v1",
                f"ds_read_b128 {vr(176)}, v1", f"ds_read_b128 {vr(180)}, v1 offset:256"]
    def stats_pub():
        def st():
            A("s_cmp_lg_u32 s3, 0"); A("s_cbranch_scc1 L_nostat")
            A.raw(f"    buffer_store_dwordx4 {vr(184)}, v1, {srd(sWS)}, s{sT0} offen {pubf}")
            A.raw("    s_nop 1")
            A.label("L_nostat")
        return ["v_add_f32 v176, v176, v177", "v_add_f32 v180, v180, v181", "v_add_f32 v178, v178, v179", "v_add_f32 v182, v182, v183",
                f"v_add_f32 v{vWQ}, v176, v178", f"v_add_f32 v{vX}, v180, v182",
                "v_and_b32 v1, 16, v0", "v_cmp_eq_u32 vcc, 0, v1",
                f"s_lshl_b32 s{sT0}, s{sXCC}, 28", f"s_xor_b32 s{sT0}, s{sT0}, s{sE1}",
                f"v_mov_b32 v186, s{sE1}", f"v_mov_b32 v187, s{sT0}",
                f"v_cndmask_b32 v184, v{vMX+1}, v{vMX}, vcc", f"v_cndmask_b32 v185, v{vX}, v{vWQ}, vcc",
                "v_and_b32 v1, 31, v0", "v_lshlrev_b32 v1, 4, v1",
                f"s_lshl_b32 s{sT0}, s{sPID}, 9", f"s_add_u32 s{sT0}, s{sT0}, {XS_OFF}", st]
    ev = []
    for r in range(7): ev += [("S", r), ("R", r)]
    pos = [0]
    def take(until):
        it = []
        while pos[0] <= ev.index(until):
            k, r = ev[pos[0]]; pos[0] += 1
            if k == "S": it += sync(r)
            else:
                if r == 0: it += stats_read()
                it += rnd(r)
                if r == 0: it += stats_pub()
        return it
    statseq = {}
    def ldstat(h):
        def f():
            if h == 0:
                A("v_and_b32 v1, 15, v0"); A("v_lshlrev_b32 v1, 4, v1")
                A(f"s_xor_b32 s{sSTA}, s{sPID}, 1"); A(f"s_lshl_b32 s{sSTA}, s{sSTA}, 9"); A(f"s_add_u32 s{sSTA}, s{sSTA}, {XS_OFF}")
            statseq[h] = A(f"buffer_load_dwordx4 {vr(72+4*h)}, v1, {srd(sWS)}, s{sSTA} offen offset:{h*256} {ldf}")
        return f
    for j in range(3, 8):
        if j >= NS: run(take(("S", j - NS + 1)))
        if j == 7: run([ldstat(0), ldstat(1)])
        if j in siteO:
            site("OB", siteO.index(j) ^ oswap, j, v_loads(j))
        elif j == 7:
            vl7 = v_loads(7)
            mix(A, take(("R", 4)), vl7[:front7] )
            mix(A, take(("R", 5)), vl7[front7:])
        else:
            mix(A, take(("R", j - 2)), v_loads(j))
        stamp_at(A, f"v{j}")
    run(take(("R", 5)))
    run([lambda: A.wait_vm(statseq[1])] + stat_scales(A, local))
    run([f"v_mov_b32 v{103+4*k}, s{sE1}" for k in range(3)])
    run(take(("R", 6))); run(preads(7))
    stamp_at(A, "v7")
    sy = sync(7)
    run(sy[:1]); stamp_at(A, "v7land"); run(sy[1:]); stamp_at(A, "v7b")
    if "notail" in exp: A("s_branch L_fin")
    run(rnd(7, withp=False))
    tail(A, pubf, ldf, stamp_at, sleepx, sleepg, outf, own, pipe, brx)
    A.label("L_fin")
    if stamps:
        A(f"s_lshl_b32 s{sT0}, s2, 2"); A(f"s_add_u32 s{sT0}, s{sT0}, s3"); A(f"s_lshl_b32 s{sT0}, s{sT0}, 6")
        A(f"s_add_u32 s{sT0}, s{sT0}, {STAMP_OFF}")
        A(f"s_add_u32 s18, s18, s{sT0}"); A("s_addc_u32 s19, s19, 0")
        A("v_mov_b32 v1, 0")
        for j in range(4):
            for k in range(4): A(f"v_mov_b32 v{4+k}, s{sSTAMP+4*j+k}")
            A(f"global_store_dwordx4 v1, v[4:7], s[18:19] offset:{16*j} sc1")
    A.label("L_end")
    A("s_endpgm")

    B = Asm()
    B.label("L_QB")
    stamp_at(B, "qbs"); stamp_at(B, "cnt_clk0")
    qs = {}
    def q_load(u, i):
        def f():
            B.wait_vm_n(DQ - 1)
            B(f"s_mov_b32 s{sSO}, {(u*32+i)*8192}")
            qs[u, i] = B(f"buffer_load_dwordx4 {vr(WQR[u%3]+4*i)}, v{vWQ}, {srd(sWQ)}, s{sSO} offen {w2f}")
        return f
    xs = {}
    def q_cons(u):
        it = [lambda: B.wait_vm(qs[u, 7]), lambda: B.wait_lg(xs[u])]
        if "nocomp" in exp: return it
        for q in range(4):
            tb = vT + (q & 1) * 8
            it += perms(WQR[u % 3], q, tb)
            for jo in range(2):
                d = vr(vQA + (2*q+jo)*4)
                it.append(f"{MF} {d}, {vr(tb+4*jo)}, {vr(vXO_+4*u)}, {d if u else 0}")
        return it
    for u in (0, 1):
        for i in range(8): q_load(u, i)()
    B.wait_vm(qs[0, 0]); B("s_barrier")
    for u in range(9): xs[u] = B(f"ds_read_b128 {vr(vXO_+4*u)}, v{vX} offset:{u*64}")
    for u in range(0, 7):
        mix(B, q_cons(u), [q_load(u+2, i) for i in range(8)])
    kn = [k_load(B, 1, i, 24, dyn=1) for i in range(8)]
    mix(B, q_cons(7), kn)
    mix(B, q_cons(8), [])
    stamp_at(B, "qbl")
    red = ["s_barrier",
           f"s_lshl_b32 s{sT0}, s3, 13", f"s_add_u32 s{sT0}, s{sT0}, {L_QR}", f"v_add_u32 v1, s{sT0}, v{vLIN}"]
    for j in range(8): red.append(f"ds_write_b128 v1, {vr(vQA+4*j)} offset:{j*1024}")
    red += [f"v_add_u32 v1, {L_QR}, v{vLIN}", lambda: B.wait_lg_all(), "s_barrier"]
    rs = {}
    for h in range(2):
        for j in range(8):
            for k in range(2):
                def f(h=h, j=j, k=k): rs[h, j, k] = B(f"ds_read_b128 {vr(vS+h*64+j*8+k*4)}, v1 offset:{(h+2*k)*8192+j*1024}")
                red.append(f)
    for h in range(2):
        for p in range(4):
            red.append(lambda h=h, p=p: B.wait_lg(rs[h, 2*p+1, 1]))
            for jo in range(2):
                b = vS + h*64 + (2*p+jo)*8
                for r in range(4): red.append(f"v_add_f32 v{b+r}, v{b+r}, v{b+4+r}")
            for r in range(4):
                red.append(f"v_cvt_pk_bf16_f32 v{vQ+h*16+r*4+p}, v{vS+h*64+(2*p)*8+r}, v{vS+h*64+(2*p+1)*8+r}")
    mix(B, red, [k_load(B, 2, i, DQ2, dyn=2) for i in range(8)] if q2 else [])
    stamp_at(B, "qbe")
    B(f"s_cmp_eq_u32 s{sSPL}, 0"); B("s_cbranch_scc1 L_QB_ret0"); B("s_branch L_QB_ret1")

    C = Asm()
    C.label("L_OB")
    stamp_at(C, "obs")
    C("s_cmp_eq_u32 s3, 3"); C("s_cbranch_scc1 L_OB3")
    os_ = {}
    OSL = [0, 1, 2, 0, 1, 2, 0, 1]
    def o_load(s, i):
        def f():
            C.wait_vm_n(DQ - 1)
            h, r = s >> 2, s & 3
            off = (h*128 + (0 if own else r*32) + (i>>2)*16 + (i&3)) * 1152
            so = off // 4096 * 4096
            if own: C(f"s_add_u32 s{sSO}, s{sRO+r}, {so}")
            else: C(f"s_mov_b32 s{sSO}, {so}")
            os_[s, i] = C(f"buffer_load_dwordx3 {vr(WOS[OSL[s]]+4*i, 3)}, v{vWO}, {srd(sWO)}, s{sSO} offen offset:{off-so} {w2f}")
        return f
    def o_cons(s):
        it = [lambda: C.wait_vm(os_[s, 7])]
        for q in range(3):
            tb = vT + (q & 1) * 8
            it += perms(WOS[OSL[s]], q, tb)
            for k in range(8): it.append(f"v_accvgpr_write_b32 a{s*24+q*8+k}, v{tb+k}")
        return it
    for s in (0, 1):
        for i in range(8): o_load(s, i)()
    for s in range(6):
        mix(C, o_cons(s), [o_load(s+2, i) for i in range(8)])
    mix(C, o_cons(6), [v_load(C, 3, i, 24, dyn=1) for i in range(8)])
    mix(C, o_cons(7), [])
    stamp_at(C, "obe")
    C(f"s_cmp_eq_u32 s{sSPL}, 0"); C("s_cbranch_scc1 L_OB_ret0"); C("s_branch L_OB_ret1")
    C.label("L_OB3")
    for i in range(8): v_load(C, 3, i, 63, dyn=1)()
    C(f"s_cmp_eq_u32 s{sSPL}, 0"); C("s_cbranch_scc1 L_OB_ret0"); C("s_branch L_OB_ret1")

    D = Asm()
    D.label("L_statpoll")
    D(f"s_mov_b32 s{sCNT}, {POLL_MAX}")
    D.label("L_statloop")
    for h in range(2): D(f"buffer_load_dwordx4 {vr(72+4*h)}, v1, {srd(sWS)}, s{sSTA} offen offset:{h*256} {ldf}")
    D("s_waitcnt vmcnt(0)")
    for c in stat_check(): D(c)
    D("s_cbranch_scc1 L_statok")
    D(f"s_sub_u32 s{sCNT}, s{sCNT}, 1"); D(f"s_cmp_lg_u32 s{sCNT}, 0"); D("s_cbranch_scc1 L_statloop")
    giveup(D, 0)

    far = "\n".join(FAR) + "\n"; FAR.clear()
    out = A.text() + far + B.text() + C.text() + D.text() + "L_codeend:\n" + "    s_nop 0\n" * 64
    out += f""".section .rodata,"a"
.p2align 6
.amdhsa_kernel {KNAME}
  .amdhsa_next_free_vgpr 512
  .amdhsa_next_free_sgpr 102
  .amdhsa_accum_offset 256
  .amdhsa_group_segment_fixed_size 0
  .amdhsa_kernarg_size 64
  .amdhsa_user_sgpr_count 2
  .amdhsa_user_sgpr_kernarg_segment_ptr 1
  .amdhsa_system_sgpr_workgroup_id_x 1
.end_amdhsa_kernel
"""
    return out

FAR = []
FAILDBG = False
def giveup(B, code):
    if FAILDBG:
        B("s_load_dwordx2 s[16:17], s[0:1], 48"); B("s_waitcnt lgkmcnt(0)")
        B(f"v_mov_b32 v1, {code*16}"); B("v_mov_b32 v2, 1")
        B("v_cmp_eq_u32 vcc, 0, v0"); B("s_and_saveexec_b64 s[56:57], vcc")
        B("global_atomic_add v1, v2, s[16:17]")
        B("v_mov_b32 v2, s2"); B("v_mov_b32 v3, s3"); B(f"v_mov_b32 v4, s{sE1}")
        B("global_store_dwordx3 v1, v[2:4], s[16:17] offset:4")
        B("s_waitcnt vmcnt(0)")
    B("s_endpgm")
def tail_addr():
    it = []
    a = it.append
    a("v_and_b32 v176, 15, v0"); a("v_lshrrev_b32 v177, 4, v0")
    a("v_mul_u32_u24 v178, 12288, v176"); a(f"v_lshl_add_u32 v{vPUB}, v177, 4, v178")
    a("v_mul_u32_u24 v178, 768, v177"); a(f"v_lshl_add_u32 v{vGAT}, v176, 4, v178")
    a(f"s_lshl_b32 s{sT0}, s{sB}, 1"); a(f"s_add_u32 s{sT0}, s{sT0}, s{sSPL}")
    a(f"s_mul_i32 s{sT0}, s{sT0}, 196608"); a(f"s_lshl_b32 s{sT1}, s3, 8"); a(f"s_add_u32 s{sT0}, s{sT0}, s{sT1}"); a(f"s_add_u32 s{sT0}, s{sT0}, {PY_OFF}")
    a(f"s_mul_i32 s{sT1}, s{sKVH}, 768"); a(f"s_add_u32 s{sPB}, s{sT0}, s{sT1}")
    a(f"s_mul_i32 s{sT1}, s{sKVH}, 12288"); a(f"s_add_u32 s{sGA}, s{sT0}, s{sT1}"); a(f"s_add_u32 s{sGA+1}, s{sGA}, 6144")
    a("v_cmp_eq_u32 vcc, 3, v177"); a("v_bfe_u32 v178, v0, 2, 2"); a("v_cndmask_b32 v177, v177, 1, vcc")
    a("v_mad_u32_u24 v178, v178, 3, v177")
    a("v_and_b32 v179, 3, v178"); a("v_mul_u32_u24 v179, 12, v179"); a("v_and_b32 v178, 12, v178"); a("v_add_u32 v179, v179, v178")
    a("v_and_b32 v178, 3, v0"); a(f"v_mad_u32_u24 v{vOUT}, v178, 48, v179")
    a(f"s_lshr_b32 s{sT0}, s{sPID}, 1"); a(f"s_mul_i32 s{sOB}, s{sT0}, 1152"); a(f"s_mul_i32 s{sT0}, s{sSPL}, 576"); a(f"s_add_u32 s{sOB}, s{sOB}, s{sT0}")
    a(f"s_mul_i32 s{sT0}, s3, 192"); a(f"s_add_u32 s{sOB}, s{sOB}, s{sT0}")
    a(f"s_lshl_b32 s{sT0}, s3, 10"); a(f"s_add_u32 s{sT0}, s{sT0}, {L_BX}"); a(f"v_add_u32 v{vBXW}, s{sT0}, v{vLIN}")
    for sg in range(4):
        a(f"s_add_u32 s{sT0}, s3, {sg}"); a(f"s_and_b32 s{sT0}, s{sT0}, 3"); a(f"s_mul_i32 s{sRO+sg}, s{sT0}, {32*1152}")
        if sg: a(f"s_lshl_b32 s{sT0}, s{sT0}, 10"); a(f"s_add_u32 s{sT0}, s{sT0}, {L_BX}"); a(f"v_add_u32 v{vBXR+sg-1}, s{sT0}, v{vLIN}")
    a(f"s_lshl_b32 s{sXOo}, s{sPID}, 14"); a(f"s_lshl_b32 s{sT0}, s3, 12"); a(f"s_add_u32 s{sXOo}, s{sXOo}, s{sT0}")
    a(f"s_xor_b32 s{sXOp}, s{sXOo}, {1<<14}")
    a(f"s_add_u32 s{sXOo}, s{sXOo}, {XO_OFF}"); a(f"s_add_u32 s{sXOp}, s{sXOp}, {XO_OFF}")
    for n in (sXL, sXG):
        a(f"s_mov_b32 s{n}, s{sWS}"); a(f"s_mov_b32 s{n+1}, s{sWS+1}"); a(f"s_mov_b32 s{n+3}, 0x20000")
    return it

def stat_check():
    return [f"v_xor_b32 v80, s{sE1}, v74", f"v_xor_b32 v81, s{sE1}, v75", f"v_xor_b32 v82, s{sE1}, v78", f"v_xor_b32 v83, s{sE1}, v79",
            "v_or_b32 v84, v81, v83", "v_and_b32 v84, 0x0fffffff, v84",
            "v_or3_b32 v80, v80, v84, v82", "v_cmp_eq_u32 vcc, 0, v80", "s_cmp_eq_u64 vcc, -1"]

def stat_scales(A, local):
    it = stat_check()
    def br():
        A("s_cbranch_scc0 L_statpoll")
        A.label("L_statok")
    it.append(br)
    it += [f"v_readfirstlane_b32 s{sT0}, v81", f"s_lshr_b32 s{sT0}, s{sT0}, 28", f"s_cmp_eq_u32 s{sT0}, s{sXCC}",
           f"s_cselect_b32 s{sLOC}, {1 if local else 0}, 0",
           f"s_cselect_b32 s{sXL+2}, {WS_USED if local else 0}, 0", f"s_cselect_b32 s{sXG+2}, {0 if local else WS_USED}, {WS_USED}"]
    for h in range(2):
        it += [f"v_max_f32 v{80+h}, v{vMX+h}, v{72+4*h}"]
    for h in range(2):
        it += [f"v_sub_f32 v{82+h}, v{vMX+h}, v{80+h}", f"v_sub_f32 v{84+h}, v{72+4*h}, v{80+h}"]
    for h in range(2):
        it += [f"v_exp_f32 v{82+h}, v{82+h}", f"v_exp_f32 v{84+h}, v{84+h}"]
    for h in range(2):
        it += [f"v_mul_f32 v{84+h}, v{84+h}, v{73+4*h}"]
    for h in range(2):
        it += [f"v_fma_f32 v{84+h}, v{82+h}, v{vWQ+h}, v{84+h}"]
    for h in range(2):
        it += [f"v_rcp_f32 v{84+h}, v{84+h}"]
    for h in range(2):
        it += [f"v_mul_f32 v{vWQ+h}, v{82+h}, v{84+h}"]
    return it

def poll(A, name, loads, tags, slp):
    A(f"s_mov_b32 s{sCNT}, {POLL_MAX}")
    A.label(name)
    for l in loads: A(l)
    A("s_waitcnt vmcnt(0)")
    A.vm_done = A.vm - 1
    for k, t in enumerate(tags): A(f"v_xor_b32 v{70+k}, s{sE1}, v{t}")
    A("v_or3_b32 v70, v70, v71, v72")
    if len(tags) == 4: A("v_or_b32 v70, v70, v73")
    A("v_cmp_eq_u32 vcc, 0, v70"); A("s_cmp_eq_u64 vcc, -1")
    A(f"s_cbranch_scc1 {name}_ok")
    if slp: A(f"s_sleep {slp}")
    A(f"s_sub_u32 s{sCNT}, s{sCNT}, 1"); A(f"s_cmp_lg_u32 s{sCNT}, 0"); A(f"s_cbranch_scc1 {name}")
    giveup(A, 1 if name == "L_xp" else 2)
    A.label(f"{name}_ok")

def tail(A, pubf, ldf, stamp_at, sleepx, sleepg, outf, own, pipe, brx):
    XG = 100
    def xreg(k): return XG + (k // 3) * 4 + k % 3
    sent = 0
    for x in range(4):
        b = vACC + x*4
        for r in range(4): A(f"v_mul_f32 v{b+r}, v{b+r}, v{vWQ+(x>>1)}")
        for p in range(2): A(f"v_cvt_pk_bf16_f32 v{xreg(2*x+p)}, v{b+2*p}, v{b+2*p+1}")
        while not brx and sent < 3 and min(3*sent + 2, 7) <= 2*x + 1:
            A(f"buffer_store_dwordx4 {vr(XG+sent*4)}, v{vLIN}, {srd(sXL)}, s{sXOo} offen offset:{sent*1024}")
            A(f"buffer_store_dwordx4 {vr(XG+sent*4)}, v{vLIN}, {srd(sXG)}, s{sXOo} offen offset:{sent*1024} {pubf}")
            sent += 1
    if brx:
        A.raw(f"    s_cmp_eq_u32 s{sLOC}, 0"); A.raw("    s_cbranch_scc1 L_xfar")
        for k in range(3): A(f"buffer_store_dwordx4 {vr(XG+k*4)}, v{vLIN}, {srd(sWS)}, s{sXOo} offen offset:{k*1024}")
        A.raw("L_xsent:")
        FAR.append("L_xfar:")
        for k in range(3): FAR.append(f"    buffer_store_dwordx4 {vr(XG+k*4)}, v{vLIN}, {srd(sWS)}, s{sXOo} offen offset:{k*1024} {pubf}")
        FAR.append("    s_branch L_xsent")
    stamp_at(A, "xst")
    poll(A, "L_xp", [f"buffer_load_dwordx4 {vr(112+4*x)}, v{vLIN}, {srd(sWS)}, s{sXOp} offen offset:{x*1024} {ldf}" for x in range(3)], [115, 119, 123], sleepx)
    stamp_at(A, "cntx"); stamp_at(A, "xok")
    def mm(j, s, breg, first):
        d = vr(168 + 4*j)
        return f"{MF} {d}, {ar(s*24+j*4)}, {vr(breg)}, {0 if first else d}"
    def fin(h):
        it = []
        for p in range(4):
            k = h*4 + p; src = 112 + (k // 3) * 4 + k % 3
            it += [f"v_lshlrev_b32 v{16+2*k}, 16, v{src}", f"v_and_b32 v{17+2*k}, 0xffff0000, v{src}"]
        for e in range(8): it.append(f"v_add_f32 v{16+h*8+e}, v{16+h*8+e}, v{vACC+h*8+e}")
        for p in range(4): it.append(f"v_cvt_pk_bf16_f32 v{128+h*4+p}, v{16+h*8+2*p}, v{17+h*8+2*p}")
        it.append(f"ds_write_b128 v{vBXW}, {vr(128+h*4)} offset:{h*4096}")
        return it
    for c in fin(0): A(c)
    f1 = fin(1)
    if own:
        m0 = [mm(j, 0, 128, True) for j in range(6)]
        for k, c in enumerate(f1):
            if k % 3 == 2 and m0: A(m0.pop(0))
            A(c)
        for c in m0: A(c)
    else:
        for c in f1: A(c)
    A.wait_lg_all(); A("s_barrier")
    A("s_cmp_eq_u32 s3, 3"); A.raw("    s_cbranch_scc1 L_fin")
    stamp_at(A, "bxb")
    PG = 192
    def preg(D): return PG + (D // 3) * 4 + D % 3
    def pack(jp):
        for r in range(4): A(f"v_cvt_pk_bf16_f32 v{preg(jp*4+r)}, v{168+8*jp+r}, v{172+8*jp+r}")
    def pub(gm): A(f"buffer_store_dwordx4 {vr(PG+gm*4)}, v{vPUB}, {srd(sWS)}, s{sPB} offen offset:{gm*64} {pubf}")
    if own:
        steps = [1, 5, 2, 6, 3, 7]
        bs = {s: A(f"ds_read_b128 {vr(136+4*s)}, v{vBXR+(s&3)-1} offset:{(s>>2)*4096}") for s in steps}
        for j in range(6): A(mm(j, 4, 132, False))
    else:
        steps = list(range(8))
        bs = {s: A(f"ds_read_b128 {vr(136+4*s)}, v{vPR} offset:{s*1024}") for s in steps}
    for k in range(4): A(f"v_mov_b32 v{PG+3+4*k}, s{sE1}")
    for jp in range(3):
        for n, s in enumerate(steps):
            A.wait_lg(bs[s])
            for j in (2*jp, 2*jp+1): A(mm(j, s, 136+4*s, (not own) and s == 0))
            if jp and n == 4:
                pack(jp - 1); pub(jp - 1)
    pack(2); pub(2); pub(3)
    stamp_at(A, "pub")
    def gl(GB): return [f"buffer_load_dwordx4 {vr(GB+4*k)}, v{vGAT}, {srd(sWS)}, s{sGA+(k>>1)} offen offset:{(k&1)*3072} {ldf}" for k in range(4)]
    def unpack(GB):
        for k in range(4):
            for d in range(3):
                A(f"v_lshlrev_b32 v{16+8*k+d}, 16, v{GB+4*k+d}"); A(f"v_and_b32 v{20+8*k+d}, 0xffff0000, v{GB+4*k+d}")
    def chk(GB, target):
        for k in range(4): A(f"v_xor_b32 v{70+k}, s{sE1}, v{GB+3+4*k}")
        A("v_or3_b32 v70, v70, v71, v72"); A("v_or_b32 v70, v70, v73")
        A("v_cmp_eq_u32 vcc, 0, v70"); A("s_cmp_eq_u64 vcc, -1")
        A.raw(f"    s_cbranch_scc1 {target}")
    if pipe:
        GA, GB = 208, 224
        A(f"s_mov_b32 s{sCNT}, {POLL_MAX}")
        for l in gl(GA): A(l)
        if sleepg: A(f"s_sleep {sleepg}")
        A.label("L_gp")
        for l in gl(GB): A(l)
        A("s_waitcnt vmcnt(4)"); chk(GA, "L_gp_okA")
        for l in gl(GA): A(l)
        A("s_waitcnt vmcnt(4)"); chk(GB, "L_gp_okB")
        A(f"s_sub_u32 s{sCNT}, s{sCNT}, 1"); A(f"s_cmp_lg_u32 s{sCNT}, 0"); A("s_cbranch_scc1 L_gp")
        A("s_endpgm")
        A.label("L_gp_okB"); unpack(GB); A.raw("    s_branch L_gsum")
        A.label("L_gp_okA"); unpack(GA)
        A.raw("L_gsum:")
        stamp_at(A, "cntg"); stamp_at(A, "gok")
    else:
        GB = 208
        poll(A, "L_gp", gl(GB), [GB+3+4*k for k in range(4)], sleepg)
        stamp_at(A, "cntg"); stamp_at(A, "gok")
        unpack(GB)
    for e in (0, 1, 2, 4, 5, 6):
        A(f"v_add_f32 v{16+e}, v{16+e}, v{24+e}"); A(f"v_add_f32 v{32+e}, v{32+e}, v{40+e}")
    for e in (1, 5, 0, 4, 2, 6): A(f"v_add_f32 v{16+e}, v{16+e}, v{32+e}")
    A("v_mov_b32 v19, v17"); A("v_mov_b32 v23, v21")
    for (a_, b_) in ((16, 18), (20, 22), (17, 19), (21, 23)): A(f"v_permlane32_swap_b32 v{a_}, v{b_}")
    for (a_, b_) in ((16, 18), (20, 22), (17, 19), (21, 23)): A(f"v_add_f32 v{a_}, v{a_}, v{b_}")
    A("v_permlane16_swap_b32 v16, v17"); A("v_permlane16_swap_b32 v20, v21")
    A("v_add_f32 v16, v16, v17"); A("v_add_f32 v20, v20, v21")
    A("v_cvt_pk_bf16_f32 v16, v16, v20")
    A(f"buffer_store_dword v16, v{vOUT}, {srd(sOUT)}, s{sOB} offen {outf}")
    A(f"s_or_b32 s{sT0}, s{sKVH}, s{sSPL}"); A(f"s_or_b32 s{sT0}, s{sT0}, s3"); A(f"s_cmp_lg_u32 s{sT0}, 0"); A("s_cbranch_scc1 L_noep")
    A(f"v_mov_b32 v1, s{sE1}"); A(f"s_lshl_b32 s{sT0}, s{sB}, 8"); A("v_mov_b32 v2, 0")
    A(f"buffer_store_dword v1, v2, {srd(sWS)}, s{sT0} offen")
    A.label("L_noep")
    stamp_at(A, "end")

if __name__ == "__main__":
    import json
    kw = json.loads(sys.argv[2]) if len(sys.argv) > 2 else {}
    open(sys.argv[1], "w").write(gen(**kw))
```

```python
import sys, math, struct
from asmlib import Asm

KNAME = "standalone__sliding_block_cached__sampling_kernel"
HDR = open('standalone__sliding_block_cached__sampling.s.ref').read().split('; Override')[0]

EP_OFF = 0
XS_OFF = 0x10000
XO_OFF = 0x100000
PY_OFF = 0x800000
WS_USED = 0x1000000
STAMP_OFF = 512 << 20
NS = 4
L_KW = NS * 8192
L_QR = 4 * L_KW
L_PX = L_QR
L_BX = L_QR
L_MX = L_QR + 24576
L_LX = L_MX + 512
L_XI = L_QR
LDS_BYTES = L_QR + 32768
POLL_MAX = 200000

def f32(x): return struct.unpack('<I', struct.pack('<f', x))[0]
SCALE = f32(1.4426950408889634 / math.sqrt(128.0))

sK, sV, sWQ, sWO, sX, sWS, sOUT, sWP, sPUB = 20, 24, 28, 32, 36, 40, 44, 68, 72
sXL, sXG = 28, 36
sSELL, sSELH, sSC, sTAG, sTAB, sSO, sLK, sKVH, sSPL, sB = 48, 49, 50, 51, 52, 61, 62, 63, 64, 65
sE1, sMASK = 66, 67
sPID, sXOo, sXOp, sNX, sXCC, sLVL, sCNT, sT0, sT1, sSLOT = 76, 77, 78, 79, 80, 81, 82, 83, 84, 85
sSTAMP = 86
sNS, sSTA, sNS2 = 53, 54, 55
sPB, sGA, sOB = 4, 6, 8
def srd(n): return f"s[{n}:{n+3}]"
vKA, vKR, vLIN, vWQ, vX, vWO, vMX = 2, 6, 10, 11, 12, 13, 14
vQ = 16
vS = 48
vT = 176
vVT = 16
vPM = 192
vACC = 224
vVA, vVR, vPW, vPR = 2, 6, 4, 5
vXO_ = 48
vQA = 84
WQR = [192, 224, 116]
WOS = [112, 144, 16]
vPUB, vOUT, vGAT, vBXW, vBXR = 240, 241, 242, 243, 244
sRO = 56
sLOC = 60

def vr(b, n=4): return f"v[{b}:{b+n-1}]"
def ar(b, n=4): return f"a[{b}:{b+n-1}]"
MF = "v_mfma_f32_16x16x32_bf16"

def cost(it):
    if callable(it): return 1
    if it.startswith('v_mfma'): return 12
    if it.startswith('v_exp') or it.startswith('v_rcp'): return 8
    return 4

def mix(A, comp, loads):
    tot = sum(cost(c) for c in comp)
    n = len(loads); k = 0; acc = 0
    for c in comp:
        while k < n and acc >= tot * k / max(n, 1):
            loads[k](); k += 1
        if callable(c): c()
        else: A(c)
        acc += cost(c)
    while k < n:
        loads[k](); k += 1

def perms(R, q, tb):
    it = []
    for p in range(4): it.append(f"v_perm_b32 v{tb+p}, v{R+(2*p+1)*4+q}, v{R+(2*p)*4+q}, s{sSELL}")
    for p in range(4): it.append(f"v_perm_b32 v{tb+4+p}, v{R+(2*p+1)*4+q}, v{R+(2*p)*4+q}, s{sSELH}")
    return it

def gen(DK=(8,8,8,8,8,8,5,5), DV=(5,5,5,5,10,10,10,16), DQ=16, stamps=False, kf="nt", vf="nt", w1f="", w2f="", pubf="sc1", ldf="sc1",
        codepf=True, wsbase=0, pretouch=1, ptf="", local=True, promote=False, sleepx=0, sleepg=0, tlbwarm=True, noOB=False, noQB=False, exp="", outtouch=True, outf="", kfirst=True, pt="xp", DLO=None, lomask=0x55, DMID=None, midmask=0, siteQ=(0, 4), siteO=(4, 7), front7=8, q2=True, DQ2=8, rstage=2, own=True, pipe=False, brx=True, k0early=False, pfirst=True, oswap=0, prer=(None, 5), frontn=False, earlyscl=False, ptlate="", ptlj=7, ptx=0, ptxw="xp", faildbg=False, pollmax=200000):
    global POLL_MAX, FAILDBG
    POLL_MAX = pollmax; FAILDBG = faildbg
    siteQ = tuple(siteQ); siteO = tuple(siteO)
    if isinstance(DK, int): DK = (DK,) * 8
    if isinstance(DV, int): DV = (DV,) * 8
    if isinstance(DLO, int): DLO = (DLO,) * 16
    if isinstance(DMID, int): DMID = (DMID,) * 16
    dr = []
    if "nobar" in exp: dr += ["s_barrier"]
    if "nomath" in exp: dr += ["v_mfma", "v_exp", "v_fma", "v_cvt", "v_perm", "v_max3", "v_accvgpr_write"]
    if "nods" in exp: dr += ["ds_"]
    Asm.drop = tuple(dr)
    A = Asm()
    def stamp_at(B, name):
        if not stamps or name not in stamps: return
        i = stamps.index(name) + 1
        if name.startswith("cnt") and not name.startswith("cnt_clk"):
            B(f"s_sub_u32 s{sSTAMP+2*i}, {POLL_MAX}, s{sCNT}"); B(f"s_mov_b32 s{sSTAMP+2*i+1}, 0")
            return
        B.wait_lg_all()
        B(f"{'s_memtime' if name.startswith('cnt_clk') else 's_memrealtime'} s[{sSTAMP+2*i}:{sSTAMP+2*i+1}]")
        B.wait_lg_all()
    def run(comp, B=A):
        for c in comp:
            if callable(c): c()
            else: B(c)

    A.raw(HDR.rstrip())
    A.raw(f"; @launch grid=(256,1,1) block=(256,1,1) lds={LDS_BYTES}")
    A.raw('.amdgcn_target "amdgcn-amd-amdhsa--gfx950"')
    A.raw(".text"); A.raw(f".globl {KNAME}"); A.raw(".p2align 8"); A.raw(f".type {KNAME},@function"); A.raw(f"{KNAME}:")
    A("s_cmp_ge_u32 s2, 256"); A("s_cbranch_scc1 L_end")
    A("s_load_dwordx8 s[4:11], s[0:1], 0")
    A("s_load_dwordx8 s[12:19], s[0:1], 32")
    if stamps: A(f"s_memrealtime s[{sSTAMP}:{sSTAMP+1}]")
    A("s_getpc_b64 s[100:101]")
    A.raw("L_pc:")
    if codepf:
        A(f"s_and_b32 s{sT1}, s2, 0xf8"); A(f"v_add_lshl_u32 v16, v0, s{sT1}, 7")
        A("v_min_u32 v16, L_codeend-L_pc-4, v16")
        A("v_cmp_gt_u32 vcc, 8, v0"); A("s_and_saveexec_b64 s[56:57], vcc"); A.raw("    s_cbranch_execz L_nocpf")
        A.raw("    global_load_dword a255, v16, s[100:101]")
        A.raw("L_nocpf:")
        A("s_mov_b64 exec, s[56:57]")
    A("v_lshrrev_b32 v1, 6, v0")
    A("v_mov_b32 v18, v0")
    A("v_readfirstlane_b32 s3, v1")
    A("v_and_b32 v0, 63, v0")
    A(f"s_and_b32 s{sTAB}, s2, 7"); A(f"s_lshr_b32 s{sSLOT}, s2, 3")
    A(f"s_and_b32 s{sT0}, s{sSLOT}, 1"); A(f"s_lshl_b32 s61, s{sTAB}, 1"); A(f"s_add_u32 s{sKVH}, s61, s{sT0}")
    A(f"s_lshr_b32 s{sSPL}, s{sSLOT}, 1"); A(f"s_and_b32 s{sSPL}, s{sSPL}, 1")
    A(f"s_lshr_b32 s{sB}, s{sSLOT}, 2")
    A("v_lshrrev_b32 v20, 4, v0")
    A("v_and_b32 v21, 15, v0")
    A(f"v_lshlrev_b32 v{vLIN}, 4, v0")
    A("v_lshlrev_b32 v22, 2, v20"); A("v_xor_b32 v22, v21, v22"); A("v_lshlrev_b32 v22, 4, v22"); A(f"v_lshl_add_u32 v{vKA}, v20, 8, v22")
    for i in range(1, 4): A(f"v_xor_b32 v{vKA+i}, {i<<4}, v{vKA}")
    A(f"s_mul_i32 s{sLK}, s3, {L_KW}")
    A(f"s_lshl_b32 s{sPID}, s{sB}, 4"); A(f"s_add_u32 s{sPID}, s{sPID}, s{sKVH}")
    A(f"s_lshl_b32 s{sT0}, s{sPID}, 21"); A(f"s_add_u32 s{sT0}, s{sT0}, {6144*256}")
    A(f"s_lshl_b32 s{sT1}, s{sSPL}, 18"); A(f"s_add_u32 s{sT0}, s{sT0}, s{sT1}")
    A(f"s_lshl_b32 s{sT1}, s3, 16"); A(f"s_add_u32 s{sT0}, s{sT0}, s{sT1}")
    A(f"s_lshl_b32 s{sPID}, s{sPID}, 1"); A(f"s_add_u32 s{sPID}, s{sPID}, s{sSPL}")
    A("v_mov_b32 v23, 0x7ffffff0"); A("v_cmp_gt_u32 vcc, 144, v18")
    A("v_lshrrev_b32 v22, 3, v18"); A(f"s_mul_i32 s{sT1}, s{sSLOT}, 18"); A(f"v_add_u32 v22, s{sT1}, v22"); A("v_lshlrev_b32 v22, 13, v22")
    A("v_and_b32 v24, 7, v18"); A("v_lshl_add_u32 v22, v24, 7, v22"); A("v_cndmask_b32 v16, v23, v22, vcc")
    A("v_lshlrev_b32 v22, 7, v18"); A("v_cndmask_b32 v17, v23, v22, vcc")
    A("s_waitcnt lgkmcnt(0)")
    def mksrd(n, p, off, size):
        if off is None or off == 0:
            A(f"s_mov_b32 s{n}, s{p}"); A(f"s_mov_b32 s{n+1}, s{p+1}")
        else:
            A(f"s_add_u32 s{n}, s{p}, {off}"); A(f"s_addc_u32 s{n+1}, s{p+1}, 0")
        A(f"s_mov_b32 s{n+2}, {size}"); A(f"s_mov_b32 s{n+3}, 0x20000")
    mksrd(sK, 6, f"s{sT0}", 65536)
    nlab = [0]
    def throttle(B, D, idx):
        B.wait_vm_n(D - 1)
        if idx is None or DLO is None: return
        lo = DLO[idx]; mid = DMID[idx] if DMID else D
        if lo >= D and mid >= D: return
        nlab[0] += 1
        if mid < D:
            B.raw(f"    s_cmp_eq_u32 s{sLVL}, 0"); B.raw(f"    s_cbranch_scc1 L_t{nlab[0]}")
            B.raw(f"    s_waitcnt vmcnt({mid-1})")
        B.raw(f"    s_cmp_lt_u32 s{sLVL}, 2"); B.raw(f"    s_cbranch_scc1 L_t{nlab[0]}")
        B.raw(f"    s_waitcnt vmcnt({lo-1})")
        B.raw(f"L_t{nlab[0]}:")
    kseq = {}
    def k_load(B, blk, i, D, dyn=False):
        def f():
            throttle(B, D, None if dyn else blk)
            if i % 4 == 0:
                if dyn: B(f"s_add_u32 s{sSO}, s{sNX}, {(dyn-1)*8192 + (i//4)*4096}")
                else: B(f"s_mov_b32 s{sSO}, {blk*8192 + (i//4)*4096}")
                if dyn: B(f"s_add_u32 m0, s{sNS if dyn == 1 else sNS2}, {(i//4)*4096}")
                else: B(f"s_add_u32 m0, s{sLK}, {(blk%NS)*8192 + (i//4)*4096}")
            q = B(f"buffer_load_dwordx4 v{vKA+(i&3)}, {srd(sK)}, s{sSO} offen offset:{(i&3)*1024} {kf} lds")
            if not dyn: kseq[blk, i] = q
        return f
    def k_loads(blk): return [k_load(A, blk, i, DK[blk]) for i in range(8)]
    k0site = 0 in siteQ
    nfirst = 0 if k0site else (8 if kfirst is True else int(kfirst))
    for i in range(nfirst): k_load(A, 0, i, 63)()
    k0e = k0site and k0early
    def ppf():
        mksrd(sWP, 10, None, 576*8192)
        A(f"s_lshl_b32 s{sT1}, s{sTAB}, 10")
        A(f"buffer_load_dword a255, v16, {srd(sWP)}, s{sT1} offen {w1f}")
    if pfirst: ppf()
    if k0e:
        A(f"s_cmp_eq_u32 s{sSPL}, 0"); A.raw("    s_cbranch_scc1 L_nok0")
        sv = A.vm
        for i in range(8): k_load(A, 0, i, 63)()
        A.vm = sv
        A.raw("L_nok0:")
    if not pfirst: ppf()
    mksrd(sV, 8, f"s{sT0}", 65536)
    A(f"s_mul_i32 s{sT0}, s{sB}, 18432")
    mksrd(sX, 4, f"s{sT0}", 18432)
    A(f"s_lshl_b32 s{sT1}, s3, 10")
    for k in range(5):
        A(f"s_add_u32 m0, s{sT1}, {L_XI + k*4096}"); A(f"s_add_u32 s{sSO}, s{sT1}, {k*4096}")
        A(f"buffer_load_dwordx4 v{vLIN}, {srd(sX)}, s{sSO} offen lds")
    A(f"s_lshl_b32 s{sT1}, s{sB}, 8"); A(f"s_add_u32 s{sT1}, s{sT1}, {wsbase + 12}"); A(f"s_load_dword s{sE1}, s[18:19], s{sT1}")
    if not k0site:
        for i in range(nfirst, 8): k_load(A, 0, i, 63)()
    A("v_accvgpr_write_b32 a254, v17")
    def late_touch():
        A("v_accvgpr_read_b32 v1, a254")
        A(f"s_lshl_b32 s{sT1}, s{sTAB}, 5"); A(f"s_add_u32 s{sT1}, s{sT1}, s{sSLOT}"); A(f"s_mul_i32 s{sT1}, s{sT1}, {144*128}")
        A(f"buffer_load_dword a255, v1, {srd(sWP)}, s{sT1} offen {w1f}")
        if tlbwarm:
            A(f"v_mov_b32 v{vT}, 0")
            A(f"buffer_load_dword a255, v{vT}, {srd(sV)}, 0 offen {vf}")
        if outtouch:
            A(f"s_mul_i32 s{sT1}, s{sPID}, 576"); A(f"s_lshl_b32 s{sT0}, s3, 13"); A(f"s_add_u32 s{sT1}, s{sT1}, s{sT0}")
            A(f"v_lshlrev_b32 v{vT+1}, 7, v0"); A("v_cmp_gt_u32 vcc, 5, v0"); A(f"v_mov_b32 v{vT+2}, 0x7ffffff0")
            A("s_cmp_eq_u32 s3, 0"); A("s_cselect_b64 vcc, vcc, 0")
            A(f"v_cndmask_b32 v{vT+1}, v{vT+2}, v{vT+1}, vcc")
            A(f"buffer_load_dword a255, v{vT+1}, {srd(sOUT)}, s{sT1} offen")
    if stamps:
        A(f"s_lshl_b32 s{sT1}, s2, 8"); A(f"s_add_u32 s{sT1}, s{sT1}, {STAMP_OFF}")
        A(f"s_add_u32 s16, s18, s{sT1}"); A("s_addc_u32 s17, s19, 0")
        A("v_and_b32 v17, 128, v18")
        A("global_load_dword a255, v17, s[16:17]")
    A(f"s_and_b32 s{sT0}, s3, 1"); A(f"s_lshl_b32 s{sT1}, s{sKVH}, 1"); A(f"s_add_u32 s{sT0}, s{sT0}, s{sT1}"); A(f"s_lshl_b32 s{sT0}, s{sT0}, 8")
    A(f"s_lshr_b32 s{sT1}, s3, 1"); A(f"s_mul_i32 s61, s{sT1}, {288*8192}"); A(f"s_add_u32 s{sT0}, s{sT0}, s61")
    mksrd(sWQ, 10, f"s{sT0}", 287*8192+256)
    A("v_lshlrev_b32 v22, 4, v21"); A(f"v_lshl_add_u32 v{vWQ}, v20, 16, v22")
    A(f"s_mul_i32 s{sT1}, s{sT1}, 576"); A(f"s_add_u32 s{sT1}, s{sT1}, {L_XI}")
    A("v_mul_u32_u24 v22, 1152, v21"); A("v_lshl_add_u32 v22, v20, 4, v22"); A(f"v_add_u32 v{vX}, s{sT1}, v22")
    A(f"s_mov_b32 s{sSELL}, 0x05040100"); A(f"s_mov_b32 s{sSELH}, 0x07060302")
    if noQB: A(f"s_mov_b32 s{sWQ+2}, 0")
    A(f"s_getreg_b32 s{sXCC}, hwreg(HW_REG_XCC_ID, 0, 4)")
    if DLO is not None:
        A(f"s_lshr_b32 s{sT0}, {lomask}, s{sXCC}"); A(f"s_and_b32 s{sT0}, s{sT0}, 1"); A(f"s_lshl_b32 s{sLVL}, s{sT0}, 1")
        A(f"s_lshr_b32 s{sT0}, {midmask}, s{sXCC}"); A(f"s_and_b32 s{sT0}, s{sT0}, 1"); A(f"s_or_b32 s{sLVL}, s{sLVL}, s{sT0}")
    def late_setup():
        mksrd(sOUT, 14, None, 8*16*576*2)
        mksrd(sWP, 12, None, 4096*1152)
        A(f"s_mul_i32 s{sT0}, s{sKVH}, {256*1152}")
        A(f"s_mul_i32 s{sT1}, s{sSPL}, 576"); A(f"s_add_u32 s{sT0}, s{sT0}, s{sT1}")
        A(f"s_mul_i32 s{sT1}, s3, 192"); A(f"s_add_u32 s{sT0}, s{sT0}, s{sT1}")
        mksrd(sWO, 12, f"s{sT0}", 255*1152+192)
        mksrd(sWS, 18, wsbase, WS_USED)
        A("s_cmp_eq_u32 s3, 3"); A(f"s_cselect_b32 s{sWO+2}, 0, s{sWO+2}")
        if noOB: A(f"s_mov_b32 s{sWO+2}, 0")
        A(f"s_mov_b32 s{sSC}, {SCALE:#x}")
        g_, c_, t2, t3 = vT, vT+1, vT+2, vT+3
        A(f"v_lshrrev_b32 v{g_}, 4, v0"); A(f"v_and_b32 v{c_}, 15, v0")
        A(f"v_mul_u32_u24 v{t2}, 4608, v{g_}"); A(f"v_mul_u32_u24 v{t3}, 12, v{c_}"); A(f"v_add_u32 v{vWO}, v{t2}, v{t3}")
        A(f"v_and_b32 v{t2}, 3, v{c_}"); A(f"v_lshlrev_b32 v{t2}, 2, v{t2}"); A(f"v_lshrrev_b32 v{t3}, 2, v{c_}"); A(f"v_add_u32 v{t2}, v{t2}, v{t3}")
        A(f"v_lshlrev_b32 v{t3}, 2, v{g_}"); A(f"v_xor_b32 v{t3}, v{t3}, v{t2}"); A(f"v_lshlrev_b32 v{t3}, 4, v{t3}"); A(f"v_lshl_add_u32 v{t3}, v{c_}, 8, v{t3}")
        A(f"v_add_u32 v{vKR}, s{sLK}, v{t3}")
        for s in range(1, 4): A(f"v_xor_b32 v{vKR+s}, {s<<4}, v{vKR}")
        A(f"v_mov_b32 v{vMX}, 0xff800000"); A(f"v_mov_b32 v{vMX+1}, 0xff800000")
    if rstage < 0 or not k0e:
        late_setup()
        if rstage < 0: late_touch()

    mvseq = {}
    def k_move(blk):
        it = [lambda: A.wait_vm(kseq[blk, 7])]
        for t in range(2):
            for s in range(4):
                def f(t=t, s=s):
                    mvseq[blk] = A(f"ds_read_b128 {ar(blk*32+t*16+s*4)}, v{vKR+s} offset:{(blk%NS)*8192+t*4096}")
                it.append(f)
        return it
    def qk(blk):
        it = [lambda: A.wait_lg(mvseq[blk])]
        for s in range(4):
            for t in range(2):
                for h in range(2):
                    d = vr(vS + blk*16 + h*8 + t*4)
                    it.append(f"{MF} {d}, {ar(blk*32+t*16+s*4)}, {vr(vQ+h*16+s*4)}, {d if s else 0}")
        return it
    def rmax(blk):
        it = []
        for k in range(4):
            for h in range(2):
                b = vS + blk*16 + h*8 + 2*k
                it.append(f"v_max3_f32 v{vMX+h}, v{vMX+h}, v{b}, v{b+1}")
        return it
    def site(name, which, blk, loads, blk2=None):
        if blk or name != "QB": A.wait_lg_all()
        A(f"s_mov_b32 s{sNX}, {blk*8192}")
        A(f"s_add_u32 s{sNS}, s{sLK}, {(blk%NS)*8192}")
        if blk2 is not None: A(f"s_add_u32 s{sNS2}, s{sLK}, {(blk2%NS)*8192}")
        A(f"s_cmp_eq_u32 s{sSPL}, {which}")
        A(f"s_cbranch_scc1 L_{name}")
        for f in loads: f()
        A.vm_done = min(A.vm_done, A.vm - 1 - len(loads))
        A.label(f"L_{name}_ret{which}")
    def do_pretouch(pt=pt):
        A(f"s_lshl_b32 s{sT0}, s{sPID}, 14"); A(f"s_lshl_b32 s{sT1}, s3, 12"); A(f"s_add_u32 s{sT0}, s{sT0}, s{sT1}"); A(f"s_add_u32 s{sT0}, s{sT0}, {XO_OFF}")
        A(f"v_lshl_add_u32 v{vT}, v0, 7, s{sT0}")
        A(f"s_mul_i32 s{sT0}, s3, 24"); A(f"s_sub_u32 s{sT0}, s{sT0}, 24"); A(f"v_add_u32 v{vT+1}, s{sT0}, v0")
        A(f"v_mul_u32_u24 v{vT+2}, 10923, v{vT+1}"); A(f"v_lshrrev_b32 v{vT+2}, 16, v{vT+2}")
        A(f"v_mul_u32_u24 v{vT+2}, {12288-768}, v{vT+2}"); A(f"v_lshl_add_u32 v{vT+2}, v{vT+1}, 7, v{vT+2}")
        A(f"s_lshl_b32 s{sT0}, s{sB}, 1"); A(f"s_add_u32 s{sT0}, s{sT0}, s{sSPL}"); A(f"s_mul_i32 s{sT0}, s{sT0}, 196608")
        A(f"s_mul_i32 s{sT1}, s{sKVH}, 768"); A(f"s_add_u32 s{sT0}, s{sT0}, s{sT1}"); A(f"s_add_u32 s{sT0}, s{sT0}, {PY_OFF}")
        A(f"v_add_u32 v{vT+2}, s{sT0}, v{vT+2}")
        A(f"v_cmp_gt_u32 vcc, 24, v0"); A(f"v_mov_b32 v{vT+3}, 0x7ffffff0"); A(f"v_cndmask_b32 v{vT}, v{vT+2}, v{vT}, vcc")
        A(f"v_cmp_gt_u32 vcc, {48 if 'p' in pt else 24}, v0"); A(f"v_cndmask_b32 v{vT}, v{vT+3}, v{vT}, vcc")
        if 'x' not in pt:
            A(f"v_cmp_lt_u32 vcc, 23, v0"); A(f"v_cndmask_b32 v{vT}, v{vT+3}, v{vT}, vcc")
        if not ptx:
            A(f"buffer_load_dword a255, v{vT}, {srd(sWS)}, 0 offen {ptf}")
        else:
            A(f"v_mov_b32 v{vT+1}, {ptx*1536 if 'p' in ptxw else 0x40000000}"); A(f"v_mov_b32 v{vT+2}, {ptx << 16 if 'x' in ptxw else 0x40000000}")
            A(f"v_cmp_gt_u32 vcc, 24, v0"); A(f"v_cndmask_b32 v{vT+1}, v{vT+1}, v{vT+2}, vcc")
            A(f"v_add_u32 v{vT+1}, v{vT+1}, v{vT}")
            A(f"s_and_b32 s{sT0}, s2, {ptx}"); A(f"s_cmp_eq_u32 s{sT0}, 0"); A("s_cbranch_scc1 L_ptdo")
            if 'x' in ptxw and 'p' in ptxw:
                A("s_branch L_ptend")
            else:
                if 'x' in ptxw: A(f"v_cndmask_b32 v{vT}, v{vT}, v{vT+3}, vcc")
                else: A(f"v_cndmask_b32 v{vT}, v{vT+3}, v{vT}, vcc")
                A(f"v_mov_b32 v{vT+1}, v{vT+3}")
            A.label("L_ptdo")
            A.raw(f"    buffer_load_dword a255, v{vT}, {srd(sWS)}, 0 offen {ptf}")
            A.raw(f"    buffer_load_dword a255, v{vT+1}, {srd(sWS)}, 0 offen {ptf}")
            A.label("L_ptend")
    def post_k(blk):
        stamp_at(A, f"k{blk}")
        if blk == rstage: late_touch()
        if blk == pretouch: do_pretouch()

    nmv = [0]; nqk = [0]; nmx = [0]
    def kcomp(upto_move, do_qk, maxqk=3):
        it = []
        while nmv[0] <= upto_move: it += k_move(nmv[0]); nmv[0] += 1
        n = 0
        while do_qk and nqk[0] < nmv[0] and n < maxqk:
            it += qk(nqk[0]); nqk[0] += 1; n += 1
            while nmx[0] < nqk[0] - 1: it += rmax(nmx[0]); nmx[0] += 1
        return it
    skip = set()
    for blk in range(0 if k0site else 1, 8):
        if blk in skip:
            post_k(blk); continue
        last = blk + 1 if (blk in siteQ and q2) else blk
        if last >= NS:
            if nmv[0] <= last - NS: run(kcomp(last - NS, False))
            A.wait_lg(mvseq[last - NS])
        if blk in siteQ:
            if blk == 0 and k0e:
                def ph(i):
                    def f():
                        kseq[0, i] = A.vm; A.vm += 1
                    return f
                site("QB", 0, 0, [ph(i) for i in range(8)] + k_loads(1), 1); skip.add(1)
                if rstage >= 0: late_setup()
            elif q2:
                site("QB", siteQ.index(blk), blk, k_loads(blk) + k_loads(blk + 1), blk + 1); skip.add(blk + 1)
            else:
                site("QB", siteQ.index(blk), blk, k_loads(blk))
            if blk == siteQ[1]:
                A(f"s_add_u32 s{sE1}, s{sE1}, 1")
                stamp_at(A, "qb1")
        else:
            comp = kcomp(blk - 2, blk > siteQ[1])
            if blk == 7: comp += tail_addr()
            mix(A, comp, k_loads(blk))
        post_k(blk)
    assert 7 not in skip
    assert 7 not in siteQ
    vseq = {}
    def v_load(B, blk, i, D, dyn=False):
        def f():
            throttle(B, D, None if dyn else 8 + blk)
            if i % 4 == 0:
                if dyn: B(f"s_add_u32 s{sSO}, s{sNX}, {(i//4)*4096}")
                else: B(f"s_mov_b32 s{sSO}, {blk*8192 + (i//4)*4096}")
                if dyn: B(f"s_add_u32 m0, s{sNS}, {(i//4)*4096}")
                else: B(f"s_add_u32 m0, s{sLK}, {(blk%NS)*8192 + (i//4)*4096}")
            q = B(f"buffer_load_dwordx4 v{vVA+(i&1)}, {srd(sV)}, s{sSO} offen offset:{(i&3)*1024} {vf} lds")
            if not dyn: vseq[blk, i] = q
        return f
    def v_loads(blk): return [v_load(A, blk, i, DV[blk]) for i in range(8)]
    run(["v_lshrrev_b32 v176, 4, v0", "v_and_b32 v177, 15, v0", "v_lshlrev_b32 v178, 1, v176", "v_xor_b32 v177, v177, v178",
         "v_lshlrev_b32 v177, 4, v177", f"v_lshl_add_u32 v{vVA}, v176, 8, v177", f"v_xor_b32 v{vVA+1}, 0x80, v{vVA}",
         f"s_lshl_b32 s{sT0}, s3, 11", f"s_add_u32 s{sT0}, s{sT0}, {L_PX}", f"v_add_u32 v{vPW}, s{sT0}, v{vLIN}", f"v_add_u32 v{vPR}, {L_PX}, v{vLIN}"])
    A.wait_lg(mvseq[4])
    mix(A, kcomp(6, True, 8), v_loads(0))
    vl = v_loads(1)
    cut = 0
    comp = kcomp(7, True, 8)
    comp += ["v_and_b32 v176, 15, v0", f"s_lshl_b32 s{sT0}, s3, 2",
             "v_lshlrev_b32 v176, 4, v176", f"v_add_u32 v176, {L_MX}, v176",
             f"v_add_u32 v177, s{sT0}, v176"]
    comp += rmax(7)
    for h in range(2): comp.append(f"v_mov_b32 v{178+h}, v{vMX+h}")
    for h in range(2): comp.append(f"v_permlane32_swap_b32 v{178+h}, v{vMX+h}")
    for h in range(2): comp.append(f"v_max_f32 v{vMX+h}, v{vMX+h}, v{178+h}")
    for h in range(2): comp.append(f"v_mov_b32 v{178+h}, v{vMX+h}")
    for h in range(2): comp.append(f"v_permlane16_swap_b32 v{178+h}, v{vMX+h}")
    for h in range(2): comp.append(f"v_max_f32 v{vMX+h}, v{vMX+h}, v{178+h}")
    comp += [f"ds_write_b32 v177, v{vMX}", f"ds_write_b32 v177, v{vMX+1} offset:256",
             lambda: A.wait_lg_all(), "s_barrier",
             f"ds_read_b128 {vr(180)}, v176", f"ds_read_b128 {vr(184)}, v176 offset:256",
             lambda: A.wait_lg_all()]
    for h in range(2): comp.append(f"v_max3_f32 v{vMX+h}, v{180+4*h}, v{181+4*h}, v{182+4*h}")
    for h in range(2): comp.append(f"v_max_f32 v{vMX+h}, v{vMX+h}, v{183+4*h}")
    for h in range(2): comp.append(f"v_mul_f32 v{vMX+h}, s{sSC}, v{vMX+h}")
    cut2 = 6
    mix(A, comp, vl[cut:cut2])
    run(["v_lshrrev_b32 v178, 2, v0", "v_and_b32 v179, 7, v178", "v_lshlrev_b32 v179, 1, v179",
         "v_bfe_u32 v180, v0, 1, 1", f"s_lshl_b32 s{sT0}, s3, 2", f"v_or_b32 v180, s{sT0}, v180",
         "v_xor_b32 v179, v179, v180", "v_lshlrev_b32 v179, 4, v179", "v_lshl_add_u32 v179, v178, 8, v179",
         "v_and_b32 v180, 1, v0", f"v_lshl_add_u32 v{vVR}, v180, 3, v179",
         f"v_xor_b32 v{vVR+1}, 32, v{vVR}", f"v_add_u32 v{vVR+2}, {2*L_KW}, v{vVR}", f"v_add_u32 v{vVR+3}, {2*L_KW}, v{vVR+1}"])
    stamp_at(A, "mxdone")
    def softmax(blk):
        it = []
        for h in range(2):
            b = vS + blk*16 + h*8
            for k in range(8): it.append(f"v_fma_f32 v{b+k}, v{b+k}, s{sSC}, -v{vMX+h}")
            for k in range(8): it.append(f"v_exp_f32 v{b+k}, v{b+k}")
        for h in range(2):
            b = vS + blk*16 + h*8
            for k in range(4): it.append(f"v_cvt_pk_bf16_f32 v{vS+blk*8+h*4+k}, v{b+2*k}, v{b+2*k+1}")
        return it
    def lsum(blk):
        return [f"{MF} {vr(vT+8+4*h)}, {vr(vT)}, {vr(vS+blk*8+h*4)}, {vr(vT+8+4*h) if blk else 0}" for h in range(2)]
    comp = [f"v_mov_b32 v{vT+k}, 0x3f803f80" for k in range(4)]
    for blk in range(8):
        comp += softmax(blk)
        if blk: comp += lsum(blk-1)
    comp += lsum(7)
    comp += ["v_and_b32 v1, 15, v0", f"s_lshl_b32 s{sT0}, s3, 2", f"v_lshl_add_u32 v1, v1, 4, s{sT0}", f"v_add_u32 v1, {L_LX}, v1",
             f"ds_write_b32 v1, v{vT+8}", f"ds_write_b32 v1, v{vT+12} offset:256"]
    def pwrite(j):
        return [f"ds_write_b128 v{vPW}, {vr(vS+j*8+h*4)} offset:{(j%3)*8192+h*1024}" for h in range(2)]
    comp += pwrite(0) + pwrite(1)
    mix(A, comp, vl[cut2:] + v_loads(2))
    stamp_at(A, "smdone")

    def sync(j):
        return [lambda: A.wait_vm(vseq[j, 7]), lambda: A.wait_lg_all(), "s_barrier"]
    rd = {}
    def preads(j):
        it = []
        for src in range(4):
            for h in range(2):
                def f(src=src, h=h): rd["p", src, h] = A(f"ds_read_b128 {vr(vPM+src*8+h*4)}, v{vPR} offset:{(j%3)*8192+src*2048+h*1024}")
                it.append(f)
        return it
    def rnd(j, withp=True):
        it = []
        pr = preads(j) if withp else []
        for src in range(4):
            it += pr[2*src:2*src+2]
            for t2 in range(2):
                for t in range(2):
                    def f(src=src, t2=t2, t=t):
                        rd["v", src, t2] = A(f"ds_read_b64_tr_b16 {vr(vVT+src*8+t2*4+t*2, 2)}, v{vVR+t2+2*(src>>1)} offset:{(src&1)*L_KW+(j%NS)*8192+t*4096}")
                    it.append(f)
        if j + 2 < 8: it += pwrite(j + 2)
        for src in range(4):
            for t2 in range(2):
                it.append(lambda src=src, t2=t2: A.wait_lg(rd["v", src, t2]))
                for h in range(2):
                    d = vr(vACC + h*8 + t2*4)
                    it.append(f"{MF} {d}, {vr(vVT+src*8+t2*4)}, {vr(vPM+src*8+h*4)}, {d if (j or src) else 0}")
        return it
    def stats_read():
        return ["v_and_b32 v1, 15, v0", "v_lshlrev_b32 v1, 4, v1", f"v_add_u32 v1, {L_LX}, v1",
                f"ds_read_b128 {vr(176)}, v1", f"ds_read_b128 {vr(180)}, v1 offset:256"]
    def stats_pub():
        def st():
            A("s_cmp_lg_u32 s3, 0"); A("s_cbranch_scc1 L_nostat")
            A.raw(f"    buffer_store_dwordx4 {vr(184)}, v1, {srd(sWS)}, s{sT0} offen {pubf}")
            A.raw("    s_nop 1")
            A.label("L_nostat")
        return ["v_add_f32 v176, v176, v177", "v_add_f32 v180, v180, v181", "v_add_f32 v178, v178, v179", "v_add_f32 v182, v182, v183",
                f"v_add_f32 v{vWQ}, v176, v178", f"v_add_f32 v{vX}, v180, v182",
                "v_and_b32 v1, 16, v0", "v_cmp_eq_u32 vcc, 0, v1",
                f"s_lshl_b32 s{sT0}, s{sXCC}, 28", f"s_xor_b32 s{sT0}, s{sT0}, s{sE1}",
                f"v_mov_b32 v186, s{sE1}", f"v_mov_b32 v187, s{sT0}",
                f"v_cndmask_b32 v184, v{vMX+1}, v{vMX}, vcc", f"v_cndmask_b32 v185, v{vX}, v{vWQ}, vcc",
                "v_and_b32 v1, 31, v0", "v_lshlrev_b32 v1, 4, v1",
                f"s_lshl_b32 s{sT0}, s{sPID}, 9", f"s_add_u32 s{sT0}, s{sT0}, {XS_OFF}", st]
    ev = []
    for r in range(7): ev += [("S", r), ("R", r)]
    pos = [0]
    def take(until):
        it = []
        while pos[0] <= ev.index(until):
            k, r = ev[pos[0]]; pos[0] += 1
            if k == "S": it += sync(r)
            else:
                if r == 0: it += stats_read()
                it += rnd(r)
                if r == 0: it += stats_pub()
        return it
    statseq = {}
    def ldstat(h):
        def f():
            if h == 0:
                A("v_and_b32 v1, 15, v0"); A("v_lshlrev_b32 v1, 4, v1")
                A(f"s_xor_b32 s{sSTA}, s{sPID}, 1"); A(f"s_lshl_b32 s{sSTA}, s{sSTA}, 9"); A(f"s_add_u32 s{sSTA}, s{sSTA}, {XS_OFF}")
            statseq[h] = A(f"buffer_load_dwordx4 {vr(72+4*h)}, v1, {srd(sWS)}, s{sSTA} offen offset:{h*256} {ldf}")
        return f
    for j in range(3, 8):
        if j >= NS: run(take(("S", j - NS + 1)))
        if j == (6 if earlyscl else 7): run([ldstat(0), ldstat(1)])
        if j == 7 and earlyscl:
            run([lambda: A.wait_vm(statseq[1])] + stat_scales(A, local))
        if j in siteO and prer is not None and prer[siteO.index(j)] is not None:
            which = siteO.index(j) ^ oswap
            items = take(("R", prer[siteO.index(j)]))
            A(f"s_mov_b32 s{sNX}, {j*8192}"); A(f"s_add_u32 s{sNS}, s{sLK}, {(j%NS)*8192}")
            A(f"s_cmp_lg_u32 s{sSPL}, {which}"); A(f"s_cbranch_scc1 L_pre{j}")
            sv = (A.lg, A.lg_done, A.vm_done)
            run(items); A.wait_lg_all(); A("s_branch L_OB")
            A.lg, A.lg_done, A.vm_done = sv
            A.label(f"L_pre{j}")
            mix(A, items, v_loads(j)); A.wait_lg_all()
            A.vm_done = min(A.vm_done, A.vm - 9)
            A.label(f"L_OB_ret{which}")
        elif j in siteO:
            site("OB", siteO.index(j) ^ oswap, j, v_loads(j))
        elif j == 7:
            vl7 = v_loads(7)
            mix(A, take(("R", 4)), vl7[:front7] )
            mix(A, take(("R", 5)), vl7[front7:])
        else:
            mix(A, take(("R", j - 2)), v_loads(j))
        if j == ptlj and ptlate: do_pretouch(ptlate)
        stamp_at(A, f"v{j}")
    run(take(("R", 5)))
    stamp_at(A, "r5")
    if not earlyscl: run([lambda: A.wait_vm(statseq[1])] + stat_scales(A, local))
    run([f"v_mov_b32 v{103+4*k}, s{sE1}" for k in range(3)])
    stamp_at(A, "scl")
    run(take(("S", 6))); stamp_at(A, "s6")
    run(take(("R", 6))); run(preads(7))
    stamp_at(A, "v7")
    sy = sync(7)
    run(sy[:1]); stamp_at(A, "v7land"); run(sy[1:]); stamp_at(A, "v7b")
    if "notail" in exp: A("s_branch L_fin")
    run(rnd(7, withp=False))
    tail(A, pubf, ldf, stamp_at, sleepx, sleepg, outf, own, pipe, brx)
    A.label("L_fin")
    if stamps:
        A(f"s_lshl_b32 s{sT0}, s2, 2"); A(f"s_add_u32 s{sT0}, s{sT0}, s3"); A(f"s_lshl_b32 s{sT0}, s{sT0}, 6")
        A(f"s_add_u32 s{sT0}, s{sT0}, {STAMP_OFF}")
        A(f"s_add_u32 s18, s18, s{sT0}"); A("s_addc_u32 s19, s19, 0")
        A("v_mov_b32 v1, 0")
        for j in range(4):
            for k in range(4): A(f"v_mov_b32 v{4+k}, s{sSTAMP+4*j+k}")
            A(f"global_store_dwordx4 v1, v[4:7], s[18:19] offset:{16*j} sc1")
    A.label("L_end")
    A("s_endpgm")

    B = Asm()
    B.label("L_QB")
    stamp_at(B, "qbs"); stamp_at(B, "cnt_clk0")
    qs = {}
    def q_load(u, i):
        def f():
            B.wait_vm_n(DQ - 1)
            B(f"s_mov_b32 s{sSO}, {(u*32+i)*8192}")
            qs[u, i] = B(f"buffer_load_dwordx4 {vr(WQR[u%3]+4*i)}, v{vWQ}, {srd(sWQ)}, s{sSO} offen {w2f}")
        return f
    xs = {}
    def q_cons(u):
        it = [lambda: B.wait_vm(qs[u, 7]), lambda: B.wait_lg(xs[u])]
        if "nocomp" in exp: return it
        for q in range(4):
            tb = vT + (q & 1) * 8
            it += perms(WQR[u % 3], q, tb)
            for jo in range(2):
                d = vr(vQA + (2*q+jo)*4)
                it.append(f"{MF} {d}, {vr(tb+4*jo)}, {vr(vXO_+4*u)}, {d if u else 0}")
        return it
    for u in (0, 1):
        for i in range(8): q_load(u, i)()
    B.wait_vm(qs[0, 0]); B("s_barrier")
    for u in range(9): xs[u] = B(f"ds_read_b128 {vr(vXO_+4*u)}, v{vX} offset:{u*64}")
    for u in range(0, 7):
        mix(B, q_cons(u), [q_load(u+2, i) for i in range(8)])
    kn = [k_load(B, 1, i, 32 if frontn else 24, dyn=1) for i in range(8)]
    if frontn:
        for f in kn: f()
        kn = []
    mix(B, q_cons(7), kn)
    mix(B, q_cons(8), [])
    stamp_at(B, "qbl")
    red = ["s_barrier",
           f"s_lshl_b32 s{sT0}, s3, 13", f"s_add_u32 s{sT0}, s{sT0}, {L_QR}", f"v_add_u32 v1, s{sT0}, v{vLIN}"]
    for j in range(8): red.append(f"ds_write_b128 v1, {vr(vQA+4*j)} offset:{j*1024}")
    red += [f"v_add_u32 v1, {L_QR}, v{vLIN}", lambda: B.wait_lg_all(), "s_barrier"]
    rs = {}
    for h in range(2):
        for j in range(8):
            for k in range(2):
                def f(h=h, j=j, k=k): rs[h, j, k] = B(f"ds_read_b128 {vr(vS+h*64+j*8+k*4)}, v1 offset:{(h+2*k)*8192+j*1024}")
                red.append(f)
    for h in range(2):
        for p in range(4):
            red.append(lambda h=h, p=p: B.wait_lg(rs[h, 2*p+1, 1]))
            for jo in range(2):
                b = vS + h*64 + (2*p+jo)*8
                for r in range(4): red.append(f"v_add_f32 v{b+r}, v{b+r}, v{b+4+r}")
            for r in range(4):
                red.append(f"v_cvt_pk_bf16_f32 v{vQ+h*16+r*4+p}, v{vS+h*64+(2*p)*8+r}, v{vS+h*64+(2*p+1)*8+r}")
    mix(B, red, [k_load(B, 2, i, DQ2, dyn=2) for i in range(8)] if q2 else [])
    stamp_at(B, "qbe")
    B(f"s_cmp_eq_u32 s{sSPL}, 0"); B("s_cbranch_scc1 L_QB_ret0"); B("s_branch L_QB_ret1")

    C = Asm()
    C.label("L_OB")
    stamp_at(C, "obs")
    C("s_cmp_eq_u32 s3, 3"); C("s_cbranch_scc1 L_OB3")
    os_ = {}
    OSL = [0, 1, 2, 0, 1, 2, 0, 1]
    def o_load(s, i):
        def f():
            C.wait_vm_n(DQ - 1)
            h, r = s >> 2, s & 3
            off = (h*128 + (0 if own else r*32) + (i>>2)*16 + (i&3)) * 1152
            so = off // 4096 * 4096
            if own: C(f"s_add_u32 s{sSO}, s{sRO+r}, {so}")
            else: C(f"s_mov_b32 s{sSO}, {so}")
            os_[s, i] = C(f"buffer_load_dwordx3 {vr(WOS[OSL[s]]+4*i, 3)}, v{vWO}, {srd(sWO)}, s{sSO} offen offset:{off-so} {w2f}")
        return f
    def o_cons(s):
        it = [lambda: C.wait_vm(os_[s, 7])]
        for q in range(3):
            tb = vT + (q & 1) * 8
            it += perms(WOS[OSL[s]], q, tb)
            for k in range(8): it.append(f"v_accvgpr_write_b32 a{s*24+q*8+k}, v{tb+k}")
        return it
    for s in (0, 1):
        for i in range(8): o_load(s, i)()
    for s in range(6):
        mix(C, o_cons(s), [o_load(s+2, i) for i in range(8)])
    if frontn:
        for i in range(8): v_load(C, 3, i, 32, dyn=1)()
        mix(C, o_cons(6), [])
    else:
        mix(C, o_cons(6), [v_load(C, 3, i, 24, dyn=1) for i in range(8)])
    mix(C, o_cons(7), [])
    stamp_at(C, "obe")
    C(f"s_cmp_eq_u32 s{sSPL}, 0"); C("s_cbranch_scc1 L_OB_ret0"); C("s_branch L_OB_ret1")
    C.label("L_OB3")
    for i in range(8): v_load(C, 3, i, 63, dyn=1)()
    C(f"s_cmp_eq_u32 s{sSPL}, 0"); C("s_cbranch_scc1 L_OB_ret0"); C("s_branch L_OB_ret1")

    D = Asm()
    D.label("L_statpoll")
    D(f"s_mov_b32 s{sCNT}, {POLL_MAX}")
    D.label("L_statloop")
    for h in range(2): D(f"buffer_load_dwordx4 {vr(72+4*h)}, v1, {srd(sWS)}, s{sSTA} offen offset:{h*256} {ldf}")
    D("s_waitcnt vmcnt(0)")
    for c in stat_check(): D(c)
    D("s_cbranch_scc1 L_statok")
    D(f"s_sub_u32 s{sCNT}, s{sCNT}, 1"); D(f"s_cmp_lg_u32 s{sCNT}, 0"); D("s_cbranch_scc1 L_statloop")
    giveup(D, 0)

    far = "\n".join(FAR) + "\n"; FAR.clear()
    out = A.text() + far + B.text() + C.text() + D.text() + "L_codeend:\n" + "    s_nop 0\n" * 64
    out += f""".section .rodata,"a"
.p2align 6
.amdhsa_kernel {KNAME}
  .amdhsa_next_free_vgpr 512
  .amdhsa_next_free_sgpr 102
  .amdhsa_accum_offset 256
  .amdhsa_group_segment_fixed_size 0
  .amdhsa_kernarg_size 64
  .amdhsa_user_sgpr_count 2
  .amdhsa_user_sgpr_kernarg_segment_ptr 1
  .amdhsa_system_sgpr_workgroup_id_x 1
.end_amdhsa_kernel
"""
    return out

FAR = []
FAILDBG = False
def giveup(B, code):
    if FAILDBG:
        B("s_load_dwordx2 s[16:17], s[0:1], 48"); B("s_waitcnt lgkmcnt(0)")
        B(f"v_mov_b32 v1, {code*16}"); B("v_mov_b32 v2, 1")
        B("v_cmp_eq_u32 vcc, 0, v0"); B("s_and_saveexec_b64 s[56:57], vcc")
        B("global_atomic_add v1, v2, s[16:17]")
        B("v_mov_b32 v2, s2"); B("v_mov_b32 v3, s3"); B(f"v_mov_b32 v4, s{sE1}")
        B("global_store_dwordx3 v1, v[2:4], s[16:17] offset:4")
        B("s_waitcnt vmcnt(0)")
    B("s_endpgm")
def tail_addr():
    it = []
    a = it.append
    a("v_and_b32 v176, 15, v0"); a("v_lshrrev_b32 v177, 4, v0")
    a("v_mul_u32_u24 v178, 12288, v176"); a(f"v_lshl_add_u32 v{vPUB}, v177, 4, v178")
    a("v_mul_u32_u24 v178, 768, v177"); a(f"v_lshl_add_u32 v{vGAT}, v176, 4, v178")
    a(f"s_lshl_b32 s{sT0}, s{sB}, 1"); a(f"s_add_u32 s{sT0}, s{sT0}, s{sSPL}")
    a(f"s_mul_i32 s{sT0}, s{sT0}, 196608"); a(f"s_lshl_b32 s{sT1}, s3, 8"); a(f"s_add_u32 s{sT0}, s{sT0}, s{sT1}"); a(f"s_add_u32 s{sT0}, s{sT0}, {PY_OFF}")
    a(f"s_mul_i32 s{sT1}, s{sKVH}, 768"); a(f"s_add_u32 s{sPB}, s{sT0}, s{sT1}")
    a(f"s_mul_i32 s{sT1}, s{sKVH}, 12288"); a(f"s_add_u32 s{sGA}, s{sT0}, s{sT1}"); a(f"s_add_u32 s{sGA+1}, s{sGA}, 6144")
    a("v_cmp_eq_u32 vcc, 3, v177"); a("v_bfe_u32 v178, v0, 2, 2"); a("v_cndmask_b32 v177, v177, 1, vcc")
    a("v_mad_u32_u24 v178, v178, 3, v177")
    a("v_and_b32 v179, 3, v178"); a("v_mul_u32_u24 v179, 12, v179"); a("v_and_b32 v178, 12, v178"); a("v_add_u32 v179, v179, v178")
    a("v_and_b32 v178, 3, v0"); a(f"v_mad_u32_u24 v{vOUT}, v178, 48, v179")
    a(f"s_lshr_b32 s{sT0}, s{sPID}, 1"); a(f"s_mul_i32 s{sOB}, s{sT0}, 1152"); a(f"s_mul_i32 s{sT0}, s{sSPL}, 576"); a(f"s_add_u32 s{sOB}, s{sOB}, s{sT0}")
    a(f"s_mul_i32 s{sT0}, s3, 192"); a(f"s_add_u32 s{sOB}, s{sOB}, s{sT0}")
    a(f"s_lshl_b32 s{sT0}, s3, 10"); a(f"s_add_u32 s{sT0}, s{sT0}, {L_BX}"); a(f"v_add_u32 v{vBXW}, s{sT0}, v{vLIN}")
    for sg in range(4):
        a(f"s_add_u32 s{sT0}, s3, {sg}"); a(f"s_and_b32 s{sT0}, s{sT0}, 3"); a(f"s_mul_i32 s{sRO+sg}, s{sT0}, {32*1152}")
        if sg: a(f"s_lshl_b32 s{sT0}, s{sT0}, 10"); a(f"s_add_u32 s{sT0}, s{sT0}, {L_BX}"); a(f"v_add_u32 v{vBXR+sg-1}, s{sT0}, v{vLIN}")
    a(f"s_lshl_b32 s{sXOo}, s{sPID}, 14"); a(f"s_lshl_b32 s{sT0}, s3, 12"); a(f"s_add_u32 s{sXOo}, s{sXOo}, s{sT0}")
    a(f"s_xor_b32 s{sXOp}, s{sXOo}, {1<<14}")
    a(f"s_add_u32 s{sXOo}, s{sXOo}, {XO_OFF}"); a(f"s_add_u32 s{sXOp}, s{sXOp}, {XO_OFF}")
    for n in (sXL, sXG):
        a(f"s_mov_b32 s{n}, s{sWS}"); a(f"s_mov_b32 s{n+1}, s{sWS+1}"); a(f"s_mov_b32 s{n+3}, 0x20000")
    return it

def stat_check():
    return [f"v_xor_b32 v80, s{sE1}, v74", f"v_xor_b32 v81, s{sE1}, v75", f"v_xor_b32 v82, s{sE1}, v78", f"v_xor_b32 v83, s{sE1}, v79",
            "v_or_b32 v84, v81, v83", "v_and_b32 v84, 0x0fffffff, v84",
            "v_or3_b32 v80, v80, v84, v82", "v_cmp_eq_u32 vcc, 0, v80", "s_cmp_eq_u64 vcc, -1"]

def stat_scales(A, local):
    it = stat_check()
    def br():
        A("s_cbranch_scc0 L_statpoll")
        A.label("L_statok")
    it.append(br)
    it += [f"v_readfirstlane_b32 s{sT0}, v81", f"s_lshr_b32 s{sT0}, s{sT0}, 28", f"s_cmp_eq_u32 s{sT0}, s{sXCC}",
           f"s_cselect_b32 s{sLOC}, {1 if local else 0}, 0",
           f"s_cselect_b32 s{sXL+2}, {WS_USED if local else 0}, 0", f"s_cselect_b32 s{sXG+2}, {0 if local else WS_USED}, {WS_USED}"]
    for h in range(2):
        it += [f"v_max_f32 v{80+h}, v{vMX+h}, v{72+4*h}"]
    for h in range(2):
        it += [f"v_sub_f32 v{82+h}, v{vMX+h}, v{80+h}", f"v_sub_f32 v{84+h}, v{72+4*h}, v{80+h}"]
    for h in range(2):
        it += [f"v_exp_f32 v{82+h}, v{82+h}", f"v_exp_f32 v{84+h}, v{84+h}"]
    for h in range(2):
        it += [f"v_mul_f32 v{84+h}, v{84+h}, v{73+4*h}"]
    for h in range(2):
        it += [f"v_fma_f32 v{84+h}, v{82+h}, v{vWQ+h}, v{84+h}"]
    for h in range(2):
        it += [f"v_rcp_f32 v{84+h}, v{84+h}"]
    for h in range(2):
        it += [f"v_mul_f32 v{vWQ+h}, v{82+h}, v{84+h}"]
    return it

def poll(A, name, loads, tags, slp):
    A(f"s_mov_b32 s{sCNT}, {POLL_MAX}")
    A.label(name)
    for l in loads: A(l)
    A("s_waitcnt vmcnt(0)")
    A.vm_done = A.vm - 1
    for k, t in enumerate(tags): A(f"v_xor_b32 v{70+k}, s{sE1}, v{t}")
    A("v_or3_b32 v70, v70, v71, v72")
    if len(tags) == 4: A("v_or_b32 v70, v70, v73")
    A("v_cmp_eq_u32 vcc, 0, v70"); A("s_cmp_eq_u64 vcc, -1")
    A(f"s_cbranch_scc1 {name}_ok")
    if slp: A(f"s_sleep {slp}")
    A(f"s_sub_u32 s{sCNT}, s{sCNT}, 1"); A(f"s_cmp_lg_u32 s{sCNT}, 0"); A(f"s_cbranch_scc1 {name}")
    giveup(A, 1 if name == "L_xp" else 2)
    A.label(f"{name}_ok")

def tail(A, pubf, ldf, stamp_at, sleepx, sleepg, outf, own, pipe, brx):
    XG = 100
    def xreg(k): return XG + (k // 3) * 4 + k % 3
    sent = 0
    for x in range(4):
        b = vACC + x*4
        for r in range(4): A(f"v_mul_f32 v{b+r}, v{b+r}, v{vWQ+(x>>1)}")
        for p in range(2): A(f"v_cvt_pk_bf16_f32 v{xreg(2*x+p)}, v{b+2*p}, v{b+2*p+1}")
        while not brx and sent < 3 and min(3*sent + 2, 7) <= 2*x + 1:
            A(f"buffer_store_dwordx4 {vr(XG+sent*4)}, v{vLIN}, {srd(sXL)}, s{sXOo} offen offset:{sent*1024}")
            A(f"buffer_store_dwordx4 {vr(XG+sent*4)}, v{vLIN}, {srd(sXG)}, s{sXOo} offen offset:{sent*1024} {pubf}")
            sent += 1
    if brx:
        A.raw(f"    s_cmp_eq_u32 s{sLOC}, 0"); A.raw("    s_cbranch_scc1 L_xfar")
        for k in range(3): A(f"buffer_store_dwordx4 {vr(XG+k*4)}, v{vLIN}, {srd(sWS)}, s{sXOo} offen offset:{k*1024}")
        A.raw("L_xsent:")
        FAR.append("L_xfar:")
        for k in range(3): FAR.append(f"    buffer_store_dwordx4 {vr(XG+k*4)}, v{vLIN}, {srd(sWS)}, s{sXOo} offen offset:{k*1024} {pubf}")
        FAR.append("    s_branch L_xsent")
    stamp_at(A, "xst")
    poll(A, "L_xp", [f"buffer_load_dwordx4 {vr(112+4*x)}, v{vLIN}, {srd(sWS)}, s{sXOp} offen offset:{x*1024} {ldf}" for x in range(3)], [115, 119, 123], sleepx)
    stamp_at(A, "cntx"); stamp_at(A, "xok")
    def mm(j, s, breg, first):
        d = vr(168 + 4*j)
        return f"{MF} {d}, {ar(s*24+j*4)}, {vr(breg)}, {0 if first else d}"
    def fin(h):
        it = []
        for p in range(4):
            k = h*4 + p; src = 112 + (k // 3) * 4 + k % 3
            it += [f"v_lshlrev_b32 v{16+2*k}, 16, v{src}", f"v_and_b32 v{17+2*k}, 0xffff0000, v{src}"]
        for e in range(8): it.append(f"v_add_f32 v{16+h*8+e}, v{16+h*8+e}, v{vACC+h*8+e}")
        for p in range(4): it.append(f"v_cvt_pk_bf16_f32 v{128+h*4+p}, v{16+h*8+2*p}, v{17+h*8+2*p}")
        it.append(f"ds_write_b128 v{vBXW}, {vr(128+h*4)} offset:{h*4096}")
        return it
    for c in fin(0): A(c)
    f1 = fin(1)
    if own:
        m0 = [mm(j, 0, 128, True) for j in range(6)]
        for k, c in enumerate(f1):
            if k % 3 == 2 and m0: A(m0.pop(0))
            A(c)
        for c in m0: A(c)
    else:
        for c in f1: A(c)
    A.wait_lg_all(); A("s_barrier")
    A("s_cmp_eq_u32 s3, 3"); A.raw("    s_cbranch_scc1 L_fin")
    stamp_at(A, "bxb")
    PG = 192
    def preg(D): return PG + (D // 3) * 4 + D % 3
    def pack(jp):
        for r in range(4): A(f"v_cvt_pk_bf16_f32 v{preg(jp*4+r)}, v{168+8*jp+r}, v{172+8*jp+r}")
    def pub(gm): A(f"buffer_store_dwordx4 {vr(PG+gm*4)}, v{vPUB}, {srd(sWS)}, s{sPB} offen offset:{gm*64} {pubf}")
    if own:
        steps = [1, 5, 2, 6, 3, 7]
        bs = {s: A(f"ds_read_b128 {vr(136+4*s)}, v{vBXR+(s&3)-1} offset:{(s>>2)*4096}") for s in steps}
        for j in range(6): A(mm(j, 4, 132, False))
    else:
        steps = list(range(8))
        bs = {s: A(f"ds_read_b128 {vr(136+4*s)}, v{vPR} offset:{s*1024}") for s in steps}
    for k in range(4): A(f"v_mov_b32 v{PG+3+4*k}, s{sE1}")
    for jp in range(3):
        for n, s in enumerate(steps):
            A.wait_lg(bs[s])
            for j in (2*jp, 2*jp+1): A(mm(j, s, 136+4*s, (not own) and s == 0))
            if jp and n == 4:
                pack(jp - 1); pub(jp - 1)
    pack(2); pub(2); pub(3)
    stamp_at(A, "pub")
    def gl(GB): return [f"buffer_load_dwordx4 {vr(GB+4*k)}, v{vGAT}, {srd(sWS)}, s{sGA+(k>>1)} offen offset:{(k&1)*3072} {ldf}" for k in range(4)]
    def unpack(GB):
        for k in range(4):
            for d in range(3):
                A(f"v_lshlrev_b32 v{16+8*k+d}, 16, v{GB+4*k+d}"); A(f"v_and_b32 v{20+8*k+d}, 0xffff0000, v{GB+4*k+d}")
    def chk(GB, target):
        for k in range(4): A(f"v_xor_b32 v{70+k}, s{sE1}, v{GB+3+4*k}")
        A("v_or3_b32 v70, v70, v71, v72"); A("v_or_b32 v70, v70, v73")
        A("v_cmp_eq_u32 vcc, 0, v70"); A("s_cmp_eq_u64 vcc, -1")
        A.raw(f"    s_cbranch_scc1 {target}")
    if pipe:
        GA, GB = 208, 224
        A(f"s_mov_b32 s{sCNT}, {POLL_MAX}")
        for l in gl(GA): A(l)
        if sleepg: A(f"s_sleep {sleepg}")
        A.label("L_gp")
        for l in gl(GB): A(l)
        A("s_waitcnt vmcnt(4)"); chk(GA, "L_gp_okA")
        for l in gl(GA): A(l)
        A("s_waitcnt vmcnt(4)"); chk(GB, "L_gp_okB")
        A(f"s_sub_u32 s{sCNT}, s{sCNT}, 1"); A(f"s_cmp_lg_u32 s{sCNT}, 0"); A("s_cbranch_scc1 L_gp")
        A("s_endpgm")
        A.label("L_gp_okB"); unpack(GB); A.raw("    s_branch L_gsum")
        A.label("L_gp_okA"); unpack(GA)
        A.raw("L_gsum:")
        stamp_at(A, "cntg"); stamp_at(A, "gok")
    else:
        GB = 208
        poll(A, "L_gp", gl(GB), [GB+3+4*k for k in range(4)], sleepg)
        stamp_at(A, "cntg"); stamp_at(A, "gok")
        unpack(GB)
    for e in (0, 1, 2, 4, 5, 6):
        A(f"v_add_f32 v{16+e}, v{16+e}, v{24+e}"); A(f"v_add_f32 v{32+e}, v{32+e}, v{40+e}")
    for e in (1, 5, 0, 4, 2, 6): A(f"v_add_f32 v{16+e}, v{16+e}, v{32+e}")
    A("v_mov_b32 v19, v17"); A("v_mov_b32 v23, v21")
    for (a_, b_) in ((16, 18), (20, 22), (17, 19), (21, 23)): A(f"v_permlane32_swap_b32 v{a_}, v{b_}")
    for (a_, b_) in ((16, 18), (20, 22), (17, 19), (21, 23)): A(f"v_add_f32 v{a_}, v{a_}, v{b_}")
    A("v_permlane16_swap_b32 v16, v17"); A("v_permlane16_swap_b32 v20, v21")
    A("v_add_f32 v16, v16, v17"); A("v_add_f32 v20, v20, v21")
    A("v_cvt_pk_bf16_f32 v16, v16, v20")
    A(f"buffer_store_dword v16, v{vOUT}, {srd(sOUT)}, s{sOB} offen {outf}")
    A(f"s_or_b32 s{sT0}, s{sKVH}, s{sSPL}"); A(f"s_or_b32 s{sT0}, s{sT0}, s3"); A(f"s_cmp_lg_u32 s{sT0}, 0"); A("s_cbranch_scc1 L_noep")
    A(f"v_mov_b32 v1, s{sE1}"); A(f"s_lshl_b32 s{sT0}, s{sB}, 8"); A("v_mov_b32 v2, 12")
    A(f"buffer_store_dword v1, v2, {srd(sWS)}, s{sT0} offen")
    A.label("L_noep")
    stamp_at(A, "end")

if __name__ == "__main__":
    import json
    kw = json.loads(sys.argv[2]) if len(sys.argv) > 2 else {}
    open(sys.argv[1], "w").write(gen(**kw))
```

```python
import sys, math, struct
from asmlib import Asm

KNAME = "standalone__sliding_block_cached__sampling_kernel"
HDR = open('standalone__sliding_block_cached__sampling.s.ref').read().split('; Override')[0]

EP_OFF = 0
XS_OFF = 0x10000
BD_OFF = 0x8000
XO_OFF = 0x100000
PY_OFF = 0x800000
WS_USED = 0x1000000
STAMP_OFF = 512 << 20
NS = 4
L_KW = NS * 8192
L_QR = 4 * L_KW
L_PX = L_QR
L_BX = L_QR
L_MX = L_QR + 24576
L_LX = L_MX + 512
L_XI = L_QR
LDS_BYTES = L_QR + 32768
POLL_MAX = 200000

def f32(x): return struct.unpack('<I', struct.pack('<f', x))[0]
SCALE = f32(1.4426950408889634 / math.sqrt(128.0))

sK, sV, sWQ, sWO, sX, sWS, sOUT, sWP, sPUB = 20, 24, 28, 32, 36, 40, 44, 68, 72
sXL, sXG = 28, 36
sSELL, sSELH, sSC, sTAG, sTAB, sSO, sLK, sKVH, sSPL, sB = 48, 49, 50, 51, 52, 61, 62, 63, 64, 65
sE1, sMASK = 66, 67
sPID, sXOo, sXOp, sNX, sXCC, sLVL, sCNT, sT0, sT1, sSLOT = 76, 77, 78, 79, 80, 81, 82, 83, 84, 85
sSTAMP = 86
sNS, sSTA, sNS2 = 53, 54, 55
sBS = 72
sBO, sBT = 9, 10
vBD, vBA, vBV = 252, 253, 254
sPB, sGA, sOB = 4, 6, 8
def srd(n): return f"s[{n}:{n+3}]"
vKA, vKR, vLIN, vWQ, vX, vWO, vMX = 2, 6, 10, 11, 12, 13, 14
vQ = 16
vS = 48
vT = 176
vVT = 16
vPM = 192
vACC = 224
vVA, vVR, vPW, vPR = 2, 6, 4, 5
vXO_ = 48
vQA = 84
WQR = [192, 224, 116]
WOS = [112, 144, 16]
vPUB, vOUT, vGAT, vBXW, vBXR = 240, 241, 242, 243, 244
sRO = 56
sLOC = 60

def vr(b, n=4): return f"v[{b}:{b+n-1}]"
def ar(b, n=4): return f"a[{b}:{b+n-1}]"
MF = "v_mfma_f32_16x16x32_bf16"

def cost(it):
    if callable(it): return 1
    if it.startswith('v_mfma'): return 12
    if it.startswith('v_exp') or it.startswith('v_rcp'): return 8
    return 4

def mix(A, comp, loads):
    tot = sum(cost(c) for c in comp)
    n = len(loads); k = 0; acc = 0
    for c in comp:
        while k < n and acc >= tot * k / max(n, 1):
            loads[k](); k += 1
        if callable(c): c()
        else: A(c)
        acc += cost(c)
    while k < n:
        loads[k](); k += 1

def perms(R, q, tb):
    it = []
    for p in range(4): it.append(f"v_perm_b32 v{tb+p}, v{R+(2*p+1)*4+q}, v{R+(2*p)*4+q}, s{sSELL}")
    for p in range(4): it.append(f"v_perm_b32 v{tb+4+p}, v{R+(2*p+1)*4+q}, v{R+(2*p)*4+q}, s{sSELH}")
    return it

def gen(DK=(8,8,8,8,8,8,5,5), DV=(5,5,5,5,10,10,10,16), DQ=16, stamps=False, kf="nt", vf="nt", w1f="", w2f="", pubf="sc1", ldf="sc1",
        codepf=True, wsbase=0, pretouch=1, ptf="", local=True, promote=False, sleepx=0, sleepg=0, tlbwarm=True, noOB=False, noQB=False, exp="", outtouch=True, outf="", kfirst=True, pt="x", DLO=None, lomask=0x55, DMID=None, midmask=0, siteQ=(0, 4), siteO=(4, 7), front7=8, q2=True, DQ2=8, rstage=2, own=True, pipe=False, brx=True, k0early=False, pfirst=True, oswap=0, prer=(None, 5), frontn=False, earlyscl=False, ptlate="p", ptlj=6, frontV=(7,), frontK=(), xpre=None, xprej=6, tlb0=True, qbar=False, fb=(), fbT=(10, 22), fbat=5, ptx=0, ptxw="xp", faildbg=False, pollmax=2000000):
    global POLL_MAX, FAILDBG
    POLL_MAX = pollmax; FAILDBG = faildbg
    siteQ = tuple(siteQ); siteO = tuple(siteO)
    if isinstance(DK, int): DK = (DK,) * 8
    if isinstance(DV, int): DV = (DV,) * 8
    if isinstance(DLO, int): DLO = (DLO,) * 16
    if isinstance(DMID, int): DMID = (DMID,) * 16
    dr = []
    if "nobar" in exp: dr += ["s_barrier"]
    if "nomath" in exp: dr += ["v_mfma", "v_exp", "v_fma", "v_cvt", "v_perm", "v_max3", "v_accvgpr_write"]
    if "nods" in exp: dr += ["ds_"]
    Asm.drop = tuple(dr)
    A = Asm()
    def stamp_at(B, name):
        if not stamps or name not in stamps: return
        i = stamps.index(name) + 1
        if name.startswith("cnt") and not name.startswith("cnt_clk"):
            B(f"s_sub_u32 s{sSTAMP+2*i}, {POLL_MAX}, s{sCNT}"); B(f"s_mov_b32 s{sSTAMP+2*i+1}, 0")
            return
        B.wait_lg_all()
        B(f"{'s_memtime' if name.startswith('cnt_clk') else 's_memrealtime'} s[{sSTAMP+2*i}:{sSTAMP+2*i+1}]")
        B.wait_lg_all()
    def run(comp, B=A):
        for c in comp:
            if callable(c): c()
            else: B(c)

    A.raw(HDR.rstrip())
    A.raw(f"; @launch grid=(256,1,1) block=(256,1,1) lds={LDS_BYTES}")
    A.raw('.amdgcn_target "amdgcn-amd-amdhsa--gfx950"')
    A.raw(".text"); A.raw(f".globl {KNAME}"); A.raw(".p2align 8"); A.raw(f".type {KNAME},@function"); A.raw(f"{KNAME}:")
    A("s_cmp_ge_u32 s2, 256"); A("s_cbranch_scc1 L_end")
    A("s_load_dwordx8 s[4:11], s[0:1], 0")
    A("s_load_dwordx8 s[12:19], s[0:1], 32")
    if stamps: A(f"s_memrealtime s[{sSTAMP}:{sSTAMP+1}]")
    A("s_getpc_b64 s[100:101]")
    A.raw("L_pc:")
    if codepf:
        A(f"s_and_b32 s{sT1}, s2, 0xf8"); A(f"v_add_lshl_u32 v16, v0, s{sT1}, 7")
        A("v_min_u32 v16, L_codeend-L_pc-4, v16")
        A("v_cmp_gt_u32 vcc, 8, v0"); A("s_and_saveexec_b64 s[56:57], vcc"); A.raw("    s_cbranch_execz L_nocpf")
        A.raw("    global_load_dword a255, v16, s[100:101]")
        A.raw("L_nocpf:")
        A("s_mov_b64 exec, s[56:57]")
    A("v_lshrrev_b32 v1, 6, v0")
    A("v_mov_b32 v18, v0")
    A("v_readfirstlane_b32 s3, v1")
    A("v_and_b32 v0, 63, v0")
    A(f"s_and_b32 s{sTAB}, s2, 7"); A(f"s_lshr_b32 s{sSLOT}, s2, 3")
    A(f"s_and_b32 s{sT0}, s{sSLOT}, 1"); A(f"s_lshl_b32 s61, s{sTAB}, 1"); A(f"s_add_u32 s{sKVH}, s61, s{sT0}")
    A(f"s_lshr_b32 s{sSPL}, s{sSLOT}, 1"); A(f"s_and_b32 s{sSPL}, s{sSPL}, 1")
    A(f"s_lshr_b32 s{sB}, s{sSLOT}, 2")
    A("v_lshrrev_b32 v20, 4, v0")
    A("v_and_b32 v21, 15, v0")
    A(f"v_lshlrev_b32 v{vLIN}, 4, v0")
    A("v_lshlrev_b32 v22, 2, v20"); A("v_xor_b32 v22, v21, v22"); A("v_lshlrev_b32 v22, 4, v22"); A(f"v_lshl_add_u32 v{vKA}, v20, 8, v22")
    for i in range(1, 4): A(f"v_xor_b32 v{vKA+i}, {i<<4}, v{vKA}")
    A(f"s_mul_i32 s{sLK}, s3, {L_KW}")
    A(f"s_lshl_b32 s{sPID}, s{sB}, 4"); A(f"s_add_u32 s{sPID}, s{sPID}, s{sKVH}")
    A(f"s_lshl_b32 s{sT0}, s{sPID}, 21"); A(f"s_add_u32 s{sT0}, s{sT0}, {6144*256}")
    A(f"s_lshl_b32 s{sT1}, s{sSPL}, 18"); A(f"s_add_u32 s{sT0}, s{sT0}, s{sT1}")
    A(f"s_lshl_b32 s{sT1}, s3, 16"); A(f"s_add_u32 s{sT0}, s{sT0}, s{sT1}")
    A(f"s_lshl_b32 s{sPID}, s{sPID}, 1"); A(f"s_add_u32 s{sPID}, s{sPID}, s{sSPL}")
    A("v_mov_b32 v23, 0x7ffffff0"); A("v_cmp_gt_u32 vcc, 144, v18")
    A("v_lshrrev_b32 v22, 3, v18"); A(f"s_mul_i32 s{sT1}, s{sSLOT}, 18"); A(f"v_add_u32 v22, s{sT1}, v22"); A("v_lshlrev_b32 v22, 13, v22")
    A("v_and_b32 v24, 7, v18"); A("v_lshl_add_u32 v22, v24, 7, v22"); A("v_cndmask_b32 v16, v23, v22, vcc")
    A("v_lshlrev_b32 v22, 7, v18"); A("v_cndmask_b32 v17, v23, v22, vcc")
    A("s_waitcnt lgkmcnt(0)")
    def mksrd(n, p, off, size):
        if off is None or off == 0:
            A(f"s_mov_b32 s{n}, s{p}"); A(f"s_mov_b32 s{n+1}, s{p+1}")
        else:
            A(f"s_add_u32 s{n}, s{p}, {off}"); A(f"s_addc_u32 s{n+1}, s{p+1}, 0")
        A(f"s_mov_b32 s{n+2}, {size}"); A(f"s_mov_b32 s{n+3}, 0x20000")
    mksrd(sK, 6, f"s{sT0}", 65536)
    nlab = [0]
    extra = set()
    def adj(B, D):
        n = 0; cnt = 0
        while cnt < D - 1 or (B is A and (B.vm - 1 - n) in extra):
            if not (B is A and (B.vm - 1 - n) in extra): cnt += 1
            n += 1
        return min(n, 63)
    def throttle(B, D, idx):
        B.wait_vm_n(adj(B, D))
        if idx is None or DLO is None: return
        lo = DLO[idx]; mid = DMID[idx] if DMID else D
        if lo >= D and mid >= D: return
        nlab[0] += 1
        if mid < D:
            B.raw(f"    s_cmp_eq_u32 s{sLVL}, 0"); B.raw(f"    s_cbranch_scc1 L_t{nlab[0]}")
            B.raw(f"    s_waitcnt vmcnt({adj(B, mid)})")
        if lo < mid:
            B.raw(f"    s_cmp_lt_u32 s{sLVL}, 2"); B.raw(f"    s_cbranch_scc1 L_t{nlab[0]}")
            B.raw(f"    s_waitcnt vmcnt({adj(B, lo)})")
        B.raw(f"L_t{nlab[0]}:")
    kseq = {}
    def k_load(B, blk, i, D, dyn=False):
        def f():
            throttle(B, D, None if dyn else blk)
            if i % 4 == 0:
                if dyn: B(f"s_add_u32 s{sSO}, s{sNX}, {(dyn-1)*8192 + (i//4)*4096}")
                else: B(f"s_mov_b32 s{sSO}, {blk*8192 + (i//4)*4096}")
                if dyn: B(f"s_add_u32 m0, s{sNS if dyn == 1 else sNS2}, {(i//4)*4096}")
                else: B(f"s_add_u32 m0, s{sLK}, {(blk%NS)*8192 + (i//4)*4096}")
            q = B(f"buffer_load_dwordx4 v{vKA+(i&3)}, {srd(sK)}, s{sSO} offen offset:{(i&3)*1024} {kf} lds")
            if not dyn: kseq[blk, i] = q
        return f
    def k_loads(blk): return with_fb([k_load(A, blk, i, DK[blk]) for i in range(8)], blk)
    k0site = 0 in siteQ
    nfirst = 0 if k0site else (8 if kfirst is True else int(kfirst))
    for i in range(nfirst): k_load(A, 0, i, 63)()
    k0e = k0site and k0early
    def ppf():
        mksrd(sWP, 10, None, 576*8192)
        A(f"s_lshl_b32 s{sT1}, s{sTAB}, 10")
        A(f"buffer_load_dword a255, v16, {srd(sWP)}, s{sT1} offen {w1f}")
    if pfirst: ppf()
    if k0e:
        A(f"s_cmp_eq_u32 s{sSPL}, 0"); A.raw("    s_cbranch_scc1 L_nok0")
        sv = A.vm
        for i in range(8): k_load(A, 0, i, 63)()
        A.vm = sv
        A.raw("L_nok0:")
    if not pfirst: ppf()
    mksrd(sV, 8, f"s{sT0}", 65536)
    A(f"s_mul_i32 s{sT0}, s{sB}, 18432")
    mksrd(sX, 4, f"s{sT0}", 18432)
    A(f"s_lshl_b32 s{sT1}, s3, 10")
    for k in range(5):
        A(f"s_add_u32 m0, s{sT1}, {L_XI + k*4096}"); A(f"s_add_u32 s{sSO}, s{sT1}, {k*4096}")
        A(f"buffer_load_dwordx4 v{vLIN}, {srd(sX)}, s{sSO} offen lds")
    A(f"s_lshl_b32 s{sT1}, s{sB}, 8"); A(f"s_add_u32 s{sT1}, s{sT1}, {wsbase + 12}"); A(f"s_load_dword s{sE1}, s[18:19], s{sT1}")
    if not k0site:
        for i in range(nfirst, 8): k_load(A, 0, i, 63)()
    A("v_accvgpr_write_b32 a254, v17")
    if tlb0:
        A("s_mov_b64 exec, 1")
        A("s_cmp_eq_u32 s3, 0"); A.raw("    s_cbranch_scc0 L_tl1")
        A("v_mov_b32 v16, 0")
        sv = A.vm
        A(f"buffer_load_dword a255, v16, {srd(sK)}, 0 offen {kf}")
        A(f"buffer_load_dword a255, v16, {srd(sV)}, 0 offen {vf}")
        A.raw("L_tl1:")
        A("s_cmp_eq_u32 s3, 1"); A.raw("    s_cbranch_scc0 L_tl2")
        A(f"s_lshl_b32 s{sT0}, s{sPID}, 14"); A(f"s_add_u32 s{sT0}, s{sT0}, {XO_OFF + wsbase}"); A(f"v_mov_b32 v16, s{sT0}")
        A("global_load_dword a255, v16, s[18:19]")
        A(f"s_lshl_b32 s{sT0}, s{sB}, 1"); A(f"s_add_u32 s{sT0}, s{sT0}, s{sSPL}"); A(f"s_mul_i32 s{sT0}, s{sT0}, 196608")
        A(f"s_mul_i32 s{sT1}, s{sKVH}, 768"); A(f"s_add_u32 s{sT0}, s{sT0}, s{sT1}"); A(f"s_add_u32 s{sT0}, s{sT0}, {PY_OFF + wsbase}"); A(f"v_mov_b32 v16, s{sT0}")
        A("global_load_dword a255, v16, s[18:19]")
        A(f"s_lshl_b32 s{sT0}, s{sPID}, 9"); A(f"s_add_u32 s{sT0}, s{sT0}, {XS_OFF + wsbase}"); A(f"v_mov_b32 v16, s{sT0}")
        A("global_load_dword a255, v16, s[18:19]")
        A.raw("L_tl2:")
        A("s_cmp_eq_u32 s3, 2"); A.raw("    s_cbranch_scc0 L_tl3")
        A(f"s_mul_i32 s{sT0}, s{sKVH}, {256*1152}"); A(f"v_mov_b32 v16, s{sT0}")
        A("global_load_dword a255, v16, s[12:13]")
        A(f"s_add_u32 s{sT0}, s{sT0}, {255*1152}"); A(f"v_mov_b32 v16, s{sT0}")
        A("global_load_dword a255, v16, s[12:13]")
        A(f"s_mul_i32 s{sT0}, s{sPID}, 576"); A(f"v_mov_b32 v16, s{sT0}")
        A("global_load_dword a255, v16, s[14:15]")
        A.raw("L_tl3:")
        A.vm = sv
        A("s_mov_b64 exec, -1")
    def late_touch():
        A("v_accvgpr_read_b32 v1, a254")
        A(f"s_lshl_b32 s{sT1}, s{sTAB}, 5"); A(f"s_add_u32 s{sT1}, s{sT1}, s{sSLOT}"); A(f"s_mul_i32 s{sT1}, s{sT1}, {144*128}")
        A(f"buffer_load_dword a255, v1, {srd(sWP)}, s{sT1} offen {w1f}")
        if tlbwarm and not tlb0:
            A(f"v_mov_b32 v{vT}, 0")
            A(f"buffer_load_dword a255, v{vT}, {srd(sV)}, 0 offen {vf}")
        if outtouch:
            A(f"s_mul_i32 s{sT1}, s{sPID}, 576"); A(f"s_lshl_b32 s{sT0}, s3, 13"); A(f"s_add_u32 s{sT1}, s{sT1}, s{sT0}")
            A(f"v_lshlrev_b32 v{vT+1}, 7, v0"); A("v_cmp_gt_u32 vcc, 5, v0"); A(f"v_mov_b32 v{vT+2}, 0x7ffffff0")
            A("s_cmp_eq_u32 s3, 0"); A("s_cselect_b64 vcc, vcc, 0")
            A(f"v_cndmask_b32 v{vT+1}, v{vT+2}, v{vT+1}, vcc")
            A(f"buffer_load_dword a255, v{vT+1}, {srd(sOUT)}, s{sT1} offen")
    if stamps:
        A(f"s_lshl_b32 s{sT1}, s2, 8"); A(f"s_add_u32 s{sT1}, s{sT1}, {STAMP_OFF}")
        A(f"s_add_u32 s16, s18, s{sT1}"); A("s_addc_u32 s17, s19, 0")
        A("v_and_b32 v17, 128, v18")
        A("global_load_dword a255, v17, s[16:17]")
    A(f"s_and_b32 s{sT0}, s3, 1"); A(f"s_lshl_b32 s{sT1}, s{sKVH}, 1"); A(f"s_add_u32 s{sT0}, s{sT0}, s{sT1}"); A(f"s_lshl_b32 s{sT0}, s{sT0}, 8")
    A(f"s_lshr_b32 s{sT1}, s3, 1"); A(f"s_mul_i32 s61, s{sT1}, {288*8192}"); A(f"s_add_u32 s{sT0}, s{sT0}, s61")
    mksrd(sWQ, 10, f"s{sT0}", 287*8192+256)
    A("v_lshlrev_b32 v22, 4, v21"); A(f"v_lshl_add_u32 v{vWQ}, v20, 16, v22")
    A(f"s_mul_i32 s{sT1}, s{sT1}, 576"); A(f"s_add_u32 s{sT1}, s{sT1}, {L_XI}")
    A("v_mul_u32_u24 v22, 1152, v21"); A("v_lshl_add_u32 v22, v20, 4, v22"); A(f"v_add_u32 v{vX}, s{sT1}, v22")
    A(f"s_mov_b32 s{sSELL}, 0x05040100"); A(f"s_mov_b32 s{sSELH}, 0x07060302")
    if noQB: A(f"s_mov_b32 s{sWQ+2}, 0")
    A(f"s_getreg_b32 s{sXCC}, hwreg(HW_REG_XCC_ID, 0, 4)")
    if fb:
        A(f"s_mov_b32 s{sLVL}, 1")
    elif DLO is not None:
        A(f"s_lshr_b32 s{sT0}, {lomask}, s{sXCC}"); A(f"s_and_b32 s{sT0}, s{sT0}, 1"); A(f"s_lshl_b32 s{sLVL}, s{sT0}, 1")
        A(f"s_lshr_b32 s{sT0}, {midmask}, s{sXCC}"); A(f"s_and_b32 s{sT0}, s{sT0}, 1"); A(f"s_or_b32 s{sLVL}, s{sLVL}, s{sT0}")
    def late_setup():
        mksrd(sOUT, 14, None, 8*16*576*2)
        mksrd(sWP, 12, None, 4096*1152)
        A(f"s_mul_i32 s{sT0}, s{sKVH}, {256*1152}")
        A(f"s_mul_i32 s{sT1}, s{sSPL}, 576"); A(f"s_add_u32 s{sT0}, s{sT0}, s{sT1}")
        A(f"s_mul_i32 s{sT1}, s3, 192"); A(f"s_add_u32 s{sT0}, s{sT0}, s{sT1}")
        mksrd(sWO, 12, f"s{sT0}", 255*1152+192)
        mksrd(sWS, 18, wsbase, WS_USED)
        A("s_cmp_eq_u32 s3, 3"); A(f"s_cselect_b32 s{sWO+2}, 0, s{sWO+2}")
        if noOB: A(f"s_mov_b32 s{sWO+2}, 0")
        A(f"s_mov_b32 s{sSC}, {SCALE:#x}")
        g_, c_, t2, t3 = vT, vT+1, vT+2, vT+3
        A(f"v_lshrrev_b32 v{g_}, 4, v0"); A(f"v_and_b32 v{c_}, 15, v0")
        A(f"v_mul_u32_u24 v{t2}, 4608, v{g_}"); A(f"v_mul_u32_u24 v{t3}, 12, v{c_}"); A(f"v_add_u32 v{vWO}, v{t2}, v{t3}")
        A(f"v_and_b32 v{t2}, 3, v{c_}"); A(f"v_lshlrev_b32 v{t2}, 2, v{t2}"); A(f"v_lshrrev_b32 v{t3}, 2, v{c_}"); A(f"v_add_u32 v{t2}, v{t2}, v{t3}")
        A(f"v_lshlrev_b32 v{t3}, 2, v{g_}"); A(f"v_xor_b32 v{t3}, v{t3}, v{t2}"); A(f"v_lshlrev_b32 v{t3}, 4, v{t3}"); A(f"v_lshl_add_u32 v{t3}, v{c_}, 8, v{t3}")
        A(f"v_add_u32 v{vKR}, s{sLK}, v{t3}")
        for s in range(1, 4): A(f"v_xor_b32 v{vKR+s}, {s<<4}, v{vKR}")
        A(f"v_mov_b32 v{vMX}, 0xff800000"); A(f"v_mov_b32 v{vMX+1}, 0xff800000")
    if rstage < 0 or not k0e:
        late_setup()
        if rstage < 0: late_touch()

    mvseq = {}
    def k_move(blk):
        it = [lambda: A.wait_vm(kseq[blk, 7])]
        for t in range(2):
            for s in range(4):
                def f(t=t, s=s):
                    mvseq[blk] = A(f"ds_read_b128 {ar(blk*32+t*16+s*4)}, v{vKR+s} offset:{(blk%NS)*8192+t*4096}")
                it.append(f)
        return it
    def qk(blk):
        it = [lambda: A.wait_lg(mvseq[blk])]
        for s in range(4):
            for t in range(2):
                for h in range(2):
                    d = vr(vS + blk*16 + h*8 + t*4)
                    it.append(f"{MF} {d}, {ar(blk*32+t*16+s*4)}, {vr(vQ+h*16+s*4)}, {d if s else 0}")
        return it
    def rmax(blk):
        it = []
        for k in range(4):
            for h in range(2):
                b = vS + blk*16 + h*8 + 2*k
                it.append(f"v_max3_f32 v{vMX+h}, v{vMX+h}, v{b}, v{b+1}")
        return it
    def site(name, which, blk, loads, blk2=None):
        if blk or name != "QB": A.wait_lg_all()
        A(f"s_mov_b32 s{sNX}, {blk*8192}")
        A(f"s_add_u32 s{sNS}, s{sLK}, {(blk%NS)*8192}")
        if blk2 is not None: A(f"s_add_u32 s{sNS2}, s{sLK}, {(blk2%NS)*8192}")
        A(f"s_cmp_eq_u32 s{sSPL}, {which}")
        A(f"s_cbranch_scc1 L_{name}")
        for f in loads: f()
        A.vm_done = min(A.vm_done, A.vm - 1 - len(loads))
        A.label(f"L_{name}_ret{which}")
    def do_pretouch(pt=pt):
        A(f"s_lshl_b32 s{sT0}, s{sPID}, 14"); A(f"s_lshl_b32 s{sT1}, s3, 12"); A(f"s_add_u32 s{sT0}, s{sT0}, s{sT1}"); A(f"s_add_u32 s{sT0}, s{sT0}, {XO_OFF}")
        A(f"v_lshl_add_u32 v{vT}, v0, 7, s{sT0}")
        A(f"s_mul_i32 s{sT0}, s3, 24"); A(f"s_sub_u32 s{sT0}, s{sT0}, 24"); A(f"v_add_u32 v{vT+1}, s{sT0}, v0")
        A(f"v_mul_u32_u24 v{vT+2}, 10923, v{vT+1}"); A(f"v_lshrrev_b32 v{vT+2}, 16, v{vT+2}")
        A(f"v_mul_u32_u24 v{vT+2}, {12288-768}, v{vT+2}"); A(f"v_lshl_add_u32 v{vT+2}, v{vT+1}, 7, v{vT+2}")
        A(f"s_lshl_b32 s{sT0}, s{sB}, 1"); A(f"s_add_u32 s{sT0}, s{sT0}, s{sSPL}"); A(f"s_mul_i32 s{sT0}, s{sT0}, 196608")
        A(f"s_mul_i32 s{sT1}, s{sKVH}, 768"); A(f"s_add_u32 s{sT0}, s{sT0}, s{sT1}"); A(f"s_add_u32 s{sT0}, s{sT0}, {PY_OFF}")
        A(f"v_add_u32 v{vT+2}, s{sT0}, v{vT+2}")
        A(f"v_cmp_gt_u32 vcc, 24, v0"); A(f"v_mov_b32 v{vT+3}, 0x7ffffff0"); A(f"v_cndmask_b32 v{vT}, v{vT+2}, v{vT}, vcc")
        A(f"v_cmp_gt_u32 vcc, {48 if 'p' in pt else 24}, v0"); A(f"v_cndmask_b32 v{vT}, v{vT+3}, v{vT}, vcc")
        if 'x' not in pt:
            A(f"v_cmp_lt_u32 vcc, 23, v0"); A(f"v_cndmask_b32 v{vT}, v{vT+3}, v{vT}, vcc")
        if not ptx:
            A(f"buffer_load_dword a255, v{vT}, {srd(sWS)}, 0 offen {ptf}")
        else:
            A(f"v_mov_b32 v{vT+1}, {ptx*1536 if 'p' in ptxw else 0x40000000}"); A(f"v_mov_b32 v{vT+2}, {ptx << 16 if 'x' in ptxw else 0x40000000}")
            A(f"v_cmp_gt_u32 vcc, 24, v0"); A(f"v_cndmask_b32 v{vT+1}, v{vT+1}, v{vT+2}, vcc")
            A(f"v_add_u32 v{vT+1}, v{vT+1}, v{vT}")
            A(f"s_and_b32 s{sT0}, s2, {ptx}"); A(f"s_cmp_eq_u32 s{sT0}, 0"); A("s_cbranch_scc1 L_ptdo")
            if 'x' in ptxw and 'p' in ptxw:
                A("s_branch L_ptend")
            else:
                if 'x' in ptxw: A(f"v_cndmask_b32 v{vT}, v{vT}, v{vT+3}, vcc")
                else: A(f"v_cndmask_b32 v{vT}, v{vT+3}, v{vT}, vcc")
                A(f"v_mov_b32 v{vT+1}, v{vT+3}")
            A.label("L_ptdo")
            A.raw(f"    buffer_load_dword a255, v{vT}, {srd(sWS)}, 0 offen {ptf}")
            A.raw(f"    buffer_load_dword a255, v{vT+1}, {srd(sWS)}, 0 offen {ptf}")
            A.label("L_ptend")
    fbs = {}
    def fb_setup():
        A(f"s_lshl_b32 s{sBO}, s{sTAB}, 7"); A(f"s_add_u32 s{sBO}, s{sBO}, {BD_OFF}")
        A(f"s_lshl_b32 s{sBT}, s{sE1}, 4")
        A(f"s_mov_b32 s{sBS}, s{sWS}"); A(f"s_mov_b32 s{sBS+1}, s{sWS+1}"); A(f"s_mov_b32 s{sBS+3}, 0x20000")
        A("s_cmp_eq_u32 s3, 0"); A(f"s_cselect_b32 s{sBS+2}, {WS_USED}, 0")
        A(f"s_lshl_b32 s{sT0}, s{sSLOT}, 2")
        A(f"v_mov_b32 v{vT}, 0x7ffffff0"); A(f"v_lshlrev_b32 v{vT+1}, 2, v0"); A("v_cmp_gt_u32 vcc, 32, v0")
        A(f"v_cndmask_b32 v{vBA}, v{vT}, v{vT+1}, vcc")
        A(f"v_mov_b32 v{vT+1}, s{sT0}"); A("v_cmp_eq_u32 vcc, 0, v0"); A(f"v_cndmask_b32 v{vBA+2}, v{vT}, v{vT+1}, vcc")
    def fb_post(idx):
        if idx not in fb: return
        A(f"s_add_u32 s11, s{sBT}, {idx}"); A(f"v_mov_b32 v{vBV}, s11")
        A(f"buffer_store_dword v{vBV}, v{vBA+2}, {srd(sBS)}, s{sBO} offen")
        fbs[idx] = A(f"buffer_load_dword v{vBD}, v{vBA}, {srd(sWS)}, s{sBO} offen {ldf}")
        extra.update((fbs[idx], fbs[idx] - 1))
    def fb_eval(idx):
        def f():
            A.wait_vm(fbs[idx])
            A(f"s_add_u32 s11, s{sBT}, {idx}"); A(f"v_subrev_u32 v{vBD}, s11, v{vBD}")
            A(f"v_cmp_gt_u32 s[12:13], {16-idx}, v{vBD}"); A(f"s_bcnt1_i32_b64 s11, s[12:13]")
            A(f"s_cmp_le_u32 s11, {fbT[0]}"); A(f"s_cselect_b32 s{sLVL}, 2, 1")
            A(f"s_cmp_ge_u32 s11, {fbT[1]}"); A(f"s_cselect_b32 s{sLVL}, 0, s{sLVL}")
        return f
    def with_fb(loads, idx):
        if idx - 1 not in fb: return loads
        l = list(loads); k = min(fbat, len(l) - 1)
        g = l[k]
        l[k] = lambda: (fb_eval(idx - 1)(), g())
        return l
    def do_xpre():
        A(f"s_lshl_b32 s{sT0}, s{sPID}, 14"); A(f"s_lshl_b32 s{sT1}, s3, 12"); A(f"s_add_u32 s{sT0}, s{sT0}, s{sT1}"); A(f"s_add_u32 s{sT0}, s{sT0}, {XO_OFF}")
        A(f"s_not_b32 s{sT1}, s{sE1}")
        for k in range(4): A(f"v_mov_b32 v{vT+k}, s{sT1}")
        for k in range(3):
            q = A(f"buffer_store_dwordx4 {vr(vT)}, v{vLIN}, {srd(sWS)}, s{sT0} offen offset:{k*1024} {xpre}")
            extra.add(q)
        A("s_nop 1")
    def post_k(blk):
        if xpre is not None and blk == xprej: do_xpre()
        fb_post(blk)
        stamp_at(A, f"k{blk}")
        if blk == rstage: late_touch()
        if blk == pretouch: do_pretouch()

    nmv = [0]; nqk = [0]; nmx = [0]
    def kcomp(upto_move, do_qk, maxqk=3):
        it = []
        while nmv[0] <= upto_move: it += k_move(nmv[0]); nmv[0] += 1
        n = 0
        while do_qk and nqk[0] < nmv[0] and n < maxqk:
            it += qk(nqk[0]); nqk[0] += 1; n += 1
            while nmx[0] < nqk[0] - 1: it += rmax(nmx[0]); nmx[0] += 1
        return it
    skip = set()
    for blk in range(0 if k0site else 1, 8):
        if blk in skip:
            post_k(blk); continue
        last = blk + 1 if (blk in siteQ and q2) else blk
        if last >= NS:
            if nmv[0] <= last - NS: run(kcomp(last - NS, False))
            A.wait_lg(mvseq[last - NS])
        if blk in siteQ:
            if blk == 0 and k0e:
                def ph(i):
                    def f():
                        kseq[0, i] = A.vm; A.vm += 1
                    return f
                site("QB", 0, 0, [ph(i) for i in range(8)] + k_loads(1), 1); skip.add(1)
                if rstage >= 0: late_setup()
            elif q2:
                site("QB", siteQ.index(blk), blk, k_loads(blk) + k_loads(blk + 1), blk + 1); skip.add(blk + 1)
            else:
                site("QB", siteQ.index(blk), blk, k_loads(blk))
            if blk == siteQ[1]:
                A(f"s_add_u32 s{sE1}, s{sE1}, 1")
                if fb: fb_setup()
                stamp_at(A, "qb1")
        else:
            comp = kcomp(blk - 2, blk > siteQ[1])
            if blk == 7: comp += tail_addr()
            if blk in frontK: run(k_loads(blk)); run(comp)
            else: mix(A, comp, k_loads(blk))
        post_k(blk)
    assert 7 not in skip
    assert 7 not in siteQ
    vseq = {}
    def v_load(B, blk, i, D, dyn=False):
        def f():
            throttle(B, D, None if dyn else 8 + blk)
            if i % 4 == 0:
                if dyn: B(f"s_add_u32 s{sSO}, s{sNX}, {(i//4)*4096}")
                else: B(f"s_mov_b32 s{sSO}, {blk*8192 + (i//4)*4096}")
                if dyn: B(f"s_add_u32 m0, s{sNS}, {(i//4)*4096}")
                else: B(f"s_add_u32 m0, s{sLK}, {(blk%NS)*8192 + (i//4)*4096}")
            q = B(f"buffer_load_dwordx4 v{vVA+(i&1)}, {srd(sV)}, s{sSO} offen offset:{(i&3)*1024} {vf} lds")
            if not dyn: vseq[blk, i] = q
        return f
    def v_loads(blk):
        l = with_fb([v_load(A, blk, i, DV[blk]) for i in range(8)], 8 + blk)
        if 8 + blk in fb:
            g = l[7]
            l[7] = lambda: (g(), fb_post(8 + blk))
        return l
    run(["v_lshrrev_b32 v176, 4, v0", "v_and_b32 v177, 15, v0", "v_lshlrev_b32 v178, 1, v176", "v_xor_b32 v177, v177, v178",
         "v_lshlrev_b32 v177, 4, v177", f"v_lshl_add_u32 v{vVA}, v176, 8, v177", f"v_xor_b32 v{vVA+1}, 0x80, v{vVA}",
         f"s_lshl_b32 s{sT0}, s3, 11", f"s_add_u32 s{sT0}, s{sT0}, {L_PX}", f"v_add_u32 v{vPW}, s{sT0}, v{vLIN}", f"v_add_u32 v{vPR}, {L_PX}, v{vLIN}"])
    A.wait_lg(mvseq[4])
    mix(A, kcomp(6, True, 8), v_loads(0))
    vl = v_loads(1)
    cut = 0
    comp = kcomp(7, True, 8)
    MXO = 3 * 8192 + 7168
    comp += ["v_and_b32 v176, 15, v0", "v_lshlrev_b32 v176, 3, v176", f"v_add_u32 v176, {MXO}, v176",
             f"v_add_u32 v177, s{sLK}, v176", f"v_add_u32 v188, {2*L_KW}, v176"]
    comp += rmax(7)
    for h in range(2): comp.append(f"v_mov_b32 v{178+h}, v{vMX+h}")
    for h in range(2): comp.append(f"v_permlane32_swap_b32 v{178+h}, v{vMX+h}")
    for h in range(2): comp.append(f"v_max_f32 v{vMX+h}, v{vMX+h}, v{178+h}")
    for h in range(2): comp.append(f"v_mov_b32 v{178+h}, v{vMX+h}")
    for h in range(2): comp.append(f"v_permlane16_swap_b32 v{178+h}, v{vMX+h}")
    for h in range(2): comp.append(f"v_max_f32 v{vMX+h}, v{vMX+h}, v{178+h}")
    comp += [f"ds_write_b64 v177, {vr(vMX, 2)}",
             lambda: A.wait_lg_all(), "s_barrier",
             f"ds_read_b64 {vr(180, 2)}, v176", f"ds_read_b64 {vr(182, 2)}, v176 offset:{L_KW}",
             f"ds_read_b64 {vr(184, 2)}, v188", f"ds_read_b64 {vr(186, 2)}, v188 offset:{L_KW}",
             lambda: A.wait_lg_all()]
    for h in range(2): comp.append(f"v_max3_f32 v{vMX+h}, v{180+h}, v{182+h}, v{184+h}")
    for h in range(2): comp.append(f"v_max_f32 v{vMX+h}, v{vMX+h}, v{186+h}")
    for h in range(2): comp.append(f"v_mul_f32 v{vMX+h}, s{sSC}, v{vMX+h}")
    cut2 = 6
    mix(A, comp, vl[cut:cut2])
    run(["v_lshrrev_b32 v178, 2, v0", "v_and_b32 v179, 7, v178", "v_lshlrev_b32 v179, 1, v179",
         "v_bfe_u32 v180, v0, 1, 1", f"s_lshl_b32 s{sT0}, s3, 2", f"v_or_b32 v180, s{sT0}, v180",
         "v_xor_b32 v179, v179, v180", "v_lshlrev_b32 v179, 4, v179", "v_lshl_add_u32 v179, v178, 8, v179",
         "v_and_b32 v180, 1, v0", f"v_lshl_add_u32 v{vVR}, v180, 3, v179",
         f"v_xor_b32 v{vVR+1}, 32, v{vVR}", f"v_add_u32 v{vVR+2}, {2*L_KW}, v{vVR}", f"v_add_u32 v{vVR+3}, {2*L_KW}, v{vVR+1}"])
    stamp_at(A, "mxdone")
    def softmax(blk):
        it = []
        for h in range(2):
            b = vS + blk*16 + h*8
            for k in range(8): it.append(f"v_fma_f32 v{b+k}, v{b+k}, s{sSC}, -v{vMX+h}")
            for k in range(8): it.append(f"v_exp_f32 v{b+k}, v{b+k}")
        for h in range(2):
            b = vS + blk*16 + h*8
            for k in range(4): it.append(f"v_cvt_pk_bf16_f32 v{vS+blk*8+h*4+k}, v{b+2*k}, v{b+2*k+1}")
        return it
    def lsum(blk):
        return [f"{MF} {vr(vT+8+4*h)}, {vr(vT)}, {vr(vS+blk*8+h*4)}, {vr(vT+8+4*h) if blk else 0}" for h in range(2)]
    comp = [f"v_mov_b32 v{vT+k}, 0x3f803f80" for k in range(4)]
    for blk in range(8):
        comp += softmax(blk)
        if blk: comp += lsum(blk-1)
    comp += lsum(7)
    comp += ["v_and_b32 v1, 15, v0", f"s_lshl_b32 s{sT0}, s3, 2", f"v_lshl_add_u32 v1, v1, 4, s{sT0}", f"v_add_u32 v1, {L_LX}, v1",
             f"ds_write_b32 v1, v{vT+8}", f"ds_write_b32 v1, v{vT+12} offset:256"]
    def pwrite(j):
        return [f"ds_write_b128 v{vPW}, {vr(vS+j*8+h*4)} offset:{(j%3)*8192+h*1024}" for h in range(2)]
    comp += pwrite(0) + pwrite(1)
    mix(A, comp, vl[cut2:] + v_loads(2))
    stamp_at(A, "smdone")

    def sync(j):
        return [lambda: A.wait_vm(vseq[j, 7]), lambda: A.wait_lg_all(), "s_barrier"]
    rd = {}
    def preads(j):
        it = []
        for src in range(4):
            for h in range(2):
                def f(src=src, h=h): rd["p", src, h] = A(f"ds_read_b128 {vr(vPM+src*8+h*4)}, v{vPR} offset:{(j%3)*8192+src*2048+h*1024}")
                it.append(f)
        return it
    def rnd(j, withp=True):
        it = []
        pr = preads(j) if withp else []
        for src in range(4):
            it += pr[2*src:2*src+2]
            for t2 in range(2):
                for t in range(2):
                    def f(src=src, t2=t2, t=t):
                        rd["v", src, t2] = A(f"ds_read_b64_tr_b16 {vr(vVT+src*8+t2*4+t*2, 2)}, v{vVR+t2+2*(src>>1)} offset:{(src&1)*L_KW+(j%NS)*8192+t*4096}")
                    it.append(f)
        if j + 2 < 8: it += pwrite(j + 2)
        for src in range(4):
            for t2 in range(2):
                it.append(lambda src=src, t2=t2: A.wait_lg(rd["v", src, t2]))
                for h in range(2):
                    d = vr(vACC + h*8 + t2*4)
                    it.append(f"{MF} {d}, {vr(vVT+src*8+t2*4)}, {vr(vPM+src*8+h*4)}, {d if (j or src) else 0}")
        return it
    def stats_read():
        return ["v_and_b32 v1, 15, v0", "v_lshlrev_b32 v1, 4, v1", f"v_add_u32 v1, {L_LX}, v1",
                f"ds_read_b128 {vr(176)}, v1", f"ds_read_b128 {vr(180)}, v1 offset:256"]
    def stats_pub():
        def st():
            A("s_cmp_lg_u32 s3, 0"); A("s_cbranch_scc1 L_nostat")
            A.raw(f"    buffer_store_dwordx4 {vr(184)}, v1, {srd(sWS)}, s{sT0} offen {pubf}")
            A.raw("    s_nop 1")
            A.label("L_nostat")
        return ["v_add_f32 v176, v176, v177", "v_add_f32 v180, v180, v181", "v_add_f32 v178, v178, v179", "v_add_f32 v182, v182, v183",
                f"v_add_f32 v{vWQ}, v176, v178", f"v_add_f32 v{vX}, v180, v182",
                "v_and_b32 v1, 16, v0", "v_cmp_eq_u32 vcc, 0, v1",
                f"s_lshl_b32 s{sT0}, s{sXCC}, 28", f"s_xor_b32 s{sT0}, s{sT0}, s{sE1}",
                f"v_mov_b32 v186, s{sE1}", f"v_mov_b32 v187, s{sT0}",
                f"v_cndmask_b32 v184, v{vMX+1}, v{vMX}, vcc", f"v_cndmask_b32 v185, v{vX}, v{vWQ}, vcc",
                "v_and_b32 v1, 31, v0", "v_lshlrev_b32 v1, 4, v1",
                f"s_lshl_b32 s{sT0}, s{sPID}, 9", f"s_add_u32 s{sT0}, s{sT0}, {XS_OFF}", st]
    ev = []
    for r in range(7): ev += [("S", r), ("R", r)]
    pos = [0]
    def take(until):
        it = []
        while pos[0] <= ev.index(until):
            k, r = ev[pos[0]]; pos[0] += 1
            if k == "S": it += sync(r)
            else:
                if r == 0: it += stats_read()
                it += rnd(r)
                if r == 0: it += stats_pub()
        return it
    statseq = {}
    def ldstat(h):
        def f():
            if h == 0:
                A("v_and_b32 v1, 15, v0"); A("v_lshlrev_b32 v1, 4, v1")
                A(f"s_xor_b32 s{sSTA}, s{sPID}, 1"); A(f"s_lshl_b32 s{sSTA}, s{sSTA}, 9"); A(f"s_add_u32 s{sSTA}, s{sSTA}, {XS_OFF}")
            statseq[h] = A(f"buffer_load_dwordx4 {vr(72+4*h)}, v1, {srd(sWS)}, s{sSTA} offen offset:{h*256} {ldf}")
        return f
    for j in range(3, 8):
        if j >= NS: run(take(("S", j - NS + 1)))
        if j == 3 and (j in siteO or j in frontV): run(take(("S", 0)))
        if j == (6 if earlyscl else 7): run([ldstat(0), ldstat(1)])
        if j == 7 and earlyscl:
            run([lambda: A.wait_vm(statseq[1])] + stat_scales(A, local))
        if j in siteO and prer is not None and prer[siteO.index(j)] is not None:
            which = siteO.index(j) ^ oswap
            items = take(("R", prer[siteO.index(j)]))
            A(f"s_mov_b32 s{sNX}, {j*8192}"); A(f"s_add_u32 s{sNS}, s{sLK}, {(j%NS)*8192}")
            A(f"s_cmp_lg_u32 s{sSPL}, {which}"); A(f"s_cbranch_scc1 L_pre{j}")
            sv = (A.lg, A.lg_done, A.vm_done)
            run(items); A.wait_lg_all(); A("s_branch L_OB")
            A.lg, A.lg_done, A.vm_done = sv
            A.label(f"L_pre{j}")
            if j in frontV: run(v_loads(j)); run(items)
            else: mix(A, items, v_loads(j))
            A.wait_lg_all()
            A.vm_done = min(A.vm_done, A.vm - 9)
            A.label(f"L_OB_ret{which}")
        elif j in siteO:
            site("OB", siteO.index(j) ^ oswap, j, v_loads(j))
        elif j == 7:
            vl7 = v_loads(7)
            mix(A, take(("R", 4)), vl7[:front7] )
            mix(A, take(("R", 5)), vl7[front7:])
        elif j in frontV:
            run(v_loads(j)); run(take(("R", j - 2)))
        else:
            mix(A, take(("R", j - 2)), v_loads(j))
        if j == ptlj and ptlate: do_pretouch(ptlate)
        stamp_at(A, f"v{j}")
    run(take(("R", 5)))
    stamp_at(A, "r5")
    if not earlyscl: run([lambda: A.wait_vm(statseq[1])] + stat_scales(A, local))
    run([f"v_mov_b32 v{103+4*k}, s{sE1}" for k in range(3)])
    stamp_at(A, "scl")
    run(take(("S", 6))); stamp_at(A, "s6")
    run(take(("R", 6))); run(preads(7))
    stamp_at(A, "v7")
    sy = sync(7)
    run(sy[:1]); stamp_at(A, "v7land"); run(sy[1:]); stamp_at(A, "v7b")
    if "notail" in exp: A("s_branch L_fin")
    run(rnd(7, withp=False))
    tail(A, pubf, ldf, stamp_at, sleepx, sleepg, outf, own, pipe, brx)
    A.label("L_fin")
    if stamps:
        A(f"s_lshl_b32 s{sT0}, s2, 2"); A(f"s_add_u32 s{sT0}, s{sT0}, s3"); A(f"s_lshl_b32 s{sT0}, s{sT0}, 6")
        A(f"s_add_u32 s{sT0}, s{sT0}, {STAMP_OFF}")
        A(f"s_add_u32 s18, s18, s{sT0}"); A("s_addc_u32 s19, s19, 0")
        A("v_mov_b32 v1, 0")
        for j in range(4):
            for k in range(4): A(f"v_mov_b32 v{4+k}, s{sSTAMP+4*j+k}")
            A(f"global_store_dwordx4 v1, v[4:7], s[18:19] offset:{16*j} sc1")
    A.label("L_end")
    A("s_endpgm")

    B = Asm()
    B.label("L_QB")
    stamp_at(B, "qbs"); stamp_at(B, "cnt_clk0")
    qs = {}
    def q_load(u, i):
        def f():
            B.wait_vm_n(DQ - 1)
            B(f"s_mov_b32 s{sSO}, {(u*32+i)*8192}")
            qs[u, i] = B(f"buffer_load_dwordx4 {vr(WQR[u%3]+4*i)}, v{vWQ}, {srd(sWQ)}, s{sSO} offen {w2f}")
        return f
    xs = {}
    def q_cons(u):
        it = [lambda: B.wait_vm(qs[u, 7]), lambda: B.wait_lg(xs[u])]
        if "nocomp" in exp: return it
        for q in range(4):
            tb = vT + (q & 1) * 8
            it += perms(WQR[u % 3], q, tb)
            for jo in range(2):
                d = vr(vQA + (2*q+jo)*4)
                it.append(f"{MF} {d}, {vr(tb+4*jo)}, {vr(vXO_+4*u)}, {d if u else 0}")
        return it
    for u in (0, 1):
        for i in range(8): q_load(u, i)()
    B.wait_vm(qs[0, 0]); B("s_barrier")
    for u in range(9): xs[u] = B(f"ds_read_b128 {vr(vXO_+4*u)}, v{vX} offset:{u*64}")
    for u in range(0, 7):
        mix(B, q_cons(u), [q_load(u+2, i) for i in range(8)])
    kn = [k_load(B, 1, i, 32 if frontn else 24, dyn=1) for i in range(8)]
    if frontn:
        for f in kn: f()
        kn = []
    mix(B, q_cons(7), kn)
    mix(B, q_cons(8), [])
    stamp_at(B, "qbl")
    red = ["s_barrier",
           f"s_lshl_b32 s{sT0}, s3, 13", f"s_add_u32 s{sT0}, s{sT0}, {L_QR}", f"v_add_u32 v1, s{sT0}, v{vLIN}"]
    for j in range(8): red.append(f"ds_write_b128 v1, {vr(vQA+4*j)} offset:{j*1024}")
    red += [f"v_add_u32 v1, {L_QR}, v{vLIN}", lambda: B.wait_lg_all(), "s_barrier"]
    rs = {}
    for h in range(2):
        for j in range(8):
            for k in range(2):
                def f(h=h, j=j, k=k): rs[h, j, k] = B(f"ds_read_b128 {vr(vS+h*64+j*8+k*4)}, v1 offset:{(h+2*k)*8192+j*1024}")
                red.append(f)
    for h in range(2):
        for p in range(4):
            red.append(lambda h=h, p=p: B.wait_lg(rs[h, 2*p+1, 1]))
            for jo in range(2):
                b = vS + h*64 + (2*p+jo)*8
                for r in range(4): red.append(f"v_add_f32 v{b+r}, v{b+r}, v{b+4+r}")
            for r in range(4):
                red.append(f"v_cvt_pk_bf16_f32 v{vQ+h*16+r*4+p}, v{vS+h*64+(2*p)*8+r}, v{vS+h*64+(2*p+1)*8+r}")
    mix(B, red, [k_load(B, 2, i, DQ2, dyn=2) for i in range(8)] if q2 else [])
    if qbar: B.wait_lg_all(); B("s_barrier")
    stamp_at(B, "qbe")
    B(f"s_cmp_eq_u32 s{sSPL}, 0"); B("s_cbranch_scc1 L_QB_ret0"); B("s_branch L_QB_ret1")

    C = Asm()
    C.label("L_OB")
    stamp_at(C, "obs")
    C("s_cmp_eq_u32 s3, 3"); C("s_cbranch_scc1 L_OB3")
    os_ = {}
    OSL = [0, 1, 2, 0, 1, 2, 0, 1]
    def o_load(s, i):
        def f():
            C.wait_vm_n(DQ - 1)
            h, r = s >> 2, s & 3
            off = (h*128 + (0 if own else r*32) + (i>>2)*16 + (i&3)) * 1152
            so = off // 4096 * 4096
            if own: C(f"s_add_u32 s{sSO}, s{sRO+r}, {so}")
            else: C(f"s_mov_b32 s{sSO}, {so}")
            os_[s, i] = C(f"buffer_load_dwordx3 {vr(WOS[OSL[s]]+4*i, 3)}, v{vWO}, {srd(sWO)}, s{sSO} offen offset:{off-so} {w2f}")
        return f
    def o_cons(s):
        it = [lambda: C.wait_vm(os_[s, 7])]
        for q in range(3):
            tb = vT + (q & 1) * 8
            it += perms(WOS[OSL[s]], q, tb)
            for k in range(8): it.append(f"v_accvgpr_write_b32 a{s*24+q*8+k}, v{tb+k}")
        return it
    for s in (0, 1):
        for i in range(8): o_load(s, i)()
    for s in range(6):
        mix(C, o_cons(s), [o_load(s+2, i) for i in range(8)])
    if frontn:
        for i in range(8): v_load(C, 3, i, 32, dyn=1)()
        mix(C, o_cons(6), [])
    else:
        mix(C, o_cons(6), [v_load(C, 3, i, 24, dyn=1) for i in range(8)])
    mix(C, o_cons(7), [])
    stamp_at(C, "obe")
    C(f"s_cmp_eq_u32 s{sSPL}, 0"); C("s_cbranch_scc1 L_OB_ret0"); C("s_branch L_OB_ret1")
    C.label("L_OB3")
    for i in range(8): v_load(C, 3, i, 63, dyn=1)()
    C(f"s_cmp_eq_u32 s{sSPL}, 0"); C("s_cbranch_scc1 L_OB_ret0"); C("s_branch L_OB_ret1")

    D = Asm()
    D.label("L_statpoll")
    D(f"s_mov_b32 s{sCNT}, {POLL_MAX}")
    D.label("L_statloop")
    for h in range(2): D(f"buffer_load_dwordx4 {vr(72+4*h)}, v1, {srd(sWS)}, s{sSTA} offen offset:{h*256} {ldf}")
    D("s_waitcnt vmcnt(0)")
    for c in stat_check(): D(c)
    D("s_cbranch_scc1 L_statok")
    D(f"s_sub_u32 s{sCNT}, s{sCNT}, 1"); D(f"s_cmp_lg_u32 s{sCNT}, 0"); D("s_cbranch_scc1 L_statloop")
    giveup(D, 0)

    far = "\n".join(FAR) + "\n"; FAR.clear()
    out = A.text() + far + B.text() + C.text() + D.text() + "L_codeend:\n" + "    s_nop 0\n" * 64
    out += f""".section .rodata,"a"
.p2align 6
.amdhsa_kernel {KNAME}
  .amdhsa_next_free_vgpr 512
  .amdhsa_next_free_sgpr 102
  .amdhsa_accum_offset 256
  .amdhsa_group_segment_fixed_size 0
  .amdhsa_kernarg_size 64
  .amdhsa_user_sgpr_count 2
  .amdhsa_user_sgpr_kernarg_segment_ptr 1
  .amdhsa_system_sgpr_workgroup_id_x 1
.end_amdhsa_kernel
"""
    return out

FAR = []
FAILDBG = False
def giveup(B, code):
    if FAILDBG:
        B("s_load_dwordx2 s[16:17], s[0:1], 48"); B("s_waitcnt lgkmcnt(0)")
        B(f"v_mov_b32 v1, {code*16}"); B("v_mov_b32 v2, 1")
        B("v_cmp_eq_u32 vcc, 0, v0"); B("s_and_saveexec_b64 s[56:57], vcc")
        B("global_atomic_add v1, v2, s[16:17]")
        B("v_mov_b32 v2, s2"); B("v_mov_b32 v3, s3"); B(f"v_mov_b32 v4, s{sE1}")
        B("global_store_dwordx3 v1, v[2:4], s[16:17] offset:4")
        B("s_waitcnt vmcnt(0)")
    B("s_endpgm")
def tail_addr():
    it = []
    a = it.append
    a("v_and_b32 v176, 15, v0"); a("v_lshrrev_b32 v177, 4, v0")
    a("v_mul_u32_u24 v178, 12288, v176"); a(f"v_lshl_add_u32 v{vPUB}, v177, 4, v178")
    a("v_mul_u32_u24 v178, 768, v177"); a(f"v_lshl_add_u32 v{vGAT}, v176, 4, v178")
    a(f"s_lshl_b32 s{sT0}, s{sB}, 1"); a(f"s_add_u32 s{sT0}, s{sT0}, s{sSPL}")
    a(f"s_mul_i32 s{sT0}, s{sT0}, 196608"); a(f"s_lshl_b32 s{sT1}, s3, 8"); a(f"s_add_u32 s{sT0}, s{sT0}, s{sT1}"); a(f"s_add_u32 s{sT0}, s{sT0}, {PY_OFF}")
    a(f"s_mul_i32 s{sT1}, s{sKVH}, 768"); a(f"s_add_u32 s{sPB}, s{sT0}, s{sT1}")
    a(f"s_mul_i32 s{sT1}, s{sKVH}, 12288"); a(f"s_add_u32 s{sGA}, s{sT0}, s{sT1}"); a(f"s_add_u32 s{sGA+1}, s{sGA}, 6144")
    a("v_cmp_eq_u32 vcc, 3, v177"); a("v_bfe_u32 v178, v0, 2, 2"); a("v_cndmask_b32 v177, v177, 1, vcc")
    a("v_mad_u32_u24 v178, v178, 3, v177")
    a("v_and_b32 v179, 3, v178"); a("v_mul_u32_u24 v179, 12, v179"); a("v_and_b32 v178, 12, v178"); a("v_add_u32 v179, v179, v178")
    a("v_and_b32 v178, 3, v0"); a(f"v_mad_u32_u24 v{vOUT}, v178, 48, v179")
    a(f"s_lshr_b32 s{sT0}, s{sPID}, 1"); a(f"s_mul_i32 s{sOB}, s{sT0}, 1152"); a(f"s_mul_i32 s{sT0}, s{sSPL}, 576"); a(f"s_add_u32 s{sOB}, s{sOB}, s{sT0}")
    a(f"s_mul_i32 s{sT0}, s3, 192"); a(f"s_add_u32 s{sOB}, s{sOB}, s{sT0}")
    a(f"s_lshl_b32 s{sT0}, s3, 10"); a(f"s_add_u32 s{sT0}, s{sT0}, {L_BX}"); a(f"v_add_u32 v{vBXW}, s{sT0}, v{vLIN}")
    for sg in range(4):
        a(f"s_add_u32 s{sT0}, s3, {sg}"); a(f"s_and_b32 s{sT0}, s{sT0}, 3"); a(f"s_mul_i32 s{sRO+sg}, s{sT0}, {32*1152}")
        if sg: a(f"s_lshl_b32 s{sT0}, s{sT0}, 10"); a(f"s_add_u32 s{sT0}, s{sT0}, {L_BX}"); a(f"v_add_u32 v{vBXR+sg-1}, s{sT0}, v{vLIN}")
    a(f"s_lshl_b32 s{sXOo}, s{sPID}, 14"); a(f"s_lshl_b32 s{sT0}, s3, 12"); a(f"s_add_u32 s{sXOo}, s{sXOo}, s{sT0}")
    a(f"s_xor_b32 s{sXOp}, s{sXOo}, {1<<14}")
    a(f"s_add_u32 s{sXOo}, s{sXOo}, {XO_OFF}"); a(f"s_add_u32 s{sXOp}, s{sXOp}, {XO_OFF}")
    for n in (sXL, sXG):
        a(f"s_mov_b32 s{n}, s{sWS}"); a(f"s_mov_b32 s{n+1}, s{sWS+1}"); a(f"s_mov_b32 s{n+3}, 0x20000")
    return it

def stat_check():
    return [f"v_xor_b32 v80, s{sE1}, v74", f"v_xor_b32 v81, s{sE1}, v75", f"v_xor_b32 v82, s{sE1}, v78", f"v_xor_b32 v83, s{sE1}, v79",
            "v_or_b32 v84, v81, v83", "v_and_b32 v84, 0x0fffffff, v84",
            "v_or3_b32 v80, v80, v84, v82", "v_cmp_eq_u32 vcc, 0, v80", "s_cmp_eq_u64 vcc, -1"]

def stat_scales(A, local):
    it = stat_check()
    def br():
        A("s_cbranch_scc0 L_statpoll")
        A.label("L_statok")
    it.append(br)
    it += [f"v_readfirstlane_b32 s{sT0}, v81", f"s_lshr_b32 s{sT0}, s{sT0}, 28", f"s_cmp_eq_u32 s{sT0}, s{sXCC}",
           f"s_cselect_b32 s{sLOC}, {1 if local else 0}, 0",
           f"s_cselect_b32 s{sXL+2}, {WS_USED if local else 0}, 0", f"s_cselect_b32 s{sXG+2}, {0 if local else WS_USED}, {WS_USED}"]
    for h in range(2):
        it += [f"v_max_f32 v{80+h}, v{vMX+h}, v{72+4*h}"]
    for h in range(2):
        it += [f"v_sub_f32 v{82+h}, v{vMX+h}, v{80+h}", f"v_sub_f32 v{84+h}, v{72+4*h}, v{80+h}"]
    for h in range(2):
        it += [f"v_exp_f32 v{82+h}, v{82+h}", f"v_exp_f32 v{84+h}, v{84+h}"]
    for h in range(2):
        it += [f"v_mul_f32 v{84+h}, v{84+h}, v{73+4*h}"]
    for h in range(2):
        it += [f"v_fma_f32 v{84+h}, v{82+h}, v{vWQ+h}, v{84+h}"]
    for h in range(2):
        it += [f"v_rcp_f32 v{84+h}, v{84+h}"]
    for h in range(2):
        it += [f"v_mul_f32 v{vWQ+h}, v{82+h}, v{84+h}"]
    return it

def poll(A, name, loads, tags, slp):
    A(f"s_mov_b32 s{sCNT}, {POLL_MAX}")
    A.label(name)
    for l in loads: A(l)
    A("s_waitcnt vmcnt(0)")
    A.vm_done = A.vm - 1
    for k, t in enumerate(tags): A(f"v_xor_b32 v{70+k}, s{sE1}, v{t}")
    A("v_or3_b32 v70, v70, v71, v72")
    if len(tags) == 4: A("v_or_b32 v70, v70, v73")
    A("v_cmp_eq_u32 vcc, 0, v70"); A("s_cmp_eq_u64 vcc, -1")
    A(f"s_cbranch_scc1 {name}_ok")
    if slp: A(f"s_sleep {slp}")
    A(f"s_sub_u32 s{sCNT}, s{sCNT}, 1"); A(f"s_cmp_lg_u32 s{sCNT}, 0"); A(f"s_cbranch_scc1 {name}")
    giveup(A, 1 if name == "L_xp" else 2)
    A.label(f"{name}_ok")

def tail(A, pubf, ldf, stamp_at, sleepx, sleepg, outf, own, pipe, brx):
    XG = 100
    def xreg(k): return XG + (k // 3) * 4 + k % 3
    sent = 0
    for x in range(4):
        b = vACC + x*4
        for r in range(4): A(f"v_mul_f32 v{b+r}, v{b+r}, v{vWQ+(x>>1)}")
        for p in range(2): A(f"v_cvt_pk_bf16_f32 v{xreg(2*x+p)}, v{b+2*p}, v{b+2*p+1}")
        while not brx and sent < 3 and min(3*sent + 2, 7) <= 2*x + 1:
            A(f"buffer_store_dwordx4 {vr(XG+sent*4)}, v{vLIN}, {srd(sXL)}, s{sXOo} offen offset:{sent*1024}")
            A(f"buffer_store_dwordx4 {vr(XG+sent*4)}, v{vLIN}, {srd(sXG)}, s{sXOo} offen offset:{sent*1024} {pubf}")
            sent += 1
    if brx:
        A.raw(f"    s_cmp_eq_u32 s{sLOC}, 0"); A.raw("    s_cbranch_scc1 L_xfar")
        for k in range(3): A(f"buffer_store_dwordx4 {vr(XG+k*4)}, v{vLIN}, {srd(sWS)}, s{sXOo} offen offset:{k*1024}")
        A.raw("L_xsent:")
        FAR.append("L_xfar:")
        for k in range(3): FAR.append(f"    buffer_store_dwordx4 {vr(XG+k*4)}, v{vLIN}, {srd(sWS)}, s{sXOo} offen offset:{k*1024} {pubf}")
        FAR.append("    s_branch L_xsent")
    stamp_at(A, "xst")
    poll(A, "L_xp", [f"buffer_load_dwordx4 {vr(112+4*x)}, v{vLIN}, {srd(sWS)}, s{sXOp} offen offset:{x*1024} {ldf}" for x in range(3)], [115, 119, 123], sleepx)
    stamp_at(A, "cntx"); stamp_at(A, "xok")
    def mm(j, s, breg, first):
        d = vr(168 + 4*j)
        return f"{MF} {d}, {ar(s*24+j*4)}, {vr(breg)}, {0 if first else d}"
    def fin(h):
        it = []
        for p in range(4):
            k = h*4 + p; src = 112 + (k // 3) * 4 + k % 3
            it += [f"v_lshlrev_b32 v{16+2*k}, 16, v{src}", f"v_and_b32 v{17+2*k}, 0xffff0000, v{src}"]
        for e in range(8): it.append(f"v_add_f32 v{16+h*8+e}, v{16+h*8+e}, v{vACC+h*8+e}")
        for p in range(4): it.append(f"v_cvt_pk_bf16_f32 v{128+h*4+p}, v{16+h*8+2*p}, v{17+h*8+2*p}")
        it.append(f"ds_write_b128 v{vBXW}, {vr(128+h*4)} offset:{h*4096}")
        return it
    for c in fin(0): A(c)
    f1 = fin(1)
    if own:
        m0 = [mm(j, 0, 128, True) for j in range(6)]
        for k, c in enumerate(f1):
            if k % 3 == 2 and m0: A(m0.pop(0))
            A(c)
        for c in m0: A(c)
    else:
        for c in f1: A(c)
    A.wait_lg_all(); A("s_barrier")
    A("s_cmp_eq_u32 s3, 3"); A.raw("    s_cbranch_scc1 L_fin")
    stamp_at(A, "bxb")
    PG = 192
    def preg(D): return PG + (D // 3) * 4 + D % 3
    def pack(jp):
        for r in range(4): A(f"v_cvt_pk_bf16_f32 v{preg(jp*4+r)}, v{168+8*jp+r}, v{172+8*jp+r}")
    def pub(gm): A(f"buffer_store_dwordx4 {vr(PG+gm*4)}, v{vPUB}, {srd(sWS)}, s{sPB} offen offset:{gm*64} {pubf}")
    if own:
        steps = [1, 5, 2, 6, 3, 7]
        bs = {s: A(f"ds_read_b128 {vr(136+4*s)}, v{vBXR+(s&3)-1} offset:{(s>>2)*4096}") for s in steps}
        for j in range(6): A(mm(j, 4, 132, False))
    else:
        steps = list(range(8))
        bs = {s: A(f"ds_read_b128 {vr(136+4*s)}, v{vPR} offset:{s*1024}") for s in steps}
    for k in range(4): A(f"v_mov_b32 v{PG+3+4*k}, s{sE1}")
    for jp in range(3):
        for n, s in enumerate(steps):
            A.wait_lg(bs[s])
            for j in (2*jp, 2*jp+1): A(mm(j, s, 136+4*s, (not own) and s == 0))
            if jp and n == 4:
                pack(jp - 1); pub(jp - 1)
    pack(2); pub(2); pub(3)
    stamp_at(A, "pub")
    def gl(GB): return [f"buffer_load_dwordx4 {vr(GB+4*k)}, v{vGAT}, {srd(sWS)}, s{sGA+(k>>1)} offen offset:{(k&1)*3072} {ldf}" for k in range(4)]
    def unpack(GB):
        for k in range(4):
            for d in range(3):
                A(f"v_lshlrev_b32 v{16+8*k+d}, 16, v{GB+4*k+d}"); A(f"v_and_b32 v{20+8*k+d}, 0xffff0000, v{GB+4*k+d}")
    def chk(GB, target):
        for k in range(4): A(f"v_xor_b32 v{70+k}, s{sE1}, v{GB+3+4*k}")
        A("v_or3_b32 v70, v70, v71, v72"); A("v_or_b32 v70, v70, v73")
        A("v_cmp_eq_u32 vcc, 0, v70"); A("s_cmp_eq_u64 vcc, -1")
        A.raw(f"    s_cbranch_scc1 {target}")
    if pipe:
        GA, GB = 208, 224
        A(f"s_mov_b32 s{sCNT}, {POLL_MAX}")
        for l in gl(GA): A(l)
        if sleepg: A(f"s_sleep {sleepg}")
        A.label("L_gp")
        for l in gl(GB): A(l)
        A("s_waitcnt vmcnt(4)"); chk(GA, "L_gp_okA")
        for l in gl(GA): A(l)
        A("s_waitcnt vmcnt(4)"); chk(GB, "L_gp_okB")
        A(f"s_sub_u32 s{sCNT}, s{sCNT}, 1"); A(f"s_cmp_lg_u32 s{sCNT}, 0"); A("s_cbranch_scc1 L_gp")
        A("s_endpgm")
        A.label("L_gp_okB"); unpack(GB); A.raw("    s_branch L_gsum")
        A.label("L_gp_okA"); unpack(GA)
        A.raw("L_gsum:")
        stamp_at(A, "cntg"); stamp_at(A, "gok")
    else:
        GB = 208
        poll(A, "L_gp", gl(GB), [GB+3+4*k for k in range(4)], sleepg)
        stamp_at(A, "cntg"); stamp_at(A, "gok")
        unpack(GB)
    for e in (0, 1, 2, 4, 5, 6):
        A(f"v_add_f32 v{16+e}, v{16+e}, v{24+e}"); A(f"v_add_f32 v{32+e}, v{32+e}, v{40+e}")
    for e in (1, 5, 0, 4, 2, 6): A(f"v_add_f32 v{16+e}, v{16+e}, v{32+e}")
    A("v_mov_b32 v19, v17"); A("v_mov_b32 v23, v21")
    for (a_, b_) in ((16, 18), (20, 22), (17, 19), (21, 23)): A(f"v_permlane32_swap_b32 v{a_}, v{b_}")
    for (a_, b_) in ((16, 18), (20, 22), (17, 19), (21, 23)): A(f"v_add_f32 v{a_}, v{a_}, v{b_}")
    A("v_permlane16_swap_b32 v16, v17"); A("v_permlane16_swap_b32 v20, v21")
    A("v_add_f32 v16, v16, v17"); A("v_add_f32 v20, v20, v21")
    A("v_cvt_pk_bf16_f32 v16, v16, v20")
    A(f"buffer_store_dword v16, v{vOUT}, {srd(sOUT)}, s{sOB} offen {outf}")
    A(f"s_or_b32 s{sT0}, s{sKVH}, s{sSPL}"); A(f"s_or_b32 s{sT0}, s{sT0}, s3"); A(f"s_cmp_lg_u32 s{sT0}, 0"); A("s_cbranch_scc1 L_noep")
    A(f"v_mov_b32 v1, s{sE1}"); A(f"s_lshl_b32 s{sT0}, s{sB}, 8"); A("v_mov_b32 v2, 12")
    A(f"buffer_store_dword v1, v2, {srd(sWS)}, s{sT0} offen")
    A.label("L_noep")
    stamp_at(A, "end")

if __name__ == "__main__":
    import json
    kw = json.loads(sys.argv[2]) if len(sys.argv) > 2 else {}
    open(sys.argv[1], "w").write(gen(**kw))
```

```python
import sys, math, struct
from asmlib import Asm

KNAME = "standalone__sliding_block_cached__sampling_kernel"
HDR = open('standalone__sliding_block_cached__sampling.s.ref').read().split('; Override')[0]

DOC = """;
"""
EP_OFF = 0
XS_OFF = 0x10000
BD_OFF = 0x8000
XO_OFF = 0x100000
PY_OFF = 0x800000
WS_USED = 0x1000000
STAMP_OFF = 512 << 20
NS = 4
L_KW = NS * 8192
L_QR = 4 * L_KW
L_PX = L_QR
L_BX = L_QR
L_MX = L_QR + 24576
L_LX = L_MX + 512
L_XI = L_QR
LDS_BYTES = L_QR + 32768
POLL_MAX = 200000

def f32(x): return struct.unpack('<I', struct.pack('<f', x))[0]
SCALE = f32(1.4426950408889634 / math.sqrt(128.0))

sK, sV, sWQ, sWO, sX, sWS, sOUT, sWP, sPUB = 20, 24, 28, 32, 36, 40, 44, 68, 72
sXL, sXG = 28, 36
sSELL, sSELH, sSC, sTAG, sTAB, sSO, sLK, sKVH, sSPL, sB = 48, 49, 50, 51, 52, 61, 62, 63, 64, 65
sE1, sMASK = 66, 67
sPID, sXOo, sXOp, sNX, sXCC, sLVL, sCNT, sT0, sT1, sSLOT = 76, 77, 78, 79, 80, 81, 82, 83, 84, 85
sSTAMP = 86
sNS, sSTA, sNS2 = 53, 54, 55
sBS = 72
sBO, sBT = 9, 10
vBD, vBA, vBV = 252, 253, 254
sPB, sGA, sOB = 4, 6, 8
def srd(n): return f"s[{n}:{n+3}]"
vKA, vKR, vLIN, vWQ, vX, vWO, vMX = 2, 6, 10, 11, 12, 13, 14
vQ = 16
vS = 48
vT = 176
vVT = 16
vPM = 192
vACC = 224
vVA, vVR, vPW, vPR = 2, 6, 4, 5
vXO_ = 48
vQA = 84
WQR = [192, 224, 116]
WOS = [112, 144, 16]
vPUB, vOUT, vGAT, vBXW, vBXR = 240, 241, 242, 243, 244
sRO = 56
sLOC = 60

def vr(b, n=4): return f"v[{b}:{b+n-1}]"
def ar(b, n=4): return f"a[{b}:{b+n-1}]"
MF = "v_mfma_f32_16x16x32_bf16"

def cost(it):
    if callable(it): return 1
    if it.startswith('v_mfma'): return 12
    if it.startswith('v_exp') or it.startswith('v_rcp'): return 8
    return 4

def mix(A, comp, loads):
    tot = sum(cost(c) for c in comp)
    n = len(loads); k = 0; acc = 0
    for c in comp:
        while k < n and acc >= tot * k / max(n, 1):
            loads[k](); k += 1
        if callable(c): c()
        else: A(c)
        acc += cost(c)
    while k < n:
        loads[k](); k += 1

def perms(R, q, tb):
    it = []
    for p in range(4): it.append(f"v_perm_b32 v{tb+p}, v{R+(2*p+1)*4+q}, v{R+(2*p)*4+q}, s{sSELL}")
    for p in range(4): it.append(f"v_perm_b32 v{tb+4+p}, v{R+(2*p+1)*4+q}, v{R+(2*p)*4+q}, s{sSELH}")
    return it

def gen(DK=(8,8,8,8,8,8,5,5), DV=(5,5,5,5,10,10,10,16), DQ=16, stamps=False, kf="nt", vf="nt", w1f="", w2f="", pubf="sc1", ldf="sc1",
        codepf=True, wsbase=0, pretouch=1, ptf="", local=True, promote=False, sleepx=0, sleepg=0, tlbwarm=True, noOB=False, noQB=False, exp="", outtouch=True, outf="", kfirst=True, pt="x", DLO=None, lomask=0x55, DMID=None, midmask=0, siteQ=(0, 4), siteO=(4, 7), front7=8, q2=True, DQ2=8, rstage=2, own=True, pipe=False, brx=True, k0early=False, pfirst=True, oswap=0, prer=(None, 5), frontn=False, earlyscl=False, ptlate="p", ptlj=6, frontV=(7,), frontK=(), xnt=False, xpre=None, xprej=6, tlb0=True, qbar=False, fb=(), fbT=(10, 22), fbat=6, fbf="sc1", ptx=0, ptxw="xp", faildbg=False, pollmax=2000000):
    global POLL_MAX, FAILDBG
    POLL_MAX = pollmax; FAILDBG = faildbg
    siteQ = tuple(siteQ); siteO = tuple(siteO)
    if isinstance(DK, int): DK = (DK,) * 8
    if isinstance(DV, int): DV = (DV,) * 8
    if isinstance(DLO, int): DLO = (DLO,) * 16
    if isinstance(DMID, int): DMID = (DMID,) * 16
    dr = []
    if "nobar" in exp: dr += ["s_barrier"]
    if "nomath" in exp: dr += ["v_mfma", "v_exp", "v_fma", "v_cvt", "v_perm", "v_max3", "v_accvgpr_write"]
    if "nods" in exp: dr += ["ds_"]
    Asm.drop = tuple(dr)
    A = Asm()
    def stamp_at(B, name):
        if not stamps or name not in stamps: return
        i = stamps.index(name) + 1
        if name.startswith("cnt") and not name.startswith("cnt_clk"):
            B(f"s_sub_u32 s{sSTAMP+2*i}, {POLL_MAX}, s{sCNT}"); B(f"s_mov_b32 s{sSTAMP+2*i+1}, 0")
            return
        B.wait_lg_all()
        B(f"{'s_memtime' if name.startswith('cnt_clk') else 's_memrealtime'} s[{sSTAMP+2*i}:{sSTAMP+2*i+1}]")
        B.wait_lg_all()
    def run(comp, B=A):
        for c in comp:
            if callable(c): c()
            else: B(c)

    A.raw(HDR.rstrip())
    A.raw(f"; @launch grid=(256,1,1) block=(256,1,1) lds={LDS_BYTES}")
    A.raw('.amdgcn_target "amdgcn-amd-amdhsa--gfx950"')
    A.raw(DOC.rstrip())
    A.raw(".text"); A.raw(f".globl {KNAME}"); A.raw(".p2align 8"); A.raw(f".type {KNAME},@function"); A.raw(f"{KNAME}:")
    A("s_cmp_ge_u32 s2, 256"); A("s_cbranch_scc1 L_end")
    A("s_load_dwordx8 s[4:11], s[0:1], 0")
    A("s_load_dwordx8 s[12:19], s[0:1], 32")
    if stamps: A(f"s_memrealtime s[{sSTAMP}:{sSTAMP+1}]")
    A("s_getpc_b64 s[100:101]")
    A.raw("L_pc:")
    if codepf:
        A(f"s_and_b32 s{sT1}, s2, 0xf8"); A(f"v_add_lshl_u32 v16, v0, s{sT1}, 7")
        A("v_min_u32 v16, L_codeend-L_pc-4, v16")
        A("v_cmp_gt_u32 vcc, 8, v0"); A("s_and_saveexec_b64 s[56:57], vcc"); A.raw("    s_cbranch_execz L_nocpf")
        A.raw("    global_load_dword a255, v16, s[100:101]")
        A.raw("L_nocpf:")
        A("s_mov_b64 exec, s[56:57]")
    A("v_lshrrev_b32 v1, 6, v0")
    A("v_mov_b32 v18, v0")
    A("v_readfirstlane_b32 s3, v1")
    A("v_and_b32 v0, 63, v0")
    A(f"s_and_b32 s{sTAB}, s2, 7"); A(f"s_lshr_b32 s{sSLOT}, s2, 3")
    A(f"s_and_b32 s{sT0}, s{sSLOT}, 1"); A(f"s_lshl_b32 s61, s{sTAB}, 1"); A(f"s_add_u32 s{sKVH}, s61, s{sT0}")
    A(f"s_lshr_b32 s{sSPL}, s{sSLOT}, 1"); A(f"s_and_b32 s{sSPL}, s{sSPL}, 1")
    A(f"s_lshr_b32 s{sB}, s{sSLOT}, 2")
    A("v_lshrrev_b32 v20, 4, v0")
    A("v_and_b32 v21, 15, v0")
    A(f"v_lshlrev_b32 v{vLIN}, 4, v0")
    A("v_lshlrev_b32 v22, 2, v20"); A("v_xor_b32 v22, v21, v22"); A("v_lshlrev_b32 v22, 4, v22"); A(f"v_lshl_add_u32 v{vKA}, v20, 8, v22")
    for i in range(1, 4): A(f"v_xor_b32 v{vKA+i}, {i<<4}, v{vKA}")
    A(f"s_mul_i32 s{sLK}, s3, {L_KW}")
    A(f"s_lshl_b32 s{sPID}, s{sB}, 4"); A(f"s_add_u32 s{sPID}, s{sPID}, s{sKVH}")
    A(f"s_lshl_b32 s{sT0}, s{sPID}, 21"); A(f"s_add_u32 s{sT0}, s{sT0}, {6144*256}")
    A(f"s_lshl_b32 s{sT1}, s{sSPL}, 18"); A(f"s_add_u32 s{sT0}, s{sT0}, s{sT1}")
    A(f"s_lshl_b32 s{sT1}, s3, 16"); A(f"s_add_u32 s{sT0}, s{sT0}, s{sT1}")
    A(f"s_lshl_b32 s{sPID}, s{sPID}, 1"); A(f"s_add_u32 s{sPID}, s{sPID}, s{sSPL}")
    A("v_mov_b32 v23, 0x7ffffff0"); A("v_cmp_gt_u32 vcc, 144, v18")
    A("v_lshrrev_b32 v22, 3, v18"); A(f"s_mul_i32 s{sT1}, s{sSLOT}, 18"); A(f"v_add_u32 v22, s{sT1}, v22"); A("v_lshlrev_b32 v22, 13, v22")
    A("v_and_b32 v24, 7, v18"); A("v_lshl_add_u32 v22, v24, 7, v22"); A("v_cndmask_b32 v16, v23, v22, vcc")
    A("v_lshlrev_b32 v22, 7, v18"); A("v_cndmask_b32 v17, v23, v22, vcc")
    A("s_waitcnt lgkmcnt(0)")
    def mksrd(n, p, off, size):
        if off is None or off == 0:
            A(f"s_mov_b32 s{n}, s{p}"); A(f"s_mov_b32 s{n+1}, s{p+1}")
        else:
            A(f"s_add_u32 s{n}, s{p}, {off}"); A(f"s_addc_u32 s{n+1}, s{p+1}, 0")
        A(f"s_mov_b32 s{n+2}, {size}"); A(f"s_mov_b32 s{n+3}, 0x20000")
    mksrd(sK, 6, f"s{sT0}", 65536)
    nlab = [0]
    extra = set()
    def adj(B, D):
        n = 0; cnt = 0
        while cnt < D - 1 or (B is A and (B.vm - 1 - n) in extra):
            if not (B is A and (B.vm - 1 - n) in extra): cnt += 1
            n += 1
        return min(n, 63)
    def throttle(B, D, idx):
        B.wait_vm_n(adj(B, D))
        if idx is None or DLO is None: return
        lo = DLO[idx]; mid = DMID[idx] if DMID else D
        if lo >= D and mid >= D: return
        nlab[0] += 1
        if mid < D:
            B.raw(f"    s_cmp_eq_u32 s{sLVL}, 0"); B.raw(f"    s_cbranch_scc1 L_t{nlab[0]}")
            B.raw(f"    s_waitcnt vmcnt({adj(B, mid)})")
        if lo < mid:
            B.raw(f"    s_cmp_lt_u32 s{sLVL}, 2"); B.raw(f"    s_cbranch_scc1 L_t{nlab[0]}")
            B.raw(f"    s_waitcnt vmcnt({adj(B, lo)})")
        B.raw(f"L_t{nlab[0]}:")
    kseq = {}
    def k_load(B, blk, i, D, dyn=False):
        def f():
            throttle(B, D, None if dyn else blk)
            if i % 4 == 0:
                if dyn: B(f"s_add_u32 s{sSO}, s{sNX}, {(dyn-1)*8192 + (i//4)*4096}")
                else: B(f"s_mov_b32 s{sSO}, {blk*8192 + (i//4)*4096}")
                if dyn: B(f"s_add_u32 m0, s{sNS if dyn == 1 else sNS2}, {(i//4)*4096}")
                else: B(f"s_add_u32 m0, s{sLK}, {(blk%NS)*8192 + (i//4)*4096}")
            q = B(f"buffer_load_dwordx4 v{vKA+(i&3)}, {srd(sK)}, s{sSO} offen offset:{(i&3)*1024} {kf} lds")
            if not dyn: kseq[blk, i] = q
        return f
    def k_loads(blk): return with_fb([k_load(A, blk, i, DK[blk]) for i in range(8)], blk)
    k0site = 0 in siteQ
    nfirst = 0 if k0site else (8 if kfirst is True else int(kfirst))
    for i in range(nfirst): k_load(A, 0, i, 63)()
    k0e = k0site and k0early
    def ppf():
        mksrd(sWP, 10, None, 576*8192)
        A(f"s_lshl_b32 s{sT1}, s{sTAB}, 10")
        A(f"buffer_load_dword a255, v16, {srd(sWP)}, s{sT1} offen {w1f}")
    if pfirst: ppf()
    if k0e:
        A(f"s_cmp_eq_u32 s{sSPL}, 0"); A.raw("    s_cbranch_scc1 L_nok0")
        sv = A.vm
        for i in range(8): k_load(A, 0, i, 63)()
        A.vm = sv
        A.raw("L_nok0:")
    if not pfirst: ppf()
    mksrd(sV, 8, f"s{sT0}", 65536)
    A(f"s_mul_i32 s{sT0}, s{sB}, 18432")
    mksrd(sX, 4, f"s{sT0}", 18432)
    A(f"s_lshl_b32 s{sT1}, s3, 10")
    for k in range(5):
        A(f"s_add_u32 m0, s{sT1}, {L_XI + k*4096}"); A(f"s_add_u32 s{sSO}, s{sT1}, {k*4096}")
        A(f"buffer_load_dwordx4 v{vLIN}, {srd(sX)}, s{sSO} offen lds")
    A(f"s_lshl_b32 s{sT1}, s{sB}, 8"); A(f"s_add_u32 s{sT1}, s{sT1}, {wsbase + 12}"); A(f"s_load_dword s{sE1}, s[18:19], s{sT1}")
    if not k0site:
        for i in range(nfirst, 8): k_load(A, 0, i, 63)()
    A("v_accvgpr_write_b32 a254, v17")
    if tlb0:
        A("s_mov_b64 exec, 1")
        A("s_cmp_eq_u32 s3, 0"); A.raw("    s_cbranch_scc0 L_tl1")
        A("v_mov_b32 v16, 0")
        sv = A.vm
        A(f"buffer_load_dword a255, v16, {srd(sK)}, 0 offen {kf}")
        A(f"buffer_load_dword a255, v16, {srd(sV)}, 0 offen {vf}")
        A.raw("L_tl1:")
        A("s_cmp_eq_u32 s3, 1"); A.raw("    s_cbranch_scc0 L_tl2")
        A(f"s_lshl_b32 s{sT0}, s{sPID}, 14"); A(f"s_add_u32 s{sT0}, s{sT0}, {XO_OFF + wsbase}"); A(f"v_mov_b32 v16, s{sT0}")
        A("global_load_dword a255, v16, s[18:19]")
        A(f"s_lshl_b32 s{sT0}, s{sB}, 1"); A(f"s_add_u32 s{sT0}, s{sT0}, s{sSPL}"); A(f"s_mul_i32 s{sT0}, s{sT0}, 196608")
        A(f"s_mul_i32 s{sT1}, s{sKVH}, 768"); A(f"s_add_u32 s{sT0}, s{sT0}, s{sT1}"); A(f"s_add_u32 s{sT0}, s{sT0}, {PY_OFF + wsbase}"); A(f"v_mov_b32 v16, s{sT0}")
        A("global_load_dword a255, v16, s[18:19]")
        A(f"s_lshl_b32 s{sT0}, s{sPID}, 9"); A(f"s_add_u32 s{sT0}, s{sT0}, {XS_OFF + wsbase}"); A(f"v_mov_b32 v16, s{sT0}")
        A("global_load_dword a255, v16, s[18:19]")
        A.raw("L_tl2:")
        A("s_cmp_eq_u32 s3, 2"); A.raw("    s_cbranch_scc0 L_tl3")
        A(f"s_mul_i32 s{sT0}, s{sKVH}, {256*1152}"); A(f"v_mov_b32 v16, s{sT0}")
        A("global_load_dword a255, v16, s[12:13]")
        A(f"s_add_u32 s{sT0}, s{sT0}, {255*1152}"); A(f"v_mov_b32 v16, s{sT0}")
        A("global_load_dword a255, v16, s[12:13]")
        A(f"s_mul_i32 s{sT0}, s{sPID}, 576"); A(f"v_mov_b32 v16, s{sT0}")
        A("global_load_dword a255, v16, s[14:15]")
        A.raw("L_tl3:")
        A.vm = sv
        A("s_mov_b64 exec, -1")
    def late_touch():
        A("v_accvgpr_read_b32 v1, a254")
        A(f"s_lshl_b32 s{sT1}, s{sTAB}, 5"); A(f"s_add_u32 s{sT1}, s{sT1}, s{sSLOT}"); A(f"s_mul_i32 s{sT1}, s{sT1}, {144*128}")
        A(f"buffer_load_dword a255, v1, {srd(sWP)}, s{sT1} offen {w1f}")
        if tlbwarm and not tlb0:
            A(f"v_mov_b32 v{vT}, 0")
            A(f"buffer_load_dword a255, v{vT}, {srd(sV)}, 0 offen {vf}")
        if outtouch:
            A(f"s_mul_i32 s{sT1}, s{sPID}, 576"); A(f"s_lshl_b32 s{sT0}, s3, 13"); A(f"s_add_u32 s{sT1}, s{sT1}, s{sT0}")
            A(f"v_lshlrev_b32 v{vT+1}, 7, v0"); A("v_cmp_gt_u32 vcc, 5, v0"); A(f"v_mov_b32 v{vT+2}, 0x7ffffff0")
            A("s_cmp_eq_u32 s3, 0"); A("s_cselect_b64 vcc, vcc, 0")
            A(f"v_cndmask_b32 v{vT+1}, v{vT+2}, v{vT+1}, vcc")
            A(f"buffer_load_dword a255, v{vT+1}, {srd(sOUT)}, s{sT1} offen")
    if stamps:
        A(f"s_lshl_b32 s{sT1}, s2, 8"); A(f"s_add_u32 s{sT1}, s{sT1}, {STAMP_OFF}")
        A(f"s_add_u32 s16, s18, s{sT1}"); A("s_addc_u32 s17, s19, 0")
        A("v_and_b32 v17, 128, v18")
        A("global_load_dword a255, v17, s[16:17]")
    A(f"s_and_b32 s{sT0}, s3, 1"); A(f"s_lshl_b32 s{sT1}, s{sKVH}, 1"); A(f"s_add_u32 s{sT0}, s{sT0}, s{sT1}"); A(f"s_lshl_b32 s{sT0}, s{sT0}, 8")
    A(f"s_lshr_b32 s{sT1}, s3, 1"); A(f"s_mul_i32 s61, s{sT1}, {288*8192}"); A(f"s_add_u32 s{sT0}, s{sT0}, s61")
    mksrd(sWQ, 10, f"s{sT0}", 287*8192+256)
    A("v_lshlrev_b32 v22, 4, v21"); A(f"v_lshl_add_u32 v{vWQ}, v20, 16, v22")
    A(f"s_mul_i32 s{sT1}, s{sT1}, 576"); A(f"s_add_u32 s{sT1}, s{sT1}, {L_XI}")
    A("v_mul_u32_u24 v22, 1152, v21"); A("v_lshl_add_u32 v22, v20, 4, v22"); A(f"v_add_u32 v{vX}, s{sT1}, v22")
    A(f"s_mov_b32 s{sSELL}, 0x05040100"); A(f"s_mov_b32 s{sSELH}, 0x07060302")
    if noQB: A(f"s_mov_b32 s{sWQ+2}, 0")
    A(f"s_getreg_b32 s{sXCC}, hwreg(HW_REG_XCC_ID, 0, 4)")
    if fb:
        A(f"s_mov_b32 s{sLVL}, 1")
    elif DLO is not None:
        A(f"s_lshr_b32 s{sT0}, {lomask}, s{sXCC}"); A(f"s_and_b32 s{sT0}, s{sT0}, 1"); A(f"s_lshl_b32 s{sLVL}, s{sT0}, 1")
        A(f"s_lshr_b32 s{sT0}, {midmask}, s{sXCC}"); A(f"s_and_b32 s{sT0}, s{sT0}, 1"); A(f"s_or_b32 s{sLVL}, s{sLVL}, s{sT0}")
    def late_setup():
        mksrd(sOUT, 14, None, 8*16*576*2)
        mksrd(sWP, 12, None, 4096*1152)
        A(f"s_mul_i32 s{sT0}, s{sKVH}, {256*1152}")
        A(f"s_mul_i32 s{sT1}, s{sSPL}, 576"); A(f"s_add_u32 s{sT0}, s{sT0}, s{sT1}")
        A(f"s_mul_i32 s{sT1}, s3, 192"); A(f"s_add_u32 s{sT0}, s{sT0}, s{sT1}")
        mksrd(sWO, 12, f"s{sT0}", 255*1152+192)
        mksrd(sWS, 18, wsbase, WS_USED)
        A("s_cmp_eq_u32 s3, 3"); A(f"s_cselect_b32 s{sWO+2}, 0, s{sWO+2}")
        if noOB: A(f"s_mov_b32 s{sWO+2}, 0")
        A(f"s_mov_b32 s{sSC}, {SCALE:#x}")
        g_, c_, t2, t3 = vT, vT+1, vT+2, vT+3
        A(f"v_lshrrev_b32 v{g_}, 4, v0"); A(f"v_and_b32 v{c_}, 15, v0")
        A(f"v_mul_u32_u24 v{t2}, 4608, v{g_}"); A(f"v_mul_u32_u24 v{t3}, 12, v{c_}"); A(f"v_add_u32 v{vWO}, v{t2}, v{t3}")
        A(f"v_and_b32 v{t2}, 3, v{c_}"); A(f"v_lshlrev_b32 v{t2}, 2, v{t2}"); A(f"v_lshrrev_b32 v{t3}, 2, v{c_}"); A(f"v_add_u32 v{t2}, v{t2}, v{t3}")
        A(f"v_lshlrev_b32 v{t3}, 2, v{g_}"); A(f"v_xor_b32 v{t3}, v{t3}, v{t2}"); A(f"v_lshlrev_b32 v{t3}, 4, v{t3}"); A(f"v_lshl_add_u32 v{t3}, v{c_}, 8, v{t3}")
        A(f"v_add_u32 v{vKR}, s{sLK}, v{t3}")
        for s in range(1, 4): A(f"v_xor_b32 v{vKR+s}, {s<<4}, v{vKR}")
        A(f"v_mov_b32 v{vMX}, 0xff800000"); A(f"v_mov_b32 v{vMX+1}, 0xff800000")
    if rstage < 0 or not k0e:
        late_setup()
        if rstage < 0: late_touch()

    mvseq = {}
    def k_move(blk):
        it = [lambda: A.wait_vm(kseq[blk, 7])]
        for t in range(2):
            for s in range(4):
                def f(t=t, s=s):
                    mvseq[blk] = A(f"ds_read_b128 {ar(blk*32+t*16+s*4)}, v{vKR+s} offset:{(blk%NS)*8192+t*4096}")
                it.append(f)
        return it
    def qk(blk):
        it = [lambda: A.wait_lg(mvseq[blk])]
        for s in range(4):
            for t in range(2):
                for h in range(2):
                    d = vr(vS + blk*16 + h*8 + t*4)
                    it.append(f"{MF} {d}, {ar(blk*32+t*16+s*4)}, {vr(vQ+h*16+s*4)}, {d if s else 0}")
        return it
    def rmax(blk):
        it = []
        for k in range(4):
            for h in range(2):
                b = vS + blk*16 + h*8 + 2*k
                it.append(f"v_max3_f32 v{vMX+h}, v{vMX+h}, v{b}, v{b+1}")
        return it
    def site(name, which, blk, loads, blk2=None):
        if blk or name != "QB": A.wait_lg_all()
        A(f"s_mov_b32 s{sNX}, {blk*8192}")
        A(f"s_add_u32 s{sNS}, s{sLK}, {(blk%NS)*8192}")
        if blk2 is not None: A(f"s_add_u32 s{sNS2}, s{sLK}, {(blk2%NS)*8192}")
        A(f"s_cmp_eq_u32 s{sSPL}, {which}")
        A(f"s_cbranch_scc1 L_{name}")
        for f in loads: f()
        A.vm_done = min(A.vm_done, A.vm - 1 - len(loads))
        A.label(f"L_{name}_ret{which}")
    def do_pretouch(pt=pt):
        A(f"s_lshl_b32 s{sT0}, s{sPID}, 14"); A(f"s_lshl_b32 s{sT1}, s3, 12"); A(f"s_add_u32 s{sT0}, s{sT0}, s{sT1}"); A(f"s_add_u32 s{sT0}, s{sT0}, {XO_OFF}")
        A(f"v_lshl_add_u32 v{vT}, v0, 7, s{sT0}")
        A(f"s_mul_i32 s{sT0}, s3, 24"); A(f"s_sub_u32 s{sT0}, s{sT0}, 24"); A(f"v_add_u32 v{vT+1}, s{sT0}, v0")
        A(f"v_mul_u32_u24 v{vT+2}, 10923, v{vT+1}"); A(f"v_lshrrev_b32 v{vT+2}, 16, v{vT+2}")
        A(f"v_mul_u32_u24 v{vT+2}, {12288-768}, v{vT+2}"); A(f"v_lshl_add_u32 v{vT+2}, v{vT+1}, 7, v{vT+2}")
        A(f"s_lshl_b32 s{sT0}, s{sB}, 1"); A(f"s_add_u32 s{sT0}, s{sT0}, s{sSPL}"); A(f"s_mul_i32 s{sT0}, s{sT0}, 196608")
        A(f"s_mul_i32 s{sT1}, s{sKVH}, 768"); A(f"s_add_u32 s{sT0}, s{sT0}, s{sT1}"); A(f"s_add_u32 s{sT0}, s{sT0}, {PY_OFF}")
        A(f"v_add_u32 v{vT+2}, s{sT0}, v{vT+2}")
        A(f"v_cmp_gt_u32 vcc, 24, v0"); A(f"v_mov_b32 v{vT+3}, 0x7ffffff0"); A(f"v_cndmask_b32 v{vT}, v{vT+2}, v{vT}, vcc")
        A(f"v_cmp_gt_u32 vcc, {48 if 'p' in pt else 24}, v0"); A(f"v_cndmask_b32 v{vT}, v{vT+3}, v{vT}, vcc")
        if 'x' not in pt:
            A(f"v_cmp_lt_u32 vcc, 23, v0"); A(f"v_cndmask_b32 v{vT}, v{vT+3}, v{vT}, vcc")
        if not ptx:
            A(f"buffer_load_dword a255, v{vT}, {srd(sWS)}, 0 offen {ptf}")
        else:
            A(f"v_mov_b32 v{vT+1}, {ptx*1536 if 'p' in ptxw else 0x40000000}"); A(f"v_mov_b32 v{vT+2}, {ptx << 16 if 'x' in ptxw else 0x40000000}")
            A(f"v_cmp_gt_u32 vcc, 24, v0"); A(f"v_cndmask_b32 v{vT+1}, v{vT+1}, v{vT+2}, vcc")
            A(f"v_add_u32 v{vT+1}, v{vT+1}, v{vT}")
            A(f"s_and_b32 s{sT0}, s2, {ptx}"); A(f"s_cmp_eq_u32 s{sT0}, 0"); A("s_cbranch_scc1 L_ptdo")
            if 'x' in ptxw and 'p' in ptxw:
                A("s_branch L_ptend")
            else:
                if 'x' in ptxw: A(f"v_cndmask_b32 v{vT}, v{vT}, v{vT+3}, vcc")
                else: A(f"v_cndmask_b32 v{vT}, v{vT+3}, v{vT}, vcc")
                A(f"v_mov_b32 v{vT+1}, v{vT+3}")
            A.label("L_ptdo")
            A.raw(f"    buffer_load_dword a255, v{vT}, {srd(sWS)}, 0 offen {ptf}")
            A.raw(f"    buffer_load_dword a255, v{vT+1}, {srd(sWS)}, 0 offen {ptf}")
            A.label("L_ptend")
    fbs = {}
    def fb_setup():
        A(f"s_lshl_b32 s{sBO}, s{sTAB}, 7"); A(f"s_add_u32 s{sBO}, s{sBO}, {BD_OFF}")
        A(f"s_lshl_b32 s{sBT}, s{sE1}, 4")
        A(f"s_mov_b32 s{sBS}, s{sWS}"); A(f"s_mov_b32 s{sBS+1}, s{sWS+1}"); A(f"s_mov_b32 s{sBS+3}, 0x20000")
        A("s_cmp_eq_u32 s3, 0"); A(f"s_cselect_b32 s{sBS+2}, {WS_USED}, 0")
        A(f"s_lshl_b32 s{sT0}, s{sSLOT}, 2")
        A(f"v_mov_b32 v{vT}, 0x7ffffff0"); A(f"v_lshlrev_b32 v{vT+1}, 2, v0"); A("v_cmp_gt_u32 vcc, 32, v0")
        A(f"v_cndmask_b32 v{vBA}, v{vT}, v{vT+1}, vcc")
        A(f"v_mov_b32 v{vT+1}, s{sT0}"); A("v_cmp_eq_u32 vcc, 0, v0"); A(f"v_cndmask_b32 v{vBA+2}, v{vT}, v{vT+1}, vcc")
    def fb_post(idx):
        if idx not in fb: return
        A(f"s_add_u32 s11, s{sBT}, {idx}"); A(f"v_mov_b32 v{vBV}, s11")
        A(f"buffer_store_dword v{vBV}, v{vBA+2}, {srd(sBS)}, s{sBO} offen")
        fbs[idx] = A(f"buffer_load_dword v{vBD}, v{vBA}, {srd(sWS)}, s{sBO} offen {fbf}")
        extra.update((fbs[idx], fbs[idx] - 1))
    def fb_eval(idx):
        def f():
            A.wait_vm(fbs[idx])
            A(f"s_add_u32 s11, s{sBT}, {idx}"); A(f"v_subrev_u32 v{vBD}, s11, v{vBD}")
            A(f"v_cmp_gt_u32 s[12:13], {16-idx}, v{vBD}"); A(f"s_bcnt1_i32_b64 s11, s[12:13]")
            A(f"s_cmp_le_u32 s11, {fbT[0]}"); A(f"s_cselect_b32 s{sLVL}, 2, 1")
            A(f"s_cmp_ge_u32 s11, {fbT[1]}"); A(f"s_cselect_b32 s{sLVL}, 0, s{sLVL}")
        return f
    def with_fb(loads, idx):
        if idx - 1 not in fb: return loads
        l = list(loads); k = min(fbat, len(l) - 1)
        g = l[k]
        l[k] = lambda: (fb_eval(idx - 1)(), g())
        return l
    def do_xpre():
        A(f"s_lshl_b32 s{sT0}, s{sPID}, 14"); A(f"s_lshl_b32 s{sT1}, s3, 12"); A(f"s_add_u32 s{sT0}, s{sT0}, s{sT1}"); A(f"s_add_u32 s{sT0}, s{sT0}, {XO_OFF}")
        A(f"s_not_b32 s{sT1}, s{sE1}")
        for k in range(4): A(f"v_mov_b32 v{vT+k}, s{sT1}")
        for k in range(3):
            q = A(f"buffer_store_dwordx4 {vr(vT)}, v{vLIN}, {srd(sWS)}, s{sT0} offen offset:{k*1024} {xpre}")
            extra.add(q)
        A("s_nop 1")
    def post_k(blk):
        if xpre is not None and blk == xprej: do_xpre()
        fb_post(blk)
        stamp_at(A, f"k{blk}")
        if blk == rstage: late_touch()
        if blk == pretouch: do_pretouch()

    nmv = [0]; nqk = [0]; nmx = [0]
    def kcomp(upto_move, do_qk, maxqk=3):
        it = []
        while nmv[0] <= upto_move: it += k_move(nmv[0]); nmv[0] += 1
        n = 0
        while do_qk and nqk[0] < nmv[0] and n < maxqk:
            it += qk(nqk[0]); nqk[0] += 1; n += 1
            while nmx[0] < nqk[0] - 1: it += rmax(nmx[0]); nmx[0] += 1
        return it
    skip = set()
    for blk in range(0 if k0site else 1, 8):
        if blk in skip:
            post_k(blk); continue
        last = blk + 1 if (blk in siteQ and q2) else blk
        if last >= NS:
            if nmv[0] <= last - NS: run(kcomp(last - NS, False))
            A.wait_lg(mvseq[last - NS])
        if blk in siteQ:
            if blk == 0 and k0e:
                def ph(i):
                    def f():
                        kseq[0, i] = A.vm; A.vm += 1
                    return f
                site("QB", 0, 0, [ph(i) for i in range(8)] + k_loads(1), 1); skip.add(1)
                if rstage >= 0: late_setup()
            elif q2:
                site("QB", siteQ.index(blk), blk, k_loads(blk) + k_loads(blk + 1), blk + 1); skip.add(blk + 1)
            else:
                site("QB", siteQ.index(blk), blk, k_loads(blk))
            if blk == siteQ[1]:
                A(f"s_add_u32 s{sE1}, s{sE1}, 1")
                if fb: fb_setup()
                stamp_at(A, "qb1")
        else:
            comp = kcomp(blk - 2, blk > siteQ[1])
            if blk == 7: comp += tail_addr()
            if blk in frontK: run(k_loads(blk)); run(comp)
            else: mix(A, comp, k_loads(blk))
        post_k(blk)
    assert 7 not in skip
    assert 7 not in siteQ
    vseq = {}
    def v_load(B, blk, i, D, dyn=False):
        def f():
            throttle(B, D, None if dyn else 8 + blk)
            if i % 4 == 0:
                if dyn: B(f"s_add_u32 s{sSO}, s{sNX}, {(i//4)*4096}")
                else: B(f"s_mov_b32 s{sSO}, {blk*8192 + (i//4)*4096}")
                if dyn: B(f"s_add_u32 m0, s{sNS}, {(i//4)*4096}")
                else: B(f"s_add_u32 m0, s{sLK}, {(blk%NS)*8192 + (i//4)*4096}")
            q = B(f"buffer_load_dwordx4 v{vVA+(i&1)}, {srd(sV)}, s{sSO} offen offset:{(i&3)*1024} {vf} lds")
            if not dyn: vseq[blk, i] = q
        return f
    def v_loads(blk):
        l = with_fb([v_load(A, blk, i, DV[blk]) for i in range(8)], 8 + blk)
        if 8 + blk in fb:
            g = l[7]
            l[7] = lambda: (g(), fb_post(8 + blk))
        return l
    run(["v_lshrrev_b32 v176, 4, v0", "v_and_b32 v177, 15, v0", "v_lshlrev_b32 v178, 1, v176", "v_xor_b32 v177, v177, v178",
         "v_lshlrev_b32 v177, 4, v177", f"v_lshl_add_u32 v{vVA}, v176, 8, v177", f"v_xor_b32 v{vVA+1}, 0x80, v{vVA}",
         f"s_lshl_b32 s{sT0}, s3, 11", f"s_add_u32 s{sT0}, s{sT0}, {L_PX}", f"v_add_u32 v{vPW}, s{sT0}, v{vLIN}", f"v_add_u32 v{vPR}, {L_PX}, v{vLIN}"])
    A.wait_lg(mvseq[4])
    mix(A, kcomp(6, True, 8), v_loads(0))
    vl = v_loads(1)
    cut = 0
    comp = kcomp(7, True, 8)
    MXO = 3 * 8192 + 7168
    comp += ["v_and_b32 v176, 15, v0", "v_lshlrev_b32 v176, 3, v176", f"v_add_u32 v176, {MXO}, v176",
             f"v_add_u32 v177, s{sLK}, v176", f"v_add_u32 v188, {2*L_KW}, v176"]
    comp += rmax(7)
    for h in range(2): comp.append(f"v_mov_b32 v{178+h}, v{vMX+h}")
    for h in range(2): comp.append(f"v_permlane32_swap_b32 v{178+h}, v{vMX+h}")
    for h in range(2): comp.append(f"v_max_f32 v{vMX+h}, v{vMX+h}, v{178+h}")
    for h in range(2): comp.append(f"v_mov_b32 v{178+h}, v{vMX+h}")
    for h in range(2): comp.append(f"v_permlane16_swap_b32 v{178+h}, v{vMX+h}")
    for h in range(2): comp.append(f"v_max_f32 v{vMX+h}, v{vMX+h}, v{178+h}")
    comp += [f"ds_write_b64 v177, {vr(vMX, 2)}",
             lambda: A.wait_lg_all(), "s_barrier",
             f"ds_read_b64 {vr(180, 2)}, v176", f"ds_read_b64 {vr(182, 2)}, v176 offset:{L_KW}",
             f"ds_read_b64 {vr(184, 2)}, v188", f"ds_read_b64 {vr(186, 2)}, v188 offset:{L_KW}",
             lambda: A.wait_lg_all()]
    for h in range(2): comp.append(f"v_max3_f32 v{vMX+h}, v{180+h}, v{182+h}, v{184+h}")
    for h in range(2): comp.append(f"v_max_f32 v{vMX+h}, v{vMX+h}, v{186+h}")
    for h in range(2): comp.append(f"v_mul_f32 v{vMX+h}, s{sSC}, v{vMX+h}")
    cut2 = 6
    mix(A, comp, vl[cut:cut2])
    run(["v_lshrrev_b32 v178, 2, v0", "v_and_b32 v179, 7, v178", "v_lshlrev_b32 v179, 1, v179",
         "v_bfe_u32 v180, v0, 1, 1", f"s_lshl_b32 s{sT0}, s3, 2", f"v_or_b32 v180, s{sT0}, v180",
         "v_xor_b32 v179, v179, v180", "v_lshlrev_b32 v179, 4, v179", "v_lshl_add_u32 v179, v178, 8, v179",
         "v_and_b32 v180, 1, v0", f"v_lshl_add_u32 v{vVR}, v180, 3, v179",
         f"v_xor_b32 v{vVR+1}, 32, v{vVR}", f"v_add_u32 v{vVR+2}, {2*L_KW}, v{vVR}", f"v_add_u32 v{vVR+3}, {2*L_KW}, v{vVR+1}"])
    stamp_at(A, "mxdone")
    def softmax(blk):
        it = []
        for h in range(2):
            b = vS + blk*16 + h*8
            for k in range(8): it.append(f"v_fma_f32 v{b+k}, v{b+k}, s{sSC}, -v{vMX+h}")
            for k in range(8): it.append(f"v_exp_f32 v{b+k}, v{b+k}")
        for h in range(2):
            b = vS + blk*16 + h*8
            for k in range(4): it.append(f"v_cvt_pk_bf16_f32 v{vS+blk*8+h*4+k}, v{b+2*k}, v{b+2*k+1}")
        return it
    def lsum(blk):
        return [f"{MF} {vr(vT+8+4*h)}, {vr(vT)}, {vr(vS+blk*8+h*4)}, {vr(vT+8+4*h) if blk else 0}" for h in range(2)]
    comp = [f"v_mov_b32 v{vT+k}, 0x3f803f80" for k in range(4)]
    for blk in range(8):
        comp += softmax(blk)
        if blk: comp += lsum(blk-1)
    comp += lsum(7)
    comp += ["v_and_b32 v1, 15, v0", f"s_lshl_b32 s{sT0}, s3, 2", f"v_lshl_add_u32 v1, v1, 4, s{sT0}", f"v_add_u32 v1, {L_LX}, v1",
             f"ds_write_b32 v1, v{vT+8}", f"ds_write_b32 v1, v{vT+12} offset:256"]
    def pwrite(j):
        return [f"ds_write_b128 v{vPW}, {vr(vS+j*8+h*4)} offset:{(j%3)*8192+h*1024}" for h in range(2)]
    comp += pwrite(0) + pwrite(1)
    mix(A, comp, vl[cut2:] + v_loads(2))
    stamp_at(A, "smdone")

    def sync(j):
        return [lambda: A.wait_vm(vseq[j, 7]), lambda: A.wait_lg_all(), "s_barrier"]
    rd = {}
    def preads(j):
        it = []
        for src in range(4):
            for h in range(2):
                def f(src=src, h=h): rd["p", src, h] = A(f"ds_read_b128 {vr(vPM+src*8+h*4)}, v{vPR} offset:{(j%3)*8192+src*2048+h*1024}")
                it.append(f)
        return it
    def rnd(j, withp=True):
        it = []
        pr = preads(j) if withp else []
        for src in range(4):
            it += pr[2*src:2*src+2]
            for t2 in range(2):
                for t in range(2):
                    def f(src=src, t2=t2, t=t):
                        rd["v", src, t2] = A(f"ds_read_b64_tr_b16 {vr(vVT+src*8+t2*4+t*2, 2)}, v{vVR+t2+2*(src>>1)} offset:{(src&1)*L_KW+(j%NS)*8192+t*4096}")
                    it.append(f)
        if j + 2 < 8: it += pwrite(j + 2)
        for src in range(4):
            for t2 in range(2):
                it.append(lambda src=src, t2=t2: A.wait_lg(rd["v", src, t2]))
                for h in range(2):
                    d = vr(vACC + h*8 + t2*4)
                    it.append(f"{MF} {d}, {vr(vVT+src*8+t2*4)}, {vr(vPM+src*8+h*4)}, {d if (j or src) else 0}")
        return it
    def stats_read():
        return ["v_and_b32 v1, 15, v0", "v_lshlrev_b32 v1, 4, v1", f"v_add_u32 v1, {L_LX}, v1",
                f"ds_read_b128 {vr(176)}, v1", f"ds_read_b128 {vr(180)}, v1 offset:256"]
    def stats_pub():
        def st():
            A("s_cmp_lg_u32 s3, 0"); A("s_cbranch_scc1 L_nostat")
            A.raw(f"    buffer_store_dwordx4 {vr(184)}, v1, {srd(sWS)}, s{sT0} offen {pubf}")
            A.raw("    s_nop 1")
            A.label("L_nostat")
        return ["v_add_f32 v176, v176, v177", "v_add_f32 v180, v180, v181", "v_add_f32 v178, v178, v179", "v_add_f32 v182, v182, v183",
                f"v_add_f32 v{vWQ}, v176, v178", f"v_add_f32 v{vX}, v180, v182",
                "v_and_b32 v1, 16, v0", "v_cmp_eq_u32 vcc, 0, v1",
                f"s_lshl_b32 s{sT0}, s{sXCC}, 28", f"s_xor_b32 s{sT0}, s{sT0}, s{sE1}",
                f"v_mov_b32 v186, s{sE1}", f"v_mov_b32 v187, s{sT0}",
                f"v_cndmask_b32 v184, v{vMX+1}, v{vMX}, vcc", f"v_cndmask_b32 v185, v{vX}, v{vWQ}, vcc",
                "v_and_b32 v1, 31, v0", "v_lshlrev_b32 v1, 4, v1",
                f"s_lshl_b32 s{sT0}, s{sPID}, 9", f"s_add_u32 s{sT0}, s{sT0}, {XS_OFF}", st]
    ev = []
    for r in range(7): ev += [("S", r), ("R", r)]
    pos = [0]
    def take(until):
        it = []
        while pos[0] <= ev.index(until):
            k, r = ev[pos[0]]; pos[0] += 1
            if k == "S": it += sync(r)
            else:
                if r == 0: it += stats_read()
                it += rnd(r)
                if r == 0: it += stats_pub()
        return it
    statseq = {}
    def ldstat(h):
        def f():
            if h == 0:
                A("v_and_b32 v1, 15, v0"); A("v_lshlrev_b32 v1, 4, v1")
                A(f"s_xor_b32 s{sSTA}, s{sPID}, 1"); A(f"s_lshl_b32 s{sSTA}, s{sSTA}, 9"); A(f"s_add_u32 s{sSTA}, s{sSTA}, {XS_OFF}")
            statseq[h] = A(f"buffer_load_dwordx4 {vr(72+4*h)}, v1, {srd(sWS)}, s{sSTA} offen offset:{h*256} {ldf}")
        return f
    for j in range(3, 8):
        if j >= NS: run(take(("S", j - NS + 1)))
        if j == 3 and (j in siteO or j in frontV): run(take(("S", 0)))
        if j == (6 if earlyscl else 7): run([ldstat(0), ldstat(1)])
        if j == 7 and earlyscl:
            run([lambda: A.wait_vm(statseq[1])] + stat_scales(A, local))
        if j in siteO and prer is not None and prer[siteO.index(j)] is not None:
            which = siteO.index(j) ^ oswap
            items = take(("R", prer[siteO.index(j)]))
            A(f"s_mov_b32 s{sNX}, {j*8192}"); A(f"s_add_u32 s{sNS}, s{sLK}, {(j%NS)*8192}")
            A(f"s_cmp_lg_u32 s{sSPL}, {which}"); A(f"s_cbranch_scc1 L_pre{j}")
            sv = (A.lg, A.lg_done, A.vm_done)
            run(items); A.wait_lg_all(); A("s_branch L_OB")
            A.lg, A.lg_done, A.vm_done = sv
            A.label(f"L_pre{j}")
            if j in frontV: run(v_loads(j)); run(items)
            else: mix(A, items, v_loads(j))
            A.wait_lg_all()
            A.vm_done = min(A.vm_done, A.vm - 9)
            A.label(f"L_OB_ret{which}")
        elif j in siteO:
            site("OB", siteO.index(j) ^ oswap, j, v_loads(j))
        elif j == 7:
            vl7 = v_loads(7)
            mix(A, take(("R", 4)), vl7[:front7] )
            mix(A, take(("R", 5)), vl7[front7:])
        elif j in frontV:
            run(v_loads(j)); run(take(("R", j - 2)))
        else:
            mix(A, take(("R", j - 2)), v_loads(j))
        if j == ptlj and ptlate: do_pretouch(ptlate)
        stamp_at(A, f"v{j}")
    run(take(("R", 5)))
    stamp_at(A, "r5")
    if not earlyscl: run([lambda: A.wait_vm(statseq[1])] + stat_scales(A, local))
    run([f"v_mov_b32 v{103+4*k}, s{sE1}" for k in range(3)])
    stamp_at(A, "scl")
    run(take(("S", 6))); stamp_at(A, "s6")
    run(take(("R", 6))); run(preads(7))
    stamp_at(A, "v7")
    sy = sync(7)
    run(sy[:1]); stamp_at(A, "v7land"); run(sy[1:]); stamp_at(A, "v7b")
    if "notail" in exp: A("s_branch L_fin")
    run(rnd(7, withp=False))
    tail(A, pubf, ldf, stamp_at, sleepx, sleepg, outf, own, pipe, brx, xnt)
    A.label("L_fin")
    if stamps:
        A(f"s_lshl_b32 s{sT0}, s2, 2"); A(f"s_add_u32 s{sT0}, s{sT0}, s3"); A(f"s_lshl_b32 s{sT0}, s{sT0}, 6")
        A(f"s_add_u32 s{sT0}, s{sT0}, {STAMP_OFF}")
        A(f"s_add_u32 s18, s18, s{sT0}"); A("s_addc_u32 s19, s19, 0")
        A("v_mov_b32 v1, 0")
        for j in range(4):
            for k in range(4): A(f"v_mov_b32 v{4+k}, s{sSTAMP+4*j+k}")
            A(f"global_store_dwordx4 v1, v[4:7], s[18:19] offset:{16*j} sc1")
    A.label("L_end")
    A("s_endpgm")

    B = Asm()
    B.label("L_QB")
    stamp_at(B, "qbs"); stamp_at(B, "cnt_clk0")
    qs = {}
    def q_load(u, i):
        def f():
            B.wait_vm_n(DQ - 1)
            B(f"s_mov_b32 s{sSO}, {(u*32+i)*8192}")
            qs[u, i] = B(f"buffer_load_dwordx4 {vr(WQR[u%3]+4*i)}, v{vWQ}, {srd(sWQ)}, s{sSO} offen {w2f}")
        return f
    xs = {}
    def q_cons(u):
        it = [lambda: B.wait_vm(qs[u, 7]), lambda: B.wait_lg(xs[u])]
        if "nocomp" in exp: return it
        for q in range(4):
            tb = vT + (q & 1) * 8
            it += perms(WQR[u % 3], q, tb)
            for jo in range(2):
                d = vr(vQA + (2*q+jo)*4)
                it.append(f"{MF} {d}, {vr(tb+4*jo)}, {vr(vXO_+4*u)}, {d if u else 0}")
        return it
    for u in (0, 1):
        for i in range(8): q_load(u, i)()
    B.wait_vm(qs[0, 0]); B("s_barrier")
    for u in range(9): xs[u] = B(f"ds_read_b128 {vr(vXO_+4*u)}, v{vX} offset:{u*64}")
    for u in range(0, 7):
        mix(B, q_cons(u), [q_load(u+2, i) for i in range(8)])
    kn = [k_load(B, 1, i, 32 if frontn else 24, dyn=1) for i in range(8)]
    if frontn:
        for f in kn: f()
        kn = []
    mix(B, q_cons(7), kn)
    mix(B, q_cons(8), [])
    stamp_at(B, "qbl")
    red = ["s_barrier",
           f"s_lshl_b32 s{sT0}, s3, 13", f"s_add_u32 s{sT0}, s{sT0}, {L_QR}", f"v_add_u32 v1, s{sT0}, v{vLIN}"]
    for j in range(8): red.append(f"ds_write_b128 v1, {vr(vQA+4*j)} offset:{j*1024}")
    red += [f"v_add_u32 v1, {L_QR}, v{vLIN}", lambda: B.wait_lg_all(), "s_barrier"]
    rs = {}
    for h in range(2):
        for j in range(8):
            for k in range(2):
                def f(h=h, j=j, k=k): rs[h, j, k] = B(f"ds_read_b128 {vr(vS+h*64+j*8+k*4)}, v1 offset:{(h+2*k)*8192+j*1024}")
                red.append(f)
    for h in range(2):
        for p in range(4):
            red.append(lambda h=h, p=p: B.wait_lg(rs[h, 2*p+1, 1]))
            for jo in range(2):
                b = vS + h*64 + (2*p+jo)*8
                for r in range(4): red.append(f"v_add_f32 v{b+r}, v{b+r}, v{b+4+r}")
            for r in range(4):
                red.append(f"v_cvt_pk_bf16_f32 v{vQ+h*16+r*4+p}, v{vS+h*64+(2*p)*8+r}, v{vS+h*64+(2*p+1)*8+r}")
    mix(B, red, [k_load(B, 2, i, DQ2, dyn=2) for i in range(8)] if q2 else [])
    if qbar: B.wait_lg_all(); B("s_barrier")
    stamp_at(B, "qbe")
    B(f"s_cmp_eq_u32 s{sSPL}, 0"); B("s_cbranch_scc1 L_QB_ret0"); B("s_branch L_QB_ret1")

    C = Asm()
    C.label("L_OB")
    stamp_at(C, "obs")
    C("s_cmp_eq_u32 s3, 3"); C("s_cbranch_scc1 L_OB3")
    os_ = {}
    OSL = [0, 1, 2, 0, 1, 2, 0, 1]
    def o_load(s, i):
        def f():
            C.wait_vm_n(DQ - 1)
            h, r = s >> 2, s & 3
            off = (h*128 + (0 if own else r*32) + (i>>2)*16 + (i&3)) * 1152
            so = off // 4096 * 4096
            if own: C(f"s_add_u32 s{sSO}, s{sRO+r}, {so}")
            else: C(f"s_mov_b32 s{sSO}, {so}")
            os_[s, i] = C(f"buffer_load_dwordx3 {vr(WOS[OSL[s]]+4*i, 3)}, v{vWO}, {srd(sWO)}, s{sSO} offen offset:{off-so} {w2f}")
        return f
    def o_cons(s):
        it = [lambda: C.wait_vm(os_[s, 7])]
        for q in range(3):
            tb = vT + (q & 1) * 8
            it += perms(WOS[OSL[s]], q, tb)
            for k in range(8): it.append(f"v_accvgpr_write_b32 a{s*24+q*8+k}, v{tb+k}")
        return it
    for s in (0, 1):
        for i in range(8): o_load(s, i)()
    for s in range(6):
        mix(C, o_cons(s), [o_load(s+2, i) for i in range(8)])
    if frontn:
        for i in range(8): v_load(C, 3, i, 32, dyn=1)()
        mix(C, o_cons(6), [])
    else:
        mix(C, o_cons(6), [v_load(C, 3, i, 24, dyn=1) for i in range(8)])
    mix(C, o_cons(7), [])
    stamp_at(C, "obe")
    C(f"s_cmp_eq_u32 s{sSPL}, 0"); C("s_cbranch_scc1 L_OB_ret0"); C("s_branch L_OB_ret1")
    C.label("L_OB3")
    for i in range(8): v_load(C, 3, i, 63, dyn=1)()
    C(f"s_cmp_eq_u32 s{sSPL}, 0"); C("s_cbranch_scc1 L_OB_ret0"); C("s_branch L_OB_ret1")

    D = Asm()
    D.label("L_statpoll")
    D(f"s_mov_b32 s{sCNT}, {POLL_MAX}")
    D.label("L_statloop")
    for h in range(2): D(f"buffer_load_dwordx4 {vr(72+4*h)}, v1, {srd(sWS)}, s{sSTA} offen offset:{h*256} {ldf}")
    D("s_waitcnt vmcnt(0)")
    for c in stat_check(): D(c)
    D("s_cbranch_scc1 L_statok")
    D(f"s_sub_u32 s{sCNT}, s{sCNT}, 1"); D(f"s_cmp_lg_u32 s{sCNT}, 0"); D("s_cbranch_scc1 L_statloop")
    giveup(D, 0)

    far = "\n".join(FAR) + "\n"; FAR.clear()
    out = A.text() + far + B.text() + C.text() + D.text() + "L_codeend:\n" + "    s_nop 0\n" * 64
    out += f""".section .rodata,"a"
.p2align 6
.amdhsa_kernel {KNAME}
  .amdhsa_next_free_vgpr 512
  .amdhsa_next_free_sgpr 102
  .amdhsa_accum_offset 256
  .amdhsa_group_segment_fixed_size 0
  .amdhsa_kernarg_size 64
  .amdhsa_user_sgpr_count 2
  .amdhsa_user_sgpr_kernarg_segment_ptr 1
  .amdhsa_system_sgpr_workgroup_id_x 1
.end_amdhsa_kernel
"""
    return out

FAR = []
FAILDBG = False
def giveup(B, code):
    if FAILDBG:
        B("s_load_dwordx2 s[16:17], s[0:1], 48"); B("s_waitcnt lgkmcnt(0)")
        B(f"v_mov_b32 v1, {code*16}"); B("v_mov_b32 v2, 1")
        B("v_cmp_eq_u32 vcc, 0, v0"); B("s_and_saveexec_b64 s[56:57], vcc")
        B("global_atomic_add v1, v2, s[16:17]")
        B("v_mov_b32 v2, s2"); B("v_mov_b32 v3, s3"); B(f"v_mov_b32 v4, s{sE1}")
        B("global_store_dwordx3 v1, v[2:4], s[16:17] offset:4")
        B("s_waitcnt vmcnt(0)")
    B("s_endpgm")
def tail_addr():
    it = []
    a = it.append
    a("v_and_b32 v176, 15, v0"); a("v_lshrrev_b32 v177, 4, v0")
    a("v_mul_u32_u24 v178, 12288, v176"); a(f"v_lshl_add_u32 v{vPUB}, v177, 4, v178")
    a("v_mul_u32_u24 v178, 768, v177"); a(f"v_lshl_add_u32 v{vGAT}, v176, 4, v178")
    a(f"s_lshl_b32 s{sT0}, s{sB}, 1"); a(f"s_add_u32 s{sT0}, s{sT0}, s{sSPL}")
    a(f"s_mul_i32 s{sT0}, s{sT0}, 196608"); a(f"s_lshl_b32 s{sT1}, s3, 8"); a(f"s_add_u32 s{sT0}, s{sT0}, s{sT1}"); a(f"s_add_u32 s{sT0}, s{sT0}, {PY_OFF}")
    a(f"s_mul_i32 s{sT1}, s{sKVH}, 768"); a(f"s_add_u32 s{sPB}, s{sT0}, s{sT1}")
    a(f"s_mul_i32 s{sT1}, s{sKVH}, 12288"); a(f"s_add_u32 s{sGA}, s{sT0}, s{sT1}"); a(f"s_add_u32 s{sGA+1}, s{sGA}, 6144")
    a("v_cmp_eq_u32 vcc, 3, v177"); a("v_bfe_u32 v178, v0, 2, 2"); a("v_cndmask_b32 v177, v177, 1, vcc")
    a("v_mad_u32_u24 v178, v178, 3, v177")
    a("v_and_b32 v179, 3, v178"); a("v_mul_u32_u24 v179, 12, v179"); a("v_and_b32 v178, 12, v178"); a("v_add_u32 v179, v179, v178")
    a("v_and_b32 v178, 3, v0"); a(f"v_mad_u32_u24 v{vOUT}, v178, 48, v179")
    a(f"s_lshr_b32 s{sT0}, s{sPID}, 1"); a(f"s_mul_i32 s{sOB}, s{sT0}, 1152"); a(f"s_mul_i32 s{sT0}, s{sSPL}, 576"); a(f"s_add_u32 s{sOB}, s{sOB}, s{sT0}")
    a(f"s_mul_i32 s{sT0}, s3, 192"); a(f"s_add_u32 s{sOB}, s{sOB}, s{sT0}")
    a(f"s_lshl_b32 s{sT0}, s3, 10"); a(f"s_add_u32 s{sT0}, s{sT0}, {L_BX}"); a(f"v_add_u32 v{vBXW}, s{sT0}, v{vLIN}")
    for sg in range(4):
        a(f"s_add_u32 s{sT0}, s3, {sg}"); a(f"s_and_b32 s{sT0}, s{sT0}, 3"); a(f"s_mul_i32 s{sRO+sg}, s{sT0}, {32*1152}")
        if sg: a(f"s_lshl_b32 s{sT0}, s{sT0}, 10"); a(f"s_add_u32 s{sT0}, s{sT0}, {L_BX}"); a(f"v_add_u32 v{vBXR+sg-1}, s{sT0}, v{vLIN}")
    a(f"s_lshl_b32 s{sXOo}, s{sPID}, 14"); a(f"s_lshl_b32 s{sT0}, s3, 12"); a(f"s_add_u32 s{sXOo}, s{sXOo}, s{sT0}")
    a(f"s_xor_b32 s{sXOp}, s{sXOo}, {1<<14}")
    a(f"s_add_u32 s{sXOo}, s{sXOo}, {XO_OFF}"); a(f"s_add_u32 s{sXOp}, s{sXOp}, {XO_OFF}")
    for n in (sXL, sXG):
        a(f"s_mov_b32 s{n}, s{sWS}"); a(f"s_mov_b32 s{n+1}, s{sWS+1}"); a(f"s_mov_b32 s{n+3}, 0x20000")
    return it

def stat_check():
    return [f"v_xor_b32 v80, s{sE1}, v74", f"v_xor_b32 v81, s{sE1}, v75", f"v_xor_b32 v82, s{sE1}, v78", f"v_xor_b32 v83, s{sE1}, v79",
            "v_or_b32 v84, v81, v83", "v_and_b32 v84, 0x0fffffff, v84",
            "v_or3_b32 v80, v80, v84, v82", "v_cmp_eq_u32 vcc, 0, v80", "s_cmp_eq_u64 vcc, -1"]

def stat_scales(A, local):
    it = stat_check()
    def br():
        A("s_cbranch_scc0 L_statpoll")
        A.label("L_statok")
    it.append(br)
    it += [f"v_readfirstlane_b32 s{sT0}, v81", f"s_lshr_b32 s{sT0}, s{sT0}, 28", f"s_cmp_eq_u32 s{sT0}, s{sXCC}",
           f"s_cselect_b32 s{sLOC}, {1 if local else 0}, 0",
           f"s_cselect_b32 s{sXL+2}, {WS_USED if local else 0}, 0", f"s_cselect_b32 s{sXG+2}, {0 if local else WS_USED}, {WS_USED}"]
    for h in range(2):
        it += [f"v_max_f32 v{80+h}, v{vMX+h}, v{72+4*h}"]
    for h in range(2):
        it += [f"v_sub_f32 v{82+h}, v{vMX+h}, v{80+h}", f"v_sub_f32 v{84+h}, v{72+4*h}, v{80+h}"]
    for h in range(2):
        it += [f"v_exp_f32 v{82+h}, v{82+h}", f"v_exp_f32 v{84+h}, v{84+h}"]
    for h in range(2):
        it += [f"v_mul_f32 v{84+h}, v{84+h}, v{73+4*h}"]
    for h in range(2):
        it += [f"v_fma_f32 v{84+h}, v{82+h}, v{vWQ+h}, v{84+h}"]
    for h in range(2):
        it += [f"v_rcp_f32 v{84+h}, v{84+h}"]
    for h in range(2):
        it += [f"v_mul_f32 v{vWQ+h}, v{82+h}, v{84+h}"]
    return it

def poll(A, name, loads, tags, slp):
    A(f"s_mov_b32 s{sCNT}, {POLL_MAX}")
    A.label(name)
    for l in loads: A(l)
    A("s_waitcnt vmcnt(0)")
    A.vm_done = A.vm - 1
    for k, t in enumerate(tags): A(f"v_xor_b32 v{70+k}, s{sE1}, v{t}")
    A("v_or3_b32 v70, v70, v71, v72")
    if len(tags) == 4: A("v_or_b32 v70, v70, v73")
    A("v_cmp_eq_u32 vcc, 0, v70"); A("s_cmp_eq_u64 vcc, -1")
    A(f"s_cbranch_scc1 {name}_ok")
    if slp: A(f"s_sleep {slp}")
    A(f"s_sub_u32 s{sCNT}, s{sCNT}, 1"); A(f"s_cmp_lg_u32 s{sCNT}, 0"); A(f"s_cbranch_scc1 {name}")
    giveup(A, 1 if name == "L_xp" else 2)
    A.label(f"{name}_ok")

def tail(A, pubf, ldf, stamp_at, sleepx, sleepg, outf, own, pipe, brx, xnt):
    A.comment("---- tail: exchange with the other key half, output projection, reduction over kv heads")
    XG = 100
    def xreg(k): return XG + (k // 3) * 4 + k % 3
    sent = 0
    for x in range(4):
        b = vACC + x*4
        for r in range(4): A(f"v_mul_f32 v{b+r}, v{b+r}, v{vWQ+(x>>1)}")
        for p in range(2): A(f"v_cvt_pk_bf16_f32 v{xreg(2*x+p)}, v{b+2*p}, v{b+2*p+1}")
        while not brx and sent < 3 and min(3*sent + 2, 7) <= 2*x + 1:
            A(f"buffer_store_dwordx4 {vr(XG+sent*4)}, v{vLIN}, {srd(sXL)}, s{sXOo} offen offset:{sent*1024}")
            A(f"buffer_store_dwordx4 {vr(XG+sent*4)}, v{vLIN}, {srd(sXG)}, s{sXOo} offen offset:{sent*1024} {pubf}")
            sent += 1
    if brx:
        A.raw(f"    s_cmp_eq_u32 s{sLOC}, 0"); A.raw("    s_cbranch_scc1 L_xfar")
        for k in range(3): A(f"buffer_store_dwordx4 {vr(XG+k*4)}, v{vLIN}, {srd(sWS)}, s{sXOo} offen offset:{k*1024}")
        if xnt:
            stamp_at(A, "xst")
            A(f"s_movk_i32 s{sCNT}, 256")
            A.raw("L_xn:")
            for x in range(3): A(f"buffer_load_dwordx4 {vr(112+4*x)}, v{vLIN}, {srd(sWS)}, s{sXOp} offen offset:{x*1024} nt")
            A("s_waitcnt vmcnt(0)")
            for k, t in enumerate([115, 119, 123]): A(f"v_xor_b32 v{70+k}, s{sE1}, v{t}")
            A("v_or3_b32 v70, v70, v71, v72"); A("v_cmp_eq_u32 vcc, 0, v70"); A("s_cmp_eq_u64 vcc, -1")
            A.raw("    s_cbranch_scc1 L_xp_ok")
            A(f"s_sub_u32 s{sCNT}, s{sCNT}, 1"); A(f"s_cmp_lg_u32 s{sCNT}, 0"); A.raw("    s_cbranch_scc1 L_xn")
        A.raw("L_xsent:")
        FAR.append("L_xfar:")
        for k in range(3): FAR.append(f"    buffer_store_dwordx4 {vr(XG+k*4)}, v{vLIN}, {srd(sWS)}, s{sXOo} offen offset:{k*1024} {pubf}")
        FAR.append("    s_branch L_xsent")
    if not (brx and xnt): stamp_at(A, "xst")
    poll(A, "L_xp", [f"buffer_load_dwordx4 {vr(112+4*x)}, v{vLIN}, {srd(sWS)}, s{sXOp} offen offset:{x*1024} {ldf}" for x in range(3)], [115, 119, 123], sleepx)
    stamp_at(A, "cntx"); stamp_at(A, "xok")
    def mm(j, s, breg, first):
        d = vr(168 + 4*j)
        return f"{MF} {d}, {ar(s*24+j*4)}, {vr(breg)}, {0 if first else d}"
    def fin(h):
        it = []
        for p in range(4):
            k = h*4 + p; src = 112 + (k // 3) * 4 + k % 3
            it += [f"v_lshlrev_b32 v{16+2*k}, 16, v{src}", f"v_and_b32 v{17+2*k}, 0xffff0000, v{src}"]
        for e in range(8): it.append(f"v_add_f32 v{16+h*8+e}, v{16+h*8+e}, v{vACC+h*8+e}")
        for p in range(4): it.append(f"v_cvt_pk_bf16_f32 v{128+h*4+p}, v{16+h*8+2*p}, v{17+h*8+2*p}")
        it.append(f"ds_write_b128 v{vBXW}, {vr(128+h*4)} offset:{h*4096}")
        return it
    for c in fin(0): A(c)
    f1 = fin(1)
    if own:
        m0 = [mm(j, 0, 128, True) for j in range(6)]
        for k, c in enumerate(f1):
            if k % 3 == 2 and m0: A(m0.pop(0))
            A(c)
        for c in m0: A(c)
    else:
        for c in f1: A(c)
    A.wait_lg_all(); A("s_barrier")
    A("s_cmp_eq_u32 s3, 3"); A.raw("    s_cbranch_scc1 L_fin")
    stamp_at(A, "bxb")
    PG = 192
    def preg(D): return PG + (D // 3) * 4 + D % 3
    def pack(jp):
        for r in range(4): A(f"v_cvt_pk_bf16_f32 v{preg(jp*4+r)}, v{168+8*jp+r}, v{172+8*jp+r}")
    def pub(gm): A(f"buffer_store_dwordx4 {vr(PG+gm*4)}, v{vPUB}, {srd(sWS)}, s{sPB} offen offset:{gm*64} {pubf}")
    if own:
        steps = [1, 5, 2, 6, 3, 7]
        bs = {s: A(f"ds_read_b128 {vr(136+4*s)}, v{vBXR+(s&3)-1} offset:{(s>>2)*4096}") for s in steps}
        for j in range(6): A(mm(j, 4, 132, False))
    else:
        steps = list(range(8))
        bs = {s: A(f"ds_read_b128 {vr(136+4*s)}, v{vPR} offset:{s*1024}") for s in steps}
    for k in range(4): A(f"v_mov_b32 v{PG+3+4*k}, s{sE1}")
    for jp in range(3):
        for n, s in enumerate(steps):
            A.wait_lg(bs[s])
            for j in (2*jp, 2*jp+1): A(mm(j, s, 136+4*s, (not own) and s == 0))
            if jp and n == 4:
                pack(jp - 1); pub(jp - 1)
    pack(2); pub(2); pub(3)
    stamp_at(A, "pub")
    def gl(GB): return [f"buffer_load_dwordx4 {vr(GB+4*k)}, v{vGAT}, {srd(sWS)}, s{sGA+(k>>1)} offen offset:{(k&1)*3072} {ldf}" for k in range(4)]
    def unpack(GB):
        for k in range(4):
            for d in range(3):
                A(f"v_lshlrev_b32 v{16+8*k+d}, 16, v{GB+4*k+d}"); A(f"v_and_b32 v{20+8*k+d}, 0xffff0000, v{GB+4*k+d}")
    def chk(GB, target):
        for k in range(4): A(f"v_xor_b32 v{70+k}, s{sE1}, v{GB+3+4*k}")
        A("v_or3_b32 v70, v70, v71, v72"); A("v_or_b32 v70, v70, v73")
        A("v_cmp_eq_u32 vcc, 0, v70"); A("s_cmp_eq_u64 vcc, -1")
        A.raw(f"    s_cbranch_scc1 {target}")
    if pipe:
        GA, GB = 208, 224
        A(f"s_mov_b32 s{sCNT}, {POLL_MAX}")
        for l in gl(GA): A(l)
        if sleepg: A(f"s_sleep {sleepg}")
        A.label("L_gp")
        for l in gl(GB): A(l)
        A("s_waitcnt vmcnt(4)"); chk(GA, "L_gp_okA")
        for l in gl(GA): A(l)
        A("s_waitcnt vmcnt(4)"); chk(GB, "L_gp_okB")
        A(f"s_sub_u32 s{sCNT}, s{sCNT}, 1"); A(f"s_cmp_lg_u32 s{sCNT}, 0"); A("s_cbranch_scc1 L_gp")
        A("s_endpgm")
        A.label("L_gp_okB"); unpack(GB); A.raw("    s_branch L_gsum")
        A.label("L_gp_okA"); unpack(GA)
        A.raw("L_gsum:")
        stamp_at(A, "cntg"); stamp_at(A, "gok")
    else:
        GB = 208
        poll(A, "L_gp", gl(GB), [GB+3+4*k for k in range(4)], sleepg)
        stamp_at(A, "cntg"); stamp_at(A, "gok")
        unpack(GB)
    for e in (0, 1, 2, 4, 5, 6):
        A(f"v_add_f32 v{16+e}, v{16+e}, v{24+e}"); A(f"v_add_f32 v{32+e}, v{32+e}, v{40+e}")
    for e in (1, 5, 0, 4, 2, 6): A(f"v_add_f32 v{16+e}, v{16+e}, v{32+e}")
    A("v_mov_b32 v19, v17"); A("v_mov_b32 v23, v21")
    for (a_, b_) in ((16, 18), (20, 22), (17, 19), (21, 23)): A(f"v_permlane32_swap_b32 v{a_}, v{b_}")
    for (a_, b_) in ((16, 18), (20, 22), (17, 19), (21, 23)): A(f"v_add_f32 v{a_}, v{a_}, v{b_}")
    A("v_permlane16_swap_b32 v16, v17"); A("v_permlane16_swap_b32 v20, v21")
    A("v_add_f32 v16, v16, v17"); A("v_add_f32 v20, v20, v21")
    A("v_cvt_pk_bf16_f32 v16, v16, v20")
    A(f"buffer_store_dword v16, v{vOUT}, {srd(sOUT)}, s{sOB} offen {outf}")
    A(f"s_or_b32 s{sT0}, s{sKVH}, s{sSPL}"); A(f"s_or_b32 s{sT0}, s{sT0}, s3"); A(f"s_cmp_lg_u32 s{sT0}, 0"); A("s_cbranch_scc1 L_noep")
    A(f"v_mov_b32 v1, s{sE1}"); A(f"s_lshl_b32 s{sT0}, s{sB}, 8"); A("v_mov_b32 v2, 12")
    A(f"buffer_store_dword v1, v2, {srd(sWS)}, s{sT0} offen")
    A.label("L_noep")
    stamp_at(A, "end")

if __name__ == "__main__":
    import json
    kw = json.loads(sys.argv[2]) if len(sys.argv) > 2 else {}
    open(sys.argv[1], "w").write(gen(**kw))
```

```python
import sys, math, struct
from asmlib import Asm

KNAME = "standalone__sliding_block_cached__sampling_kernel"
HDR = open('standalone__sliding_block_cached__sampling.s.ref').read().split('; Override')[0]

DOC = """;
"""
EP_OFF = 0
XS_OFF = 0x10000
BD_OFF = 0x8000
XO_OFF = 0x100000
PY_OFF = 0x800000
WS_USED = 0x1000000
STAMP_OFF = 512 << 20
NS = 4
L_KW = NS * 8192
L_QR = 4 * L_KW
L_PX = L_QR
L_BX = L_QR
L_MX = L_QR + 24576
L_LX = L_MX + 512
L_XI = L_QR
LDS_BYTES = L_QR + 32768
POLL_MAX = 200000

def f32(x): return struct.unpack('<I', struct.pack('<f', x))[0]
SCALE = f32(1.4426950408889634 / math.sqrt(128.0))

sK, sV, sWQ, sWO, sX, sWS, sOUT, sWP, sPUB = 20, 24, 28, 32, 36, 40, 44, 68, 72
sXL, sXG = 28, 36
sSELL, sSELH, sSC, sTAG, sTAB, sSO, sLK, sKVH, sSPL, sB = 48, 49, 50, 51, 52, 61, 62, 63, 64, 65
sE1, sMASK = 66, 67
sPID, sXOo, sXOp, sNX, sXCC, sLVL, sCNT, sT0, sT1, sSLOT = 76, 77, 78, 79, 80, 81, 82, 83, 84, 85
sSTAMP = 86
sNS, sSTA, sNS2 = 53, 54, 55
sBS = 72
sBO, sBT = 9, 10
vBD, vBA, vBV = 252, 253, 254
sPB, sGA, sOB = 4, 6, 8
def srd(n): return f"s[{n}:{n+3}]"
vKA, vKR, vLIN, vWQ, vX, vWO, vMX = 2, 6, 10, 11, 12, 13, 14
vQ = 16
vS = 48
vT = 176
vVT = 16
vPM = 192
vACC = 224
vVA, vVR, vPW, vPR = 2, 6, 4, 5
vXO_ = 48
vQA = 84
WQR = [192, 224, 116]
WOS = [112, 144, 16]
vPUB, vOUT, vGAT, vBXW, vBXR = 240, 241, 242, 243, 244
sRO = 56
sLOC = 60

def vr(b, n=4): return f"v[{b}:{b+n-1}]"
def ar(b, n=4): return f"a[{b}:{b+n-1}]"
MF = "v_mfma_f32_16x16x32_bf16"

def cost(it):
    if callable(it): return 1
    if it.startswith('v_mfma'): return 12
    if it.startswith('v_exp') or it.startswith('v_rcp'): return 8
    return 4

def mix(A, comp, loads):
    tot = sum(cost(c) for c in comp)
    n = len(loads); k = 0; acc = 0
    for c in comp:
        while k < n and acc >= tot * k / max(n, 1):
            loads[k](); k += 1
        if callable(c): c()
        else: A(c)
        acc += cost(c)
    while k < n:
        loads[k](); k += 1

def perms(R, q, tb):
    it = []
    for p in range(4): it.append(f"v_perm_b32 v{tb+p}, v{R+(2*p+1)*4+q}, v{R+(2*p)*4+q}, s{sSELL}")
    for p in range(4): it.append(f"v_perm_b32 v{tb+4+p}, v{R+(2*p+1)*4+q}, v{R+(2*p)*4+q}, s{sSELH}")
    return it

def gen(DK=(8,8,8,8,8,8,16,16), DV=(16,16,16,16,10,10,10,16), DQ=16, stamps=False, kf="nt", vf="nt", w1f="", w2f="", pubf="sc1", ldf="sc1",
        codepf=True, wsbase=0, pretouch=1, ptf="", local=True, promote=False, sleepx=0, sleepg=0, tlbwarm=True, noOB=False, noQB=False, exp="", outtouch=True, outf="", kfirst=True, pt="x", DLO=(8,8,8,8,8,8,5,5,5,5,5,5,10,10,10,16), lomask=0x55, DMID=(8,8,8,8,8,8,5,5,5,5,5,5,10,10,10,16), midmask=0, siteQ=(0, 4), siteO=(4, 7), front7=8, q2=True, DQ2=8, rstage=2, own=True, pipe=False, brx=True, k0early=False, pfirst=True, oswap=0, prer=(None, 5), frontn=False, earlyscl=False, ptlate="p", ptlj=6, frontV=(7,), frontK=(), xnt=False, gwait=True, pubpair=False, xpre=None, xprej=6, tlb0=True, qbar=False, fb=(5,6,7,8,9,10), fbT=(0, 26), fbat=6, fbf="nt", ptx=0, ptxw="xp", faildbg=False, pollmax=2000000):
    global POLL_MAX, FAILDBG
    POLL_MAX = pollmax; FAILDBG = faildbg
    siteQ = tuple(siteQ); siteO = tuple(siteO)
    if isinstance(DK, int): DK = (DK,) * 8
    if isinstance(DV, int): DV = (DV,) * 8
    if isinstance(DLO, int): DLO = (DLO,) * 16
    if isinstance(DMID, int): DMID = (DMID,) * 16
    dr = []
    if "nobar" in exp: dr += ["s_barrier"]
    if "nomath" in exp: dr += ["v_mfma", "v_exp", "v_fma", "v_cvt", "v_perm", "v_max3", "v_accvgpr_write"]
    if "nods" in exp: dr += ["ds_"]
    Asm.drop = tuple(dr)
    A = Asm()
    def stamp_at(B, name):
        if not stamps or name not in stamps: return
        i = stamps.index(name) + 1
        if name.startswith("cnt") and not name.startswith("cnt_clk"):
            B(f"s_sub_u32 s{sSTAMP+2*i}, {POLL_MAX}, s{sCNT}"); B(f"s_mov_b32 s{sSTAMP+2*i+1}, 0")
            return
        B.wait_lg_all()
        B(f"{'s_memtime' if name.startswith('cnt_clk') else 's_memrealtime'} s[{sSTAMP+2*i}:{sSTAMP+2*i+1}]")
        B.wait_lg_all()
    def run(comp, B=A):
        for c in comp:
            if callable(c): c()
            else: B(c)

    A.raw(HDR.rstrip())
    A.raw(f"; @launch grid=(256,1,1) block=(256,1,1) lds={LDS_BYTES}")
    A.raw('.amdgcn_target "amdgcn-amd-amdhsa--gfx950"')
    A.raw(DOC.rstrip())
    A.raw(".text"); A.raw(f".globl {KNAME}"); A.raw(".p2align 8"); A.raw(f".type {KNAME},@function"); A.raw(f"{KNAME}:")
    A("s_cmp_ge_u32 s2, 256"); A("s_cbranch_scc1 L_end")
    A("s_load_dwordx8 s[4:11], s[0:1], 0")
    A("s_load_dwordx8 s[12:19], s[0:1], 32")
    if stamps: A(f"s_memrealtime s[{sSTAMP}:{sSTAMP+1}]")
    A("s_getpc_b64 s[100:101]")
    A.raw("L_pc:")
    if codepf:
        A(f"s_and_b32 s{sT1}, s2, 0xf8"); A(f"v_add_lshl_u32 v16, v0, s{sT1}, 7")
        A("v_min_u32 v16, L_codeend-L_pc-4, v16")
        A("v_cmp_gt_u32 vcc, 8, v0"); A("s_and_saveexec_b64 s[56:57], vcc"); A.raw("    s_cbranch_execz L_nocpf")
        A.raw("    global_load_dword a255, v16, s[100:101]")
        A.raw("L_nocpf:")
        A("s_mov_b64 exec, s[56:57]")
    A("v_lshrrev_b32 v1, 6, v0")
    A("v_mov_b32 v18, v0")
    A("v_readfirstlane_b32 s3, v1")
    A("v_and_b32 v0, 63, v0")
    A(f"s_and_b32 s{sTAB}, s2, 7"); A(f"s_lshr_b32 s{sSLOT}, s2, 3")
    A(f"s_and_b32 s{sT0}, s{sSLOT}, 1"); A(f"s_lshl_b32 s61, s{sTAB}, 1"); A(f"s_add_u32 s{sKVH}, s61, s{sT0}")
    A(f"s_lshr_b32 s{sSPL}, s{sSLOT}, 1"); A(f"s_and_b32 s{sSPL}, s{sSPL}, 1")
    A(f"s_lshr_b32 s{sB}, s{sSLOT}, 2")
    A("v_lshrrev_b32 v20, 4, v0")
    A("v_and_b32 v21, 15, v0")
    A(f"v_lshlrev_b32 v{vLIN}, 4, v0")
    A("v_lshlrev_b32 v22, 2, v20"); A("v_xor_b32 v22, v21, v22"); A("v_lshlrev_b32 v22, 4, v22"); A(f"v_lshl_add_u32 v{vKA}, v20, 8, v22")
    for i in range(1, 4): A(f"v_xor_b32 v{vKA+i}, {i<<4}, v{vKA}")
    A(f"s_mul_i32 s{sLK}, s3, {L_KW}")
    A(f"s_lshl_b32 s{sPID}, s{sB}, 4"); A(f"s_add_u32 s{sPID}, s{sPID}, s{sKVH}")
    A(f"s_lshl_b32 s{sT0}, s{sPID}, 21"); A(f"s_add_u32 s{sT0}, s{sT0}, {6144*256}")
    A(f"s_lshl_b32 s{sT1}, s{sSPL}, 18"); A(f"s_add_u32 s{sT0}, s{sT0}, s{sT1}")
    A(f"s_lshl_b32 s{sT1}, s3, 16"); A(f"s_add_u32 s{sT0}, s{sT0}, s{sT1}")
    A(f"s_lshl_b32 s{sPID}, s{sPID}, 1"); A(f"s_add_u32 s{sPID}, s{sPID}, s{sSPL}")
    A("v_mov_b32 v23, 0x7ffffff0"); A("v_cmp_gt_u32 vcc, 144, v18")
    A("v_lshrrev_b32 v22, 3, v18"); A(f"s_mul_i32 s{sT1}, s{sSLOT}, 18"); A(f"v_add_u32 v22, s{sT1}, v22"); A("v_lshlrev_b32 v22, 13, v22")
    A("v_and_b32 v24, 7, v18"); A("v_lshl_add_u32 v22, v24, 7, v22"); A("v_cndmask_b32 v16, v23, v22, vcc")
    A("v_lshlrev_b32 v22, 7, v18"); A("v_cndmask_b32 v17, v23, v22, vcc")
    A("s_waitcnt lgkmcnt(0)")
    def mksrd(n, p, off, size):
        if off is None or off == 0:
            A(f"s_mov_b32 s{n}, s{p}"); A(f"s_mov_b32 s{n+1}, s{p+1}")
        else:
            A(f"s_add_u32 s{n}, s{p}, {off}"); A(f"s_addc_u32 s{n+1}, s{p+1}, 0")
        A(f"s_mov_b32 s{n+2}, {size}"); A(f"s_mov_b32 s{n+3}, 0x20000")
    mksrd(sK, 6, f"s{sT0}", 65536)
    nlab = [0]
    extra = set()
    def adj(B, D):
        n = 0; cnt = 0
        while cnt < D - 1 or (B is A and (B.vm - 1 - n) in extra):
            if not (B is A and (B.vm - 1 - n) in extra): cnt += 1
            n += 1
        return min(n, 63)
    def throttle(B, D, idx):
        B.wait_vm_n(adj(B, D))
        if idx is None or DLO is None: return
        lo = DLO[idx]; mid = DMID[idx] if DMID else D
        if lo >= D and mid >= D: return
        nlab[0] += 1
        if mid < D:
            B.raw(f"    s_cmp_eq_u32 s{sLVL}, 0"); B.raw(f"    s_cbranch_scc1 L_t{nlab[0]}")
            B.raw(f"    s_waitcnt vmcnt({adj(B, mid)})")
        if lo < mid:
            B.raw(f"    s_cmp_lt_u32 s{sLVL}, 2"); B.raw(f"    s_cbranch_scc1 L_t{nlab[0]}")
            B.raw(f"    s_waitcnt vmcnt({adj(B, lo)})")
        B.raw(f"L_t{nlab[0]}:")
    kseq = {}
    def k_load(B, blk, i, D, dyn=False):
        def f():
            throttle(B, D, None if dyn else blk)
            if i % 4 == 0:
                if dyn: B(f"s_add_u32 s{sSO}, s{sNX}, {(dyn-1)*8192 + (i//4)*4096}")
                else: B(f"s_mov_b32 s{sSO}, {blk*8192 + (i//4)*4096}")
                if dyn: B(f"s_add_u32 m0, s{sNS if dyn == 1 else sNS2}, {(i//4)*4096}")
                else: B(f"s_add_u32 m0, s{sLK}, {(blk%NS)*8192 + (i//4)*4096}")
            q = B(f"buffer_load_dwordx4 v{vKA+(i&3)}, {srd(sK)}, s{sSO} offen offset:{(i&3)*1024} {kf} lds")
            if not dyn: kseq[blk, i] = q
        return f
    def k_loads(blk): return with_fb([k_load(A, blk, i, DK[blk]) for i in range(8)], blk)
    k0site = 0 in siteQ
    nfirst = 0 if k0site else (8 if kfirst is True else int(kfirst))
    for i in range(nfirst): k_load(A, 0, i, 63)()
    k0e = k0site and k0early
    def ppf():
        mksrd(sWP, 10, None, 576*8192)
        A(f"s_lshl_b32 s{sT1}, s{sTAB}, 10")
        A(f"buffer_load_dword a255, v16, {srd(sWP)}, s{sT1} offen {w1f}")
    if pfirst: ppf()
    if k0e:
        A(f"s_cmp_eq_u32 s{sSPL}, 0"); A.raw("    s_cbranch_scc1 L_nok0")
        sv = A.vm
        for i in range(8): k_load(A, 0, i, 63)()
        A.vm = sv
        A.raw("L_nok0:")
    if not pfirst: ppf()
    mksrd(sV, 8, f"s{sT0}", 65536)
    A(f"s_mul_i32 s{sT0}, s{sB}, 18432")
    mksrd(sX, 4, f"s{sT0}", 18432)
    A(f"s_lshl_b32 s{sT1}, s3, 10")
    for k in range(5):
        A(f"s_add_u32 m0, s{sT1}, {L_XI + k*4096}"); A(f"s_add_u32 s{sSO}, s{sT1}, {k*4096}")
        A(f"buffer_load_dwordx4 v{vLIN}, {srd(sX)}, s{sSO} offen lds")
    A(f"s_lshl_b32 s{sT1}, s{sB}, 8"); A(f"s_add_u32 s{sT1}, s{sT1}, {wsbase + 12}"); A(f"s_load_dword s{sE1}, s[18:19], s{sT1}")
    if not k0site:
        for i in range(nfirst, 8): k_load(A, 0, i, 63)()
    A("v_accvgpr_write_b32 a254, v17")
    if tlb0:
        A("s_mov_b64 exec, 1")
        A("s_cmp_eq_u32 s3, 0"); A.raw("    s_cbranch_scc0 L_tl1")
        A("v_mov_b32 v16, 0")
        sv = A.vm
        A(f"buffer_load_dword a255, v16, {srd(sK)}, 0 offen {kf}")
        A(f"buffer_load_dword a255, v16, {srd(sV)}, 0 offen {vf}")
        A.raw("L_tl1:")
        A("s_cmp_eq_u32 s3, 1"); A.raw("    s_cbranch_scc0 L_tl2")
        A(f"s_lshl_b32 s{sT0}, s{sPID}, 14"); A(f"s_add_u32 s{sT0}, s{sT0}, {XO_OFF + wsbase}"); A(f"v_mov_b32 v16, s{sT0}")
        A("global_load_dword a255, v16, s[18:19]")
        A(f"s_lshl_b32 s{sT0}, s{sB}, 1"); A(f"s_add_u32 s{sT0}, s{sT0}, s{sSPL}"); A(f"s_mul_i32 s{sT0}, s{sT0}, 196608")
        A(f"s_mul_i32 s{sT1}, s{sKVH}, 768"); A(f"s_add_u32 s{sT0}, s{sT0}, s{sT1}"); A(f"s_add_u32 s{sT0}, s{sT0}, {PY_OFF + wsbase}"); A(f"v_mov_b32 v16, s{sT0}")
        A("global_load_dword a255, v16, s[18:19]")
        A(f"s_lshl_b32 s{sT0}, s{sPID}, 9"); A(f"s_add_u32 s{sT0}, s{sT0}, {XS_OFF + wsbase}"); A(f"v_mov_b32 v16, s{sT0}")
        A("global_load_dword a255, v16, s[18:19]")
        A.raw("L_tl2:")
        A("s_cmp_eq_u32 s3, 2"); A.raw("    s_cbranch_scc0 L_tl3")
        A(f"s_mul_i32 s{sT0}, s{sKVH}, {256*1152}"); A(f"v_mov_b32 v16, s{sT0}")
        A("global_load_dword a255, v16, s[12:13]")
        A(f"s_add_u32 s{sT0}, s{sT0}, {255*1152}"); A(f"v_mov_b32 v16, s{sT0}")
        A("global_load_dword a255, v16, s[12:13]")
        A(f"s_mul_i32 s{sT0}, s{sPID}, 576"); A(f"v_mov_b32 v16, s{sT0}")
        A("global_load_dword a255, v16, s[14:15]")
        A.raw("L_tl3:")
        A.vm = sv
        A("s_mov_b64 exec, -1")
    def late_touch():
        A("v_accvgpr_read_b32 v1, a254")
        A(f"s_lshl_b32 s{sT1}, s{sTAB}, 5"); A(f"s_add_u32 s{sT1}, s{sT1}, s{sSLOT}"); A(f"s_mul_i32 s{sT1}, s{sT1}, {144*128}")
        A(f"buffer_load_dword a255, v1, {srd(sWP)}, s{sT1} offen {w1f}")
        if tlbwarm and not tlb0:
            A(f"v_mov_b32 v{vT}, 0")
            A(f"buffer_load_dword a255, v{vT}, {srd(sV)}, 0 offen {vf}")
        if outtouch:
            A(f"s_mul_i32 s{sT1}, s{sPID}, 576"); A(f"s_lshl_b32 s{sT0}, s3, 13"); A(f"s_add_u32 s{sT1}, s{sT1}, s{sT0}")
            A(f"v_lshlrev_b32 v{vT+1}, 7, v0"); A("v_cmp_gt_u32 vcc, 5, v0"); A(f"v_mov_b32 v{vT+2}, 0x7ffffff0")
            A("s_cmp_eq_u32 s3, 0"); A("s_cselect_b64 vcc, vcc, 0")
            A(f"v_cndmask_b32 v{vT+1}, v{vT+2}, v{vT+1}, vcc")
            A(f"buffer_load_dword a255, v{vT+1}, {srd(sOUT)}, s{sT1} offen")
    if stamps:
        A(f"s_lshl_b32 s{sT1}, s2, 8"); A(f"s_add_u32 s{sT1}, s{sT1}, {STAMP_OFF}")
        A(f"s_add_u32 s16, s18, s{sT1}"); A("s_addc_u32 s17, s19, 0")
        A("v_and_b32 v17, 128, v18")
        A("global_load_dword a255, v17, s[16:17]")
    A(f"s_and_b32 s{sT0}, s3, 1"); A(f"s_lshl_b32 s{sT1}, s{sKVH}, 1"); A(f"s_add_u32 s{sT0}, s{sT0}, s{sT1}"); A(f"s_lshl_b32 s{sT0}, s{sT0}, 8")
    A(f"s_lshr_b32 s{sT1}, s3, 1"); A(f"s_mul_i32 s61, s{sT1}, {288*8192}"); A(f"s_add_u32 s{sT0}, s{sT0}, s61")
    mksrd(sWQ, 10, f"s{sT0}", 287*8192+256)
    A("v_lshlrev_b32 v22, 4, v21"); A(f"v_lshl_add_u32 v{vWQ}, v20, 16, v22")
    A(f"s_mul_i32 s{sT1}, s{sT1}, 576"); A(f"s_add_u32 s{sT1}, s{sT1}, {L_XI}")
    A("v_mul_u32_u24 v22, 1152, v21"); A("v_lshl_add_u32 v22, v20, 4, v22"); A(f"v_add_u32 v{vX}, s{sT1}, v22")
    A(f"s_mov_b32 s{sSELL}, 0x05040100"); A(f"s_mov_b32 s{sSELH}, 0x07060302")
    if noQB: A(f"s_mov_b32 s{sWQ+2}, 0")
    A(f"s_getreg_b32 s{sXCC}, hwreg(HW_REG_XCC_ID, 0, 4)")
    if fb:
        A(f"s_mov_b32 s{sLVL}, 1")
    elif DLO is not None:
        A(f"s_lshr_b32 s{sT0}, {lomask}, s{sXCC}"); A(f"s_and_b32 s{sT0}, s{sT0}, 1"); A(f"s_lshl_b32 s{sLVL}, s{sT0}, 1")
        A(f"s_lshr_b32 s{sT0}, {midmask}, s{sXCC}"); A(f"s_and_b32 s{sT0}, s{sT0}, 1"); A(f"s_or_b32 s{sLVL}, s{sLVL}, s{sT0}")
    def late_setup():
        mksrd(sOUT, 14, None, 8*16*576*2)
        mksrd(sWP, 12, None, 4096*1152)
        A(f"s_mul_i32 s{sT0}, s{sKVH}, {256*1152}")
        A(f"s_mul_i32 s{sT1}, s{sSPL}, 576"); A(f"s_add_u32 s{sT0}, s{sT0}, s{sT1}")
        A(f"s_mul_i32 s{sT1}, s3, 192"); A(f"s_add_u32 s{sT0}, s{sT0}, s{sT1}")
        mksrd(sWO, 12, f"s{sT0}", 255*1152+192)
        mksrd(sWS, 18, wsbase, WS_USED)
        A("s_cmp_eq_u32 s3, 3"); A(f"s_cselect_b32 s{sWO+2}, 0, s{sWO+2}")
        if noOB: A(f"s_mov_b32 s{sWO+2}, 0")
        A(f"s_mov_b32 s{sSC}, {SCALE:#x}")
        g_, c_, t2, t3 = vT, vT+1, vT+2, vT+3
        A(f"v_lshrrev_b32 v{g_}, 4, v0"); A(f"v_and_b32 v{c_}, 15, v0")
        A(f"v_mul_u32_u24 v{t2}, 4608, v{g_}"); A(f"v_mul_u32_u24 v{t3}, 12, v{c_}"); A(f"v_add_u32 v{vWO}, v{t2}, v{t3}")
        A(f"v_and_b32 v{t2}, 3, v{c_}"); A(f"v_lshlrev_b32 v{t2}, 2, v{t2}"); A(f"v_lshrrev_b32 v{t3}, 2, v{c_}"); A(f"v_add_u32 v{t2}, v{t2}, v{t3}")
        A(f"v_lshlrev_b32 v{t3}, 2, v{g_}"); A(f"v_xor_b32 v{t3}, v{t3}, v{t2}"); A(f"v_lshlrev_b32 v{t3}, 4, v{t3}"); A(f"v_lshl_add_u32 v{t3}, v{c_}, 8, v{t3}")
        A(f"v_add_u32 v{vKR}, s{sLK}, v{t3}")
        for s in range(1, 4): A(f"v_xor_b32 v{vKR+s}, {s<<4}, v{vKR}")
        A(f"v_mov_b32 v{vMX}, 0xff800000"); A(f"v_mov_b32 v{vMX+1}, 0xff800000")
    if rstage < 0 or not k0e:
        late_setup()
        if rstage < 0: late_touch()

    mvseq = {}
    def k_move(blk):
        it = [lambda: A.wait_vm(kseq[blk, 7])]
        for t in range(2):
            for s in range(4):
                def f(t=t, s=s):
                    mvseq[blk] = A(f"ds_read_b128 {ar(blk*32+t*16+s*4)}, v{vKR+s} offset:{(blk%NS)*8192+t*4096}")
                it.append(f)
        return it
    def qk(blk):
        it = [lambda: A.wait_lg(mvseq[blk])]
        for s in range(4):
            for t in range(2):
                for h in range(2):
                    d = vr(vS + blk*16 + h*8 + t*4)
                    it.append(f"{MF} {d}, {ar(blk*32+t*16+s*4)}, {vr(vQ+h*16+s*4)}, {d if s else 0}")
        return it
    def rmax(blk):
        it = []
        for k in range(4):
            for h in range(2):
                b = vS + blk*16 + h*8 + 2*k
                it.append(f"v_max3_f32 v{vMX+h}, v{vMX+h}, v{b}, v{b+1}")
        return it
    def site(name, which, blk, loads, blk2=None):
        if blk or name != "QB": A.wait_lg_all()
        A(f"s_mov_b32 s{sNX}, {blk*8192}")
        A(f"s_add_u32 s{sNS}, s{sLK}, {(blk%NS)*8192}")
        if blk2 is not None: A(f"s_add_u32 s{sNS2}, s{sLK}, {(blk2%NS)*8192}")
        A(f"s_cmp_eq_u32 s{sSPL}, {which}")
        A(f"s_cbranch_scc1 L_{name}")
        for f in loads: f()
        A.vm_done = min(A.vm_done, A.vm - 1 - len(loads))
        A.label(f"L_{name}_ret{which}")
    def do_pretouch(pt=pt):
        A(f"s_lshl_b32 s{sT0}, s{sPID}, 14"); A(f"s_lshl_b32 s{sT1}, s3, 12"); A(f"s_add_u32 s{sT0}, s{sT0}, s{sT1}"); A(f"s_add_u32 s{sT0}, s{sT0}, {XO_OFF}")
        A(f"v_lshl_add_u32 v{vT}, v0, 7, s{sT0}")
        A(f"s_mul_i32 s{sT0}, s3, 24"); A(f"s_sub_u32 s{sT0}, s{sT0}, 24"); A(f"v_add_u32 v{vT+1}, s{sT0}, v0")
        A(f"v_mul_u32_u24 v{vT+2}, 10923, v{vT+1}"); A(f"v_lshrrev_b32 v{vT+2}, 16, v{vT+2}")
        A(f"v_mul_u32_u24 v{vT+2}, {12288-768}, v{vT+2}"); A(f"v_lshl_add_u32 v{vT+2}, v{vT+1}, 7, v{vT+2}")
        A(f"s_lshl_b32 s{sT0}, s{sB}, 1"); A(f"s_add_u32 s{sT0}, s{sT0}, s{sSPL}"); A(f"s_mul_i32 s{sT0}, s{sT0}, 196608")
        A(f"s_mul_i32 s{sT1}, s{sKVH}, 768"); A(f"s_add_u32 s{sT0}, s{sT0}, s{sT1}"); A(f"s_add_u32 s{sT0}, s{sT0}, {PY_OFF}")
        A(f"v_add_u32 v{vT+2}, s{sT0}, v{vT+2}")
        A(f"v_cmp_gt_u32 vcc, 24, v0"); A(f"v_mov_b32 v{vT+3}, 0x7ffffff0"); A(f"v_cndmask_b32 v{vT}, v{vT+2}, v{vT}, vcc")
        A(f"v_cmp_gt_u32 vcc, {48 if 'p' in pt else 24}, v0"); A(f"v_cndmask_b32 v{vT}, v{vT+3}, v{vT}, vcc")
        if 'x' not in pt:
            A(f"v_cmp_lt_u32 vcc, 23, v0"); A(f"v_cndmask_b32 v{vT}, v{vT+3}, v{vT}, vcc")
        if not ptx:
            A(f"buffer_load_dword a255, v{vT}, {srd(sWS)}, 0 offen {ptf}")
        else:
            A(f"v_mov_b32 v{vT+1}, {ptx*1536 if 'p' in ptxw else 0x40000000}"); A(f"v_mov_b32 v{vT+2}, {ptx << 16 if 'x' in ptxw else 0x40000000}")
            A(f"v_cmp_gt_u32 vcc, 24, v0"); A(f"v_cndmask_b32 v{vT+1}, v{vT+1}, v{vT+2}, vcc")
            A(f"v_add_u32 v{vT+1}, v{vT+1}, v{vT}")
            A(f"s_and_b32 s{sT0}, s2, {ptx}"); A(f"s_cmp_eq_u32 s{sT0}, 0"); A("s_cbranch_scc1 L_ptdo")
            if 'x' in ptxw and 'p' in ptxw:
                A("s_branch L_ptend")
            else:
                if 'x' in ptxw: A(f"v_cndmask_b32 v{vT}, v{vT}, v{vT+3}, vcc")
                else: A(f"v_cndmask_b32 v{vT}, v{vT+3}, v{vT}, vcc")
                A(f"v_mov_b32 v{vT+1}, v{vT+3}")
            A.label("L_ptdo")
            A.raw(f"    buffer_load_dword a255, v{vT}, {srd(sWS)}, 0 offen {ptf}")
            A.raw(f"    buffer_load_dword a255, v{vT+1}, {srd(sWS)}, 0 offen {ptf}")
            A.label("L_ptend")
    fbs = {}
    def fb_setup():
        A(f"s_lshl_b32 s{sBO}, s{sTAB}, 7"); A(f"s_add_u32 s{sBO}, s{sBO}, {BD_OFF}")
        A(f"s_lshl_b32 s{sBT}, s{sE1}, 4")
        A(f"s_mov_b32 s{sBS}, s{sWS}"); A(f"s_mov_b32 s{sBS+1}, s{sWS+1}"); A(f"s_mov_b32 s{sBS+3}, 0x20000")
        A("s_cmp_eq_u32 s3, 0"); A(f"s_cselect_b32 s{sBS+2}, {WS_USED}, 0")
        A(f"s_lshl_b32 s{sT0}, s{sSLOT}, 2")
        A(f"v_mov_b32 v{vT}, 0x7ffffff0"); A(f"v_lshlrev_b32 v{vT+1}, 2, v0"); A("v_cmp_gt_u32 vcc, 32, v0")
        A(f"v_cndmask_b32 v{vBA}, v{vT}, v{vT+1}, vcc")
        A(f"v_mov_b32 v{vT+1}, s{sT0}"); A("v_cmp_eq_u32 vcc, 0, v0"); A(f"v_cndmask_b32 v{vBA+2}, v{vT}, v{vT+1}, vcc")
    def fb_post(idx):
        if idx not in fb: return
        A(f"s_add_u32 s11, s{sBT}, {idx}"); A(f"v_mov_b32 v{vBV}, s11")
        A(f"buffer_store_dword v{vBV}, v{vBA+2}, {srd(sBS)}, s{sBO} offen")
        fbs[idx] = A(f"buffer_load_dword v{vBD}, v{vBA}, {srd(sWS)}, s{sBO} offen {fbf}")
        extra.update((fbs[idx], fbs[idx] - 1))
    def fb_eval(idx):
        def f():
            A.wait_vm(fbs[idx])
            A(f"s_add_u32 s11, s{sBT}, {idx}"); A(f"v_subrev_u32 v{vBD}, s11, v{vBD}")
            A(f"v_cmp_gt_u32 s[12:13], {16-idx}, v{vBD}"); A(f"s_bcnt1_i32_b64 s11, s[12:13]")
            A(f"s_cmp_le_u32 s11, {fbT[0]}"); A(f"s_cselect_b32 s{sLVL}, 2, 1")
            A(f"s_cmp_ge_u32 s11, {fbT[1]}"); A(f"s_cselect_b32 s{sLVL}, 0, s{sLVL}")
        return f
    def with_fb(loads, idx):
        if idx - 1 not in fb: return loads
        l = list(loads); k = min(fbat, len(l) - 1)
        g = l[k]
        l[k] = lambda: (fb_eval(idx - 1)(), g())
        return l
    def do_xpre():
        A(f"s_lshl_b32 s{sT0}, s{sPID}, 14"); A(f"s_lshl_b32 s{sT1}, s3, 12"); A(f"s_add_u32 s{sT0}, s{sT0}, s{sT1}"); A(f"s_add_u32 s{sT0}, s{sT0}, {XO_OFF}")
        A(f"s_not_b32 s{sT1}, s{sE1}")
        for k in range(4): A(f"v_mov_b32 v{vT+k}, s{sT1}")
        for k in range(3):
            q = A(f"buffer_store_dwordx4 {vr(vT)}, v{vLIN}, {srd(sWS)}, s{sT0} offen offset:{k*1024} {xpre}")
            extra.add(q)
        A("s_nop 1")
    def post_k(blk):
        if xpre is not None and blk == xprej: do_xpre()
        fb_post(blk)
        stamp_at(A, f"k{blk}")
        if blk == rstage: late_touch()
        if blk == pretouch: do_pretouch()

    nmv = [0]; nqk = [0]; nmx = [0]
    def kcomp(upto_move, do_qk, maxqk=3):
        it = []
        while nmv[0] <= upto_move: it += k_move(nmv[0]); nmv[0] += 1
        n = 0
        while do_qk and nqk[0] < nmv[0] and n < maxqk:
            it += qk(nqk[0]); nqk[0] += 1; n += 1
            while nmx[0] < nqk[0] - 1: it += rmax(nmx[0]); nmx[0] += 1
        return it
    skip = set()
    for blk in range(0 if k0site else 1, 8):
        if blk in skip:
            post_k(blk); continue
        last = blk + 1 if (blk in siteQ and q2) else blk
        if last >= NS:
            if nmv[0] <= last - NS: run(kcomp(last - NS, False))
            A.wait_lg(mvseq[last - NS])
        if blk in siteQ:
            if blk == 0 and k0e:
                def ph(i):
                    def f():
                        kseq[0, i] = A.vm; A.vm += 1
                    return f
                site("QB", 0, 0, [ph(i) for i in range(8)] + k_loads(1), 1); skip.add(1)
                if rstage >= 0: late_setup()
            elif q2:
                site("QB", siteQ.index(blk), blk, k_loads(blk) + k_loads(blk + 1), blk + 1); skip.add(blk + 1)
            else:
                site("QB", siteQ.index(blk), blk, k_loads(blk))
            if blk == siteQ[1]:
                A(f"s_add_u32 s{sE1}, s{sE1}, 1")
                if fb: fb_setup()
                stamp_at(A, "qb1")
        else:
            comp = kcomp(blk - 2, blk > siteQ[1])
            if blk == 7: comp += tail_addr()
            if blk in frontK: run(k_loads(blk)); run(comp)
            else: mix(A, comp, k_loads(blk))
        post_k(blk)
    assert 7 not in skip
    assert 7 not in siteQ
    vseq = {}
    def v_load(B, blk, i, D, dyn=False):
        def f():
            throttle(B, D, None if dyn else 8 + blk)
            if i % 4 == 0:
                if dyn: B(f"s_add_u32 s{sSO}, s{sNX}, {(i//4)*4096}")
                else: B(f"s_mov_b32 s{sSO}, {blk*8192 + (i//4)*4096}")
                if dyn: B(f"s_add_u32 m0, s{sNS}, {(i//4)*4096}")
                else: B(f"s_add_u32 m0, s{sLK}, {(blk%NS)*8192 + (i//4)*4096}")
            q = B(f"buffer_load_dwordx4 v{vVA+(i&1)}, {srd(sV)}, s{sSO} offen offset:{(i&3)*1024} {vf} lds")
            if not dyn: vseq[blk, i] = q
        return f
    def v_loads(blk):
        l = with_fb([v_load(A, blk, i, DV[blk]) for i in range(8)], 8 + blk)
        if 8 + blk in fb:
            g = l[7]
            l[7] = lambda: (g(), fb_post(8 + blk))
        return l
    run(["v_lshrrev_b32 v176, 4, v0", "v_and_b32 v177, 15, v0", "v_lshlrev_b32 v178, 1, v176", "v_xor_b32 v177, v177, v178",
         "v_lshlrev_b32 v177, 4, v177", f"v_lshl_add_u32 v{vVA}, v176, 8, v177", f"v_xor_b32 v{vVA+1}, 0x80, v{vVA}",
         f"s_lshl_b32 s{sT0}, s3, 11", f"s_add_u32 s{sT0}, s{sT0}, {L_PX}", f"v_add_u32 v{vPW}, s{sT0}, v{vLIN}", f"v_add_u32 v{vPR}, {L_PX}, v{vLIN}"])
    A.wait_lg(mvseq[4])
    mix(A, kcomp(6, True, 8), v_loads(0))
    vl = v_loads(1)
    cut = 0
    comp = kcomp(7, True, 8)
    MXO = 3 * 8192 + 7168
    comp += ["v_and_b32 v176, 15, v0", "v_lshlrev_b32 v176, 3, v176", f"v_add_u32 v176, {MXO}, v176",
             f"v_add_u32 v177, s{sLK}, v176", f"v_add_u32 v188, {2*L_KW}, v176"]
    comp += rmax(7)
    for h in range(2): comp.append(f"v_mov_b32 v{178+h}, v{vMX+h}")
    for h in range(2): comp.append(f"v_permlane32_swap_b32 v{178+h}, v{vMX+h}")
    for h in range(2): comp.append(f"v_max_f32 v{vMX+h}, v{vMX+h}, v{178+h}")
    for h in range(2): comp.append(f"v_mov_b32 v{178+h}, v{vMX+h}")
    for h in range(2): comp.append(f"v_permlane16_swap_b32 v{178+h}, v{vMX+h}")
    for h in range(2): comp.append(f"v_max_f32 v{vMX+h}, v{vMX+h}, v{178+h}")
    comp += [f"ds_write_b64 v177, {vr(vMX, 2)}",
             lambda: A.wait_lg_all(), "s_barrier",
             f"ds_read_b64 {vr(180, 2)}, v176", f"ds_read_b64 {vr(182, 2)}, v176 offset:{L_KW}",
             f"ds_read_b64 {vr(184, 2)}, v188", f"ds_read_b64 {vr(186, 2)}, v188 offset:{L_KW}",
             lambda: A.wait_lg_all()]
    for h in range(2): comp.append(f"v_max3_f32 v{vMX+h}, v{180+h}, v{182+h}, v{184+h}")
    for h in range(2): comp.append(f"v_max_f32 v{vMX+h}, v{vMX+h}, v{186+h}")
    for h in range(2): comp.append(f"v_mul_f32 v{vMX+h}, s{sSC}, v{vMX+h}")
    cut2 = 6
    mix(A, comp, vl[cut:cut2])
    run(["v_lshrrev_b32 v178, 2, v0", "v_and_b32 v179, 7, v178", "v_lshlrev_b32 v179, 1, v179",
         "v_bfe_u32 v180, v0, 1, 1", f"s_lshl_b32 s{sT0}, s3, 2", f"v_or_b32 v180, s{sT0}, v180",
         "v_xor_b32 v179, v179, v180", "v_lshlrev_b32 v179, 4, v179", "v_lshl_add_u32 v179, v178, 8, v179",
         "v_and_b32 v180, 1, v0", f"v_lshl_add_u32 v{vVR}, v180, 3, v179",
         f"v_xor_b32 v{vVR+1}, 32, v{vVR}", f"v_add_u32 v{vVR+2}, {2*L_KW}, v{vVR}", f"v_add_u32 v{vVR+3}, {2*L_KW}, v{vVR+1}"])
    stamp_at(A, "mxdone")
    def softmax(blk):
        it = []
        for h in range(2):
            b = vS + blk*16 + h*8
            for k in range(8): it.append(f"v_fma_f32 v{b+k}, v{b+k}, s{sSC}, -v{vMX+h}")
            for k in range(8): it.append(f"v_exp_f32 v{b+k}, v{b+k}")
        for h in range(2):
            b = vS + blk*16 + h*8
            for k in range(4): it.append(f"v_cvt_pk_bf16_f32 v{vS+blk*8+h*4+k}, v{b+2*k}, v{b+2*k+1}")
        return it
    def lsum(blk):
        return [f"{MF} {vr(vT+8+4*h)}, {vr(vT)}, {vr(vS+blk*8+h*4)}, {vr(vT+8+4*h) if blk else 0}" for h in range(2)]
    comp = [f"v_mov_b32 v{vT+k}, 0x3f803f80" for k in range(4)]
    for blk in range(8):
        comp += softmax(blk)
        if blk: comp += lsum(blk-1)
    comp += lsum(7)
    comp += ["v_and_b32 v1, 15, v0", f"s_lshl_b32 s{sT0}, s3, 2", f"v_lshl_add_u32 v1, v1, 4, s{sT0}", f"v_add_u32 v1, {L_LX}, v1",
             f"ds_write_b32 v1, v{vT+8}", f"ds_write_b32 v1, v{vT+12} offset:256"]
    def pwrite(j):
        return [f"ds_write_b128 v{vPW}, {vr(vS+j*8+h*4)} offset:{(j%3)*8192+h*1024}" for h in range(2)]
    comp += pwrite(0) + pwrite(1)
    mix(A, comp, vl[cut2:] + v_loads(2))
    stamp_at(A, "smdone")

    def sync(j):
        return [lambda: A.wait_vm(vseq[j, 7]), lambda: A.wait_lg_all(), "s_barrier"]
    rd = {}
    def preads(j):
        it = []
        for src in range(4):
            for h in range(2):
                def f(src=src, h=h): rd["p", src, h] = A(f"ds_read_b128 {vr(vPM+src*8+h*4)}, v{vPR} offset:{(j%3)*8192+src*2048+h*1024}")
                it.append(f)
        return it
    def rnd(j, withp=True):
        it = []
        pr = preads(j) if withp else []
        for src in range(4):
            it += pr[2*src:2*src+2]
            for t2 in range(2):
                for t in range(2):
                    def f(src=src, t2=t2, t=t):
                        rd["v", src, t2] = A(f"ds_read_b64_tr_b16 {vr(vVT+src*8+t2*4+t*2, 2)}, v{vVR+t2+2*(src>>1)} offset:{(src&1)*L_KW+(j%NS)*8192+t*4096}")
                    it.append(f)
        if j + 2 < 8: it += pwrite(j + 2)
        for src in range(4):
            for t2 in range(2):
                it.append(lambda src=src, t2=t2: A.wait_lg(rd["v", src, t2]))
                for h in range(2):
                    d = vr(vACC + h*8 + t2*4)
                    it.append(f"{MF} {d}, {vr(vVT+src*8+t2*4)}, {vr(vPM+src*8+h*4)}, {d if (j or src) else 0}")
        return it
    def stats_read():
        return ["v_and_b32 v1, 15, v0", "v_lshlrev_b32 v1, 4, v1", f"v_add_u32 v1, {L_LX}, v1",
                f"ds_read_b128 {vr(176)}, v1", f"ds_read_b128 {vr(180)}, v1 offset:256"]
    def stats_pub():
        def st():
            A("s_cmp_lg_u32 s3, 0"); A("s_cbranch_scc1 L_nostat")
            A.raw(f"    buffer_store_dwordx4 {vr(184)}, v1, {srd(sWS)}, s{sT0} offen {pubf}")
            A.raw("    s_nop 1")
            A.label("L_nostat")
        return ["v_add_f32 v176, v176, v177", "v_add_f32 v180, v180, v181", "v_add_f32 v178, v178, v179", "v_add_f32 v182, v182, v183",
                f"v_add_f32 v{vWQ}, v176, v178", f"v_add_f32 v{vX}, v180, v182",
                "v_and_b32 v1, 16, v0", "v_cmp_eq_u32 vcc, 0, v1",
                f"s_lshl_b32 s{sT0}, s{sXCC}, 28", f"s_xor_b32 s{sT0}, s{sT0}, s{sE1}",
                f"v_mov_b32 v186, s{sE1}", f"v_mov_b32 v187, s{sT0}",
                f"v_cndmask_b32 v184, v{vMX+1}, v{vMX}, vcc", f"v_cndmask_b32 v185, v{vX}, v{vWQ}, vcc",
                "v_and_b32 v1, 31, v0", "v_lshlrev_b32 v1, 4, v1",
                f"s_lshl_b32 s{sT0}, s{sPID}, 9", f"s_add_u32 s{sT0}, s{sT0}, {XS_OFF}", st]
    ev = []
    for r in range(7): ev += [("S", r), ("R", r)]
    pos = [0]
    def take(until):
        it = []
        while pos[0] <= ev.index(until):
            k, r = ev[pos[0]]; pos[0] += 1
            if k == "S": it += sync(r)
            else:
                if r == 0: it += stats_read()
                it += rnd(r)
                if r == 0: it += stats_pub()
        return it
    statseq = {}
    def ldstat(h):
        def f():
            if h == 0:
                A("v_and_b32 v1, 15, v0"); A("v_lshlrev_b32 v1, 4, v1")
                A(f"s_xor_b32 s{sSTA}, s{sPID}, 1"); A(f"s_lshl_b32 s{sSTA}, s{sSTA}, 9"); A(f"s_add_u32 s{sSTA}, s{sSTA}, {XS_OFF}")
            statseq[h] = A(f"buffer_load_dwordx4 {vr(72+4*h)}, v1, {srd(sWS)}, s{sSTA} offen offset:{h*256} {ldf}")
        return f
    for j in range(3, 8):
        if j >= NS: run(take(("S", j - NS + 1)))
        if j == 3 and (j in siteO or j in frontV): run(take(("S", 0)))
        if j == (6 if earlyscl else 7): run([ldstat(0), ldstat(1)])
        if j == 7 and earlyscl:
            run([lambda: A.wait_vm(statseq[1])] + stat_scales(A, local))
        if j in siteO and prer is not None and prer[siteO.index(j)] is not None:
            which = siteO.index(j) ^ oswap
            items = take(("R", prer[siteO.index(j)]))
            A(f"s_mov_b32 s{sNX}, {j*8192}"); A(f"s_add_u32 s{sNS}, s{sLK}, {(j%NS)*8192}")
            A(f"s_cmp_lg_u32 s{sSPL}, {which}"); A(f"s_cbranch_scc1 L_pre{j}")
            sv = (A.lg, A.lg_done, A.vm_done)
            run(items); A.wait_lg_all(); A("s_branch L_OB")
            A.lg, A.lg_done, A.vm_done = sv
            A.label(f"L_pre{j}")
            if j in frontV: run(v_loads(j)); run(items)
            else: mix(A, items, v_loads(j))
            A.wait_lg_all()
            A.vm_done = min(A.vm_done, A.vm - 9)
            A.label(f"L_OB_ret{which}")
        elif j in siteO:
            site("OB", siteO.index(j) ^ oswap, j, v_loads(j))
        elif j == 7:
            vl7 = v_loads(7)
            mix(A, take(("R", 4)), vl7[:front7] )
            mix(A, take(("R", 5)), vl7[front7:])
        elif j in frontV:
            run(v_loads(j)); run(take(("R", j - 2)))
        else:
            mix(A, take(("R", j - 2)), v_loads(j))
        if j == ptlj and ptlate: do_pretouch(ptlate)
        stamp_at(A, f"v{j}")
    run(take(("R", 5)))
    stamp_at(A, "r5")
    if not earlyscl: run([lambda: A.wait_vm(statseq[1])] + stat_scales(A, local))
    run([f"v_mov_b32 v{103+4*k}, s{sE1}" for k in range(3)])
    stamp_at(A, "scl")
    run(take(("S", 6))); stamp_at(A, "s6")
    run(take(("R", 6))); run(preads(7))
    stamp_at(A, "v7")
    sy = sync(7)
    run(sy[:1]); stamp_at(A, "v7land"); run(sy[1:]); stamp_at(A, "v7b")
    if "notail" in exp: A("s_branch L_fin")
    run(rnd(7, withp=False))
    tail(A, pubf, ldf, stamp_at, sleepx, sleepg, outf, own, pipe, brx, xnt, gwait, pubpair)
    A.label("L_fin")
    if stamps:
        A(f"s_lshl_b32 s{sT0}, s2, 2"); A(f"s_add_u32 s{sT0}, s{sT0}, s3"); A(f"s_lshl_b32 s{sT0}, s{sT0}, 6")
        A(f"s_add_u32 s{sT0}, s{sT0}, {STAMP_OFF}")
        A(f"s_add_u32 s18, s18, s{sT0}"); A("s_addc_u32 s19, s19, 0")
        A("v_mov_b32 v1, 0")
        for j in range(4):
            for k in range(4): A(f"v_mov_b32 v{4+k}, s{sSTAMP+4*j+k}")
            A(f"global_store_dwordx4 v1, v[4:7], s[18:19] offset:{16*j} sc1")
    A.label("L_end")
    A("s_endpgm")

    B = Asm()
    B.label("L_QB")
    stamp_at(B, "qbs"); stamp_at(B, "cnt_clk0")
    qs = {}
    def q_load(u, i):
        def f():
            B.wait_vm_n(DQ - 1)
            B(f"s_mov_b32 s{sSO}, {(u*32+i)*8192}")
            qs[u, i] = B(f"buffer_load_dwordx4 {vr(WQR[u%3]+4*i)}, v{vWQ}, {srd(sWQ)}, s{sSO} offen {w2f}")
        return f
    xs = {}
    def q_cons(u):
        it = [lambda: B.wait_vm(qs[u, 7]), lambda: B.wait_lg(xs[u])]
        if "nocomp" in exp: return it
        for q in range(4):
            tb = vT + (q & 1) * 8
            it += perms(WQR[u % 3], q, tb)
            for jo in range(2):
                d = vr(vQA + (2*q+jo)*4)
                it.append(f"{MF} {d}, {vr(tb+4*jo)}, {vr(vXO_+4*u)}, {d if u else 0}")
        return it
    for u in (0, 1):
        for i in range(8): q_load(u, i)()
    B.wait_vm(qs[0, 0]); B("s_barrier")
    for u in range(9): xs[u] = B(f"ds_read_b128 {vr(vXO_+4*u)}, v{vX} offset:{u*64}")
    for u in range(0, 7):
        mix(B, q_cons(u), [q_load(u+2, i) for i in range(8)])
    kn = [k_load(B, 1, i, 32 if frontn else 24, dyn=1) for i in range(8)]
    if frontn:
        for f in kn: f()
        kn = []
    mix(B, q_cons(7), kn)
    mix(B, q_cons(8), [])
    stamp_at(B, "qbl")
    red = ["s_barrier",
           f"s_lshl_b32 s{sT0}, s3, 13", f"s_add_u32 s{sT0}, s{sT0}, {L_QR}", f"v_add_u32 v1, s{sT0}, v{vLIN}"]
    for j in range(8): red.append(f"ds_write_b128 v1, {vr(vQA+4*j)} offset:{j*1024}")
    red += [f"v_add_u32 v1, {L_QR}, v{vLIN}", lambda: B.wait_lg_all(), "s_barrier"]
    rs = {}
    for h in range(2):
        for j in range(8):
            for k in range(2):
                def f(h=h, j=j, k=k): rs[h, j, k] = B(f"ds_read_b128 {vr(vS+h*64+j*8+k*4)}, v1 offset:{(h+2*k)*8192+j*1024}")
                red.append(f)
    for h in range(2):
        for p in range(4):
            red.append(lambda h=h, p=p: B.wait_lg(rs[h, 2*p+1, 1]))
            for jo in range(2):
                b = vS + h*64 + (2*p+jo)*8
                for r in range(4): red.append(f"v_add_f32 v{b+r}, v{b+r}, v{b+4+r}")
            for r in range(4):
                red.append(f"v_cvt_pk_bf16_f32 v{vQ+h*16+r*4+p}, v{vS+h*64+(2*p)*8+r}, v{vS+h*64+(2*p+1)*8+r}")
    mix(B, red, [k_load(B, 2, i, DQ2, dyn=2) for i in range(8)] if q2 else [])
    if qbar: B.wait_lg_all(); B("s_barrier")
    stamp_at(B, "qbe")
    B(f"s_cmp_eq_u32 s{sSPL}, 0"); B("s_cbranch_scc1 L_QB_ret0"); B("s_branch L_QB_ret1")

    C = Asm()
    C.label("L_OB")
    stamp_at(C, "obs")
    C("s_cmp_eq_u32 s3, 3"); C("s_cbranch_scc1 L_OB3")
    os_ = {}
    OSL = [0, 1, 2, 0, 1, 2, 0, 1]
    def o_load(s, i):
        def f():
            C.wait_vm_n(DQ - 1)
            h, r = s >> 2, s & 3
            off = (h*128 + (0 if own else r*32) + (i>>2)*16 + (i&3)) * 1152
            so = off // 4096 * 4096
            if own: C(f"s_add_u32 s{sSO}, s{sRO+r}, {so}")
            else: C(f"s_mov_b32 s{sSO}, {so}")
            os_[s, i] = C(f"buffer_load_dwordx3 {vr(WOS[OSL[s]]+4*i, 3)}, v{vWO}, {srd(sWO)}, s{sSO} offen offset:{off-so} {w2f}")
        return f
    def o_cons(s):
        it = [lambda: C.wait_vm(os_[s, 7])]
        for q in range(3):
            tb = vT + (q & 1) * 8
            it += perms(WOS[OSL[s]], q, tb)
            for k in range(8): it.append(f"v_accvgpr_write_b32 a{s*24+q*8+k}, v{tb+k}")
        return it
    for s in (0, 1):
        for i in range(8): o_load(s, i)()
    for s in range(6):
        mix(C, o_cons(s), [o_load(s+2, i) for i in range(8)])
    if frontn:
        for i in range(8): v_load(C, 3, i, 32, dyn=1)()
        mix(C, o_cons(6), [])
    else:
        mix(C, o_cons(6), [v_load(C, 3, i, 24, dyn=1) for i in range(8)])
    mix(C, o_cons(7), [])
    stamp_at(C, "obe")
    C(f"s_cmp_eq_u32 s{sSPL}, 0"); C("s_cbranch_scc1 L_OB_ret0"); C("s_branch L_OB_ret1")
    C.label("L_OB3")
    for i in range(8): v_load(C, 3, i, 63, dyn=1)()
    C(f"s_cmp_eq_u32 s{sSPL}, 0"); C("s_cbranch_scc1 L_OB_ret0"); C("s_branch L_OB_ret1")

    D = Asm()
    D.label("L_statpoll")
    D(f"s_mov_b32 s{sCNT}, {POLL_MAX}")
    D.label("L_statloop")
    for h in range(2): D(f"buffer_load_dwordx4 {vr(72+4*h)}, v1, {srd(sWS)}, s{sSTA} offen offset:{h*256} {ldf}")
    D("s_waitcnt vmcnt(0)")
    for c in stat_check(): D(c)
    D("s_cbranch_scc1 L_statok")
    D(f"s_sub_u32 s{sCNT}, s{sCNT}, 1"); D(f"s_cmp_lg_u32 s{sCNT}, 0"); D("s_cbranch_scc1 L_statloop")
    giveup(D, 0)

    far = "\n".join(FAR) + "\n"; FAR.clear()
    out = A.text() + far + B.text() + C.text() + D.text() + "L_codeend:\n" + "    s_nop 0\n" * 64
    out += f""".section .rodata,"a"
.p2align 6
.amdhsa_kernel {KNAME}
  .amdhsa_next_free_vgpr 512
  .amdhsa_next_free_sgpr 102
  .amdhsa_accum_offset 256
  .amdhsa_group_segment_fixed_size 0
  .amdhsa_kernarg_size 64
  .amdhsa_user_sgpr_count 2
  .amdhsa_user_sgpr_kernarg_segment_ptr 1
  .amdhsa_system_sgpr_workgroup_id_x 1
.end_amdhsa_kernel
"""
    return out

FAR = []
FAILDBG = False
def giveup(B, code):
    if FAILDBG:
        B("s_load_dwordx2 s[16:17], s[0:1], 48"); B("s_waitcnt lgkmcnt(0)")
        B(f"v_mov_b32 v1, {code*16}"); B("v_mov_b32 v2, 1")
        B("v_cmp_eq_u32 vcc, 0, v0"); B("s_and_saveexec_b64 s[56:57], vcc")
        B("global_atomic_add v1, v2, s[16:17]")
        B("v_mov_b32 v2, s2"); B("v_mov_b32 v3, s3"); B(f"v_mov_b32 v4, s{sE1}")
        B("global_store_dwordx3 v1, v[2:4], s[16:17] offset:4")
        B("s_waitcnt vmcnt(0)")
    B("s_endpgm")
def tail_addr():
    it = []
    a = it.append
    a("v_and_b32 v176, 15, v0"); a("v_lshrrev_b32 v177, 4, v0")
    a("v_mul_u32_u24 v178, 12288, v176"); a(f"v_lshl_add_u32 v{vPUB}, v177, 4, v178")
    a("v_mul_u32_u24 v178, 768, v177"); a(f"v_lshl_add_u32 v{vGAT}, v176, 4, v178")
    a(f"s_lshl_b32 s{sT0}, s{sB}, 1"); a(f"s_add_u32 s{sT0}, s{sT0}, s{sSPL}")
    a(f"s_mul_i32 s{sT0}, s{sT0}, 196608"); a(f"s_lshl_b32 s{sT1}, s3, 8"); a(f"s_add_u32 s{sT0}, s{sT0}, s{sT1}"); a(f"s_add_u32 s{sT0}, s{sT0}, {PY_OFF}")
    a(f"s_mul_i32 s{sT1}, s{sKVH}, 768"); a(f"s_add_u32 s{sPB}, s{sT0}, s{sT1}")
    a(f"s_mul_i32 s{sT1}, s{sKVH}, 12288"); a(f"s_add_u32 s{sGA}, s{sT0}, s{sT1}"); a(f"s_add_u32 s{sGA+1}, s{sGA}, 6144")
    a("v_cmp_eq_u32 vcc, 3, v177"); a("v_bfe_u32 v178, v0, 2, 2"); a("v_cndmask_b32 v177, v177, 1, vcc")
    a("v_mad_u32_u24 v178, v178, 3, v177")
    a("v_and_b32 v179, 3, v178"); a("v_mul_u32_u24 v179, 12, v179"); a("v_and_b32 v178, 12, v178"); a("v_add_u32 v179, v179, v178")
    a("v_and_b32 v178, 3, v0"); a(f"v_mad_u32_u24 v{vOUT}, v178, 48, v179")
    a(f"s_lshr_b32 s{sT0}, s{sPID}, 1"); a(f"s_mul_i32 s{sOB}, s{sT0}, 1152"); a(f"s_mul_i32 s{sT0}, s{sSPL}, 576"); a(f"s_add_u32 s{sOB}, s{sOB}, s{sT0}")
    a(f"s_mul_i32 s{sT0}, s3, 192"); a(f"s_add_u32 s{sOB}, s{sOB}, s{sT0}")
    a(f"s_lshl_b32 s{sT0}, s3, 10"); a(f"s_add_u32 s{sT0}, s{sT0}, {L_BX}"); a(f"v_add_u32 v{vBXW}, s{sT0}, v{vLIN}")
    for sg in range(4):
        a(f"s_add_u32 s{sT0}, s3, {sg}"); a(f"s_and_b32 s{sT0}, s{sT0}, 3"); a(f"s_mul_i32 s{sRO+sg}, s{sT0}, {32*1152}")
        if sg: a(f"s_lshl_b32 s{sT0}, s{sT0}, 10"); a(f"s_add_u32 s{sT0}, s{sT0}, {L_BX}"); a(f"v_add_u32 v{vBXR+sg-1}, s{sT0}, v{vLIN}")
    a(f"s_lshl_b32 s{sXOo}, s{sPID}, 14"); a(f"s_lshl_b32 s{sT0}, s3, 12"); a(f"s_add_u32 s{sXOo}, s{sXOo}, s{sT0}")
    a(f"s_xor_b32 s{sXOp}, s{sXOo}, {1<<14}")
    a(f"s_add_u32 s{sXOo}, s{sXOo}, {XO_OFF}"); a(f"s_add_u32 s{sXOp}, s{sXOp}, {XO_OFF}")
    for n in (sXL, sXG):
        a(f"s_mov_b32 s{n}, s{sWS}"); a(f"s_mov_b32 s{n+1}, s{sWS+1}"); a(f"s_mov_b32 s{n+3}, 0x20000")
    return it

def stat_check():
    return [f"v_xor_b32 v80, s{sE1}, v74", f"v_xor_b32 v81, s{sE1}, v75", f"v_xor_b32 v82, s{sE1}, v78", f"v_xor_b32 v83, s{sE1}, v79",
            "v_or_b32 v84, v81, v83", "v_and_b32 v84, 0x0fffffff, v84",
            "v_or3_b32 v80, v80, v84, v82", "v_cmp_eq_u32 vcc, 0, v80", "s_cmp_eq_u64 vcc, -1"]

def stat_scales(A, local):
    it = stat_check()
    def br():
        A("s_cbranch_scc0 L_statpoll")
        A.label("L_statok")
    it.append(br)
    it += [f"v_readfirstlane_b32 s{sT0}, v81", f"s_lshr_b32 s{sT0}, s{sT0}, 28", f"s_cmp_eq_u32 s{sT0}, s{sXCC}",
           f"s_cselect_b32 s{sLOC}, {1 if local else 0}, 0",
           f"s_cselect_b32 s{sXL+2}, {WS_USED if local else 0}, 0", f"s_cselect_b32 s{sXG+2}, {0 if local else WS_USED}, {WS_USED}"]
    for h in range(2):
        it += [f"v_max_f32 v{80+h}, v{vMX+h}, v{72+4*h}"]
    for h in range(2):
        it += [f"v_sub_f32 v{82+h}, v{vMX+h}, v{80+h}", f"v_sub_f32 v{84+h}, v{72+4*h}, v{80+h}"]
    for h in range(2):
        it += [f"v_exp_f32 v{82+h}, v{82+h}", f"v_exp_f32 v{84+h}, v{84+h}"]
    for h in range(2):
        it += [f"v_mul_f32 v{84+h}, v{84+h}, v{73+4*h}"]
    for h in range(2):
        it += [f"v_fma_f32 v{84+h}, v{82+h}, v{vWQ+h}, v{84+h}"]
    for h in range(2):
        it += [f"v_rcp_f32 v{84+h}, v{84+h}"]
    for h in range(2):
        it += [f"v_mul_f32 v{vWQ+h}, v{82+h}, v{84+h}"]
    return it

def poll(A, name, loads, tags, slp):
    A(f"s_mov_b32 s{sCNT}, {POLL_MAX}")
    A.label(name)
    for l in loads: A(l)
    A("s_waitcnt vmcnt(0)")
    A.vm_done = A.vm - 1
    for k, t in enumerate(tags): A(f"v_xor_b32 v{70+k}, s{sE1}, v{t}")
    A("v_or3_b32 v70, v70, v71, v72")
    if len(tags) == 4: A("v_or_b32 v70, v70, v73")
    A("v_cmp_eq_u32 vcc, 0, v70"); A("s_cmp_eq_u64 vcc, -1")
    A(f"s_cbranch_scc1 {name}_ok")
    if slp: A(f"s_sleep {slp}")
    A(f"s_sub_u32 s{sCNT}, s{sCNT}, 1"); A(f"s_cmp_lg_u32 s{sCNT}, 0"); A(f"s_cbranch_scc1 {name}")
    giveup(A, 1 if name == "L_xp" else 2)
    A.label(f"{name}_ok")

def tail(A, pubf, ldf, stamp_at, sleepx, sleepg, outf, own, pipe, brx, xnt, gwait, pubpair):
    A.comment("---- tail: exchange with the other key half, output projection, reduction over kv heads")
    XG = 100
    def xreg(k): return XG + (k // 3) * 4 + k % 3
    sent = 0
    for x in range(4):
        b = vACC + x*4
        for r in range(4): A(f"v_mul_f32 v{b+r}, v{b+r}, v{vWQ+(x>>1)}")
        for p in range(2): A(f"v_cvt_pk_bf16_f32 v{xreg(2*x+p)}, v{b+2*p}, v{b+2*p+1}")
        while not brx and sent < 3 and min(3*sent + 2, 7) <= 2*x + 1:
            A(f"buffer_store_dwordx4 {vr(XG+sent*4)}, v{vLIN}, {srd(sXL)}, s{sXOo} offen offset:{sent*1024}")
            A(f"buffer_store_dwordx4 {vr(XG+sent*4)}, v{vLIN}, {srd(sXG)}, s{sXOo} offen offset:{sent*1024} {pubf}")
            sent += 1
    if brx:
        A.raw(f"    s_cmp_eq_u32 s{sLOC}, 0"); A.raw("    s_cbranch_scc1 L_xfar")
        for k in range(3): A(f"buffer_store_dwordx4 {vr(XG+k*4)}, v{vLIN}, {srd(sWS)}, s{sXOo} offen offset:{k*1024}")
        if xnt:
            stamp_at(A, "xst")
            A(f"s_movk_i32 s{sCNT}, 256")
            A.raw("L_xn:")
            for x in range(3): A(f"buffer_load_dwordx4 {vr(112+4*x)}, v{vLIN}, {srd(sWS)}, s{sXOp} offen offset:{x*1024} nt")
            A("s_waitcnt vmcnt(0)")
            for k, t in enumerate([115, 119, 123]): A(f"v_xor_b32 v{70+k}, s{sE1}, v{t}")
            A("v_or3_b32 v70, v70, v71, v72"); A("v_cmp_eq_u32 vcc, 0, v70"); A("s_cmp_eq_u64 vcc, -1")
            A.raw("    s_cbranch_scc1 L_xp_ok")
            A(f"s_sub_u32 s{sCNT}, s{sCNT}, 1"); A(f"s_cmp_lg_u32 s{sCNT}, 0"); A.raw("    s_cbranch_scc1 L_xn")
        A.raw("L_xsent:")
        FAR.append("L_xfar:")
        for k in range(3): FAR.append(f"    buffer_store_dwordx4 {vr(XG+k*4)}, v{vLIN}, {srd(sWS)}, s{sXOo} offen offset:{k*1024} {pubf}")
        FAR.append("    s_branch L_xsent")
    if not (brx and xnt): stamp_at(A, "xst")
    poll(A, "L_xp", [f"buffer_load_dwordx4 {vr(112+4*x)}, v{vLIN}, {srd(sWS)}, s{sXOp} offen offset:{x*1024} {ldf}" for x in range(3)], [115, 119, 123], sleepx)
    stamp_at(A, "cntx"); stamp_at(A, "xok")
    def mm(j, s, breg, first):
        d = vr(168 + 4*j)
        return f"{MF} {d}, {ar(s*24+j*4)}, {vr(breg)}, {0 if first else d}"
    def fin(h):
        it = []
        for p in range(4):
            k = h*4 + p; src = 112 + (k // 3) * 4 + k % 3
            it += [f"v_lshlrev_b32 v{16+2*k}, 16, v{src}", f"v_and_b32 v{17+2*k}, 0xffff0000, v{src}"]
        for e in range(8): it.append(f"v_add_f32 v{16+h*8+e}, v{16+h*8+e}, v{vACC+h*8+e}")
        for p in range(4): it.append(f"v_cvt_pk_bf16_f32 v{128+h*4+p}, v{16+h*8+2*p}, v{17+h*8+2*p}")
        it.append(f"ds_write_b128 v{vBXW}, {vr(128+h*4)} offset:{h*4096}")
        return it
    for c in fin(0): A(c)
    f1 = fin(1)
    if own:
        m0 = [mm(j, 0, 128, True) for j in range(6)]
        for k, c in enumerate(f1):
            if k % 3 == 2 and m0: A(m0.pop(0))
            A(c)
        for c in m0: A(c)
    else:
        for c in f1: A(c)
    A.wait_lg_all(); A("s_barrier")
    A("s_cmp_eq_u32 s3, 3"); A.raw("    s_cbranch_scc1 L_fin")
    stamp_at(A, "bxb")
    PG = 192
    def preg(D): return PG + (D // 3) * 4 + D % 3
    def pack(jp):
        for r in range(4): A(f"v_cvt_pk_bf16_f32 v{preg(jp*4+r)}, v{168+8*jp+r}, v{172+8*jp+r}")
    def pub(gm): A(f"buffer_store_dwordx4 {vr(PG+gm*4)}, v{vPUB}, {srd(sWS)}, s{sPB} offen offset:{gm*64} {pubf}")
    if own:
        steps = [1, 5, 2, 6, 3, 7]
        bs = {s: A(f"ds_read_b128 {vr(136+4*s)}, v{vBXR+(s&3)-1} offset:{(s>>2)*4096}") for s in steps}
        for j in range(6): A(mm(j, 4, 132, False))
    else:
        steps = list(range(8))
        bs = {s: A(f"ds_read_b128 {vr(136+4*s)}, v{vPR} offset:{s*1024}") for s in steps}
    for k in range(4): A(f"v_mov_b32 v{PG+3+4*k}, s{sE1}")
    for jp in range(3):
        for n, s in enumerate(steps):
            A.wait_lg(bs[s])
            for j in (2*jp, 2*jp+1): A(mm(j, s, 136+4*s, (not own) and s == 0))
            if jp and n == 4:
                pack(jp - 1)
                if not pubpair: pub(jp - 1)
                elif jp == 2: pub(0); pub(1)
    pack(2); pub(2); pub(3)
    stamp_at(A, "pub")
    def gl(GB): return [f"buffer_load_dwordx4 {vr(GB+4*k)}, v{vGAT}, {srd(sWS)}, s{sGA+(k>>1)} offen offset:{(k&1)*3072} {ldf}" for k in range(4)]
    def unpack(GB):
        for k in range(4):
            for d in range(3):
                A(f"v_lshlrev_b32 v{16+8*k+d}, 16, v{GB+4*k+d}"); A(f"v_and_b32 v{20+8*k+d}, 0xffff0000, v{GB+4*k+d}")
    def chk(GB, target):
        for k in range(4): A(f"v_xor_b32 v{70+k}, s{sE1}, v{GB+3+4*k}")
        A("v_or3_b32 v70, v70, v71, v72"); A("v_or_b32 v70, v70, v73")
        A("v_cmp_eq_u32 vcc, 0, v70"); A("s_cmp_eq_u64 vcc, -1")
        A.raw(f"    s_cbranch_scc1 {target}")
    if pipe:
        GA, GB = 208, 224
        A(f"s_mov_b32 s{sCNT}, {POLL_MAX}")
        for l in gl(GA): A(l)
        if sleepg: A(f"s_sleep {sleepg}")
        A.label("L_gp")
        for l in gl(GB): A(l)
        A("s_waitcnt vmcnt(4)"); chk(GA, "L_gp_okA")
        for l in gl(GA): A(l)
        A("s_waitcnt vmcnt(4)"); chk(GB, "L_gp_okB")
        A(f"s_sub_u32 s{sCNT}, s{sCNT}, 1"); A(f"s_cmp_lg_u32 s{sCNT}, 0"); A("s_cbranch_scc1 L_gp")
        A("s_endpgm")
        A.label("L_gp_okB"); unpack(GB); A.raw("    s_branch L_gsum")
        A.label("L_gp_okA"); unpack(GA)
        A.raw("L_gsum:")
        stamp_at(A, "cntg"); stamp_at(A, "gok")
    else:
        GB = 208
        if gwait: A("s_waitcnt vmcnt(0)")
        poll(A, "L_gp", gl(GB), [GB+3+4*k for k in range(4)], sleepg)
        stamp_at(A, "cntg"); stamp_at(A, "gok")
        unpack(GB)
    for e in (0, 1, 2, 4, 5, 6):
        A(f"v_add_f32 v{16+e}, v{16+e}, v{24+e}"); A(f"v_add_f32 v{32+e}, v{32+e}, v{40+e}")
    for e in (1, 5, 0, 4, 2, 6): A(f"v_add_f32 v{16+e}, v{16+e}, v{32+e}")
    A("v_mov_b32 v19, v17"); A("v_mov_b32 v23, v21")
    for (a_, b_) in ((16, 18), (20, 22), (17, 19), (21, 23)): A(f"v_permlane32_swap_b32 v{a_}, v{b_}")
    for (a_, b_) in ((16, 18), (20, 22), (17, 19), (21, 23)): A(f"v_add_f32 v{a_}, v{a_}, v{b_}")
    A("v_permlane16_swap_b32 v16, v17"); A("v_permlane16_swap_b32 v20, v21")
    A("v_add_f32 v16, v16, v17"); A("v_add_f32 v20, v20, v21")
    A("v_cvt_pk_bf16_f32 v16, v16, v20")
    A(f"buffer_store_dword v16, v{vOUT}, {srd(sOUT)}, s{sOB} offen {outf}")
    A(f"s_or_b32 s{sT0}, s{sKVH}, s{sSPL}"); A(f"s_or_b32 s{sT0}, s{sT0}, s3"); A(f"s_cmp_lg_u32 s{sT0}, 0"); A("s_cbranch_scc1 L_noep")
    A(f"v_mov_b32 v1, s{sE1}"); A(f"s_lshl_b32 s{sT0}, s{sB}, 8"); A("v_mov_b32 v2, 12")
    A(f"buffer_store_dword v1, v2, {srd(sWS)}, s{sT0} offen")
    A.label("L_noep")
    stamp_at(A, "end")

if __name__ == "__main__":
    import json
    kw = json.loads(sys.argv[2]) if len(sys.argv) > 2 else {}
    open(sys.argv[1], "w").write(gen(**kw))
```
